```python
import torch

def _softmax(x, axis=-1):
    return torch.softmax(x, dim=axis)
def _gelu(x):
    return torch.nn.functional.gelu(x, approximate="tanh")
def _silu(x):
    return torch.nn.functional.silu(x)
def _sigmoid(x):
    return torch.sigmoid(x)
def _layernorm(x, axis=-1, eps=1e-5):
    m = x.mean(dim=axis, keepdim=True)
    v = x.var(dim=axis, keepdim=True, unbiased=False)
    return (x - m) / torch.sqrt(v + eps)
def _scatter_add(tgt, idx, src, axis=0):
    return tgt.clone().index_add_(axis, idx, src)
def _segment_sum(src, seg, n):
    out = torch.zeros((n,) + src.shape[1:], dtype=src.dtype)
    return out.index_add_(0, seg, src)
def _pad(x, pw):
    flat = tuple(v for pair in reversed(pw) for v in pair)
    return torch.nn.functional.pad(x, flat)

kernel_name = 'standalone__qk_norm__prompt'

def setup_inputs():

    _w = (lambda a: (lambda t: t.to(torch.bfloat16) if t.is_floating_point() else t)(torch.as_tensor(a)))
    B, H, S, D = 1, 16, 4096, 448
    Dh = D // H
    return {
        "q": _w((lambda *s: torch.randn(*s, dtype=torch.bfloat16) * 0.05)(B, H, S, Dh)),
        "k": _w((lambda *s: torch.randn(*s, dtype=torch.bfloat16) * 0.05)(B, H, S, Dh)),
        "v": _w((lambda *s: torch.randn(*s, dtype=torch.bfloat16) * 0.8)(B, H, S, Dh)),
        "t": _w(torch.abs((lambda *s: torch.randn(*s, dtype=torch.bfloat16) * 0.8)(H)) + 1.0),
    }

def reference(q, k, v, t):
    eps = 1e-6
    qn = q / (torch.sqrt((q * q).sum(axis=-1, keepdims=True)) + eps)
    kn = k / (torch.sqrt((k * k).sum(axis=-1, keepdims=True)) + eps)
    logits = torch.einsum('bhqd,bhkd->bhqk', qn, kn) * t[None, :, None, None]
    attn = _softmax(logits, axis=-1)
    return torch.einsum('bhqk,bhkd->bhqd', attn, v)
```

```python
import sys

HEADER = """; Kernarg layout for this problem (56 bytes, ptrs only, base s[0:1]):
;   offset  32: d_out     shape=(1, 16, 4096, 28) dtype=bfloat16 (2 bytes/elem)
"""

HEADB = 229376
CHB = 28672
KB = [0, 32768]
VB = [65536, 94720]
ONES = 123904
LDS_BYTES = ONES + 16384
T_LIMIT = 0x41800000
LOG2E = 0x3fb8aa3b
EPS = 0x358637bd

sQ, sK, sV, sO = 16, 20, 24, 28
sH, sC, sW, sT, sI, sOFF, sM0, sKS = 32, 33, 34, 35, 36, 37, 38, 39
sA, sB, sD, sDM = 40, 41, 42, 66
sTS = 44
vL, vKG, vVG, vKW, vAK, vAV, vDV, vIDX = 1, 2, 3, 4, 5, 6, 7, 8
vT = [9, 10, 11, 12, 13, 14, 15]
RQ = 16
QF = [[16, 24], [20, 28]]
O = [32, 48]
S = [64, 80]
KF = [96, 104]
V1 = [112, 116]
V2 = [120, 124]
R = 128
D = [144, 160]
A1, A2 = 176, 180
MX = [184, 185]
NVGPR = 188


class Asm:
    def __init__(self):
        self.l = []
    def __call__(self, s):
        for x in s.split("\n"):
            self.l.append("    " + x.strip())
    def label(self, n):
        self.l.append(n + ":")
    def raw(self, s):
        self.l.append(s)
    def text(self):
        return "\n".join(self.l) + "\n"


def vr(a, n):
    return f"v[{a}:{a + n - 1}]"


def load_rows(a, dst, vaddr, srd, soff):
    a(f"buffer_load_dwordx4 {vr(dst, 4)}, v{vaddr}, s[{srd}:{srd+3}], {soff} offen")
    a(f"buffer_load_dwordx4 {vr(dst + 4, 4)}, v{vaddr}, s[{srd}:{srd+3}], {soff} offen offset:16")
    a(f"buffer_load_dwordx4 {vr(dst + 8, 4)}, v{vaddr}, s[{srd}:{srd+3}], {soff} offen offset:32")
    a(f"buffer_load_dwordx2 {vr(dst + 12, 2)}, v{vaddr}, s[{srd}:{srd+3}], {soff} offen offset:48")


def dma_v(a, soff):
    a(f"s_mov_b32 m0, s{sM0}")
    a("s_nop 0")
    for p in range(4):
        a(f"buffer_load_dwordx4 v{vVG}, s[{sV}:{sV+3}], {soff} offen offset:{1024 * p} lds")


def normalise(a, r, scale=None):
    acc, nrm = vT[0], vT[1]
    mm = [f"v_mfma_f32_32x32x16_bf16 {vr(D[0], 16)}, {vr(A1, 4)}, {vr(r, 4)}, 0",
          f"v_mfma_f32_32x32x16_bf16 {vr(D[0], 16)}, {vr(A2, 4)}, {vr(r + 4, 4)}, {vr(D[0], 16)}",
          f"v_mfma_f32_32x32x16_bf16 {vr(D[1], 16)}, {vr(A1, 4)}, {vr(r + 8, 4)}, 0",
          f"v_mfma_f32_32x32x16_bf16 {vr(D[1], 16)}, {vr(A2, 4)}, {vr(r + 12, 4)}, {vr(D[1], 16)}"]
    dots = [f"v_dot2_f32_bf16 v{acc}, v{r + i}, v{r + i}, {'0' if i == 0 else 'v%d' % acc}" for i in range(14)]
    a(mm[0]); [a(x) for x in dots[0:4]]
    a(mm[1]); [a(x) for x in dots[4:8]]
    a(mm[2]); [a(x) for x in dots[8:12]]
    a(mm[3]); [a(x) for x in dots[12:14]]
    a("s_nop 2")
    a(f"v_sqrt_f32 v{nrm}, v{acc}")
    a("s_nop 0")
    a(f"v_add_f32 v{nrm}, {hex(EPS)}, v{nrm}")
    a(f"v_rcp_f32 v{nrm}, v{nrm}")
    a("s_nop 0")
    if scale is not None:
        a(f"v_mul_f32 v{nrm}, v{scale}, v{nrm}")
    for i in range(14):
        d = D[0] + 2 * i
        a(f"v_pk_mul_f32 {vr(d, 2)}, {vr(d, 2)}, {vr(nrm, 2)} op_sel_hi:[1,0]")
        if i >= 1:
            a(f"v_cvt_pk_bf16_f32 v{r + i - 1}, v{d - 2}, v{d - 1}")
    a(f"v_cvt_pk_bf16_f32 v{r + 13}, v{D[0] + 26}, v{D[0] + 27}")


def write_k(a):
    for p in range(4):
        a(f"ds_write_b128 v{vKW}, {vr(R + 4 * p, 4)} offset:{(p >> 1) * 1024 + (p & 1) * 512}")


def rdK(f, tile):
    b = tile & 1
    return f"ds_read_b128 {vr(KF[b] + 4 * f, 4)}, v{vAK} offset:{(tile % 8) * 2048 + 1024 * f}"


def rdV(which, part, tile):
    b = tile & 1
    base = (V1, V2)[which][b] + 2 * part
    return f"ds_read_b64_tr_b16 {vr(base, 2)}, v{vAV} offset:{(tile % 8) * 1792 + 896 * which + 224 * part}"


def qk(x, f, tile):
    k = KF[tile & 1] + 4 * f
    c = "0" if f == 0 else vr(S[x], 16)
    return f"v_mfma_f32_32x32x16_bf16 {vr(S[x], 16)}, {vr(k, 4)}, {vr(QF[x][f], 4)}, {c}"


def pv(x, which, tile):
    v = (V1, V2)[which][tile & 1]
    return f"v_smfmac_f32_32x32x32_bf16 {vr(O[x], 16)}, {vr(v, 4)}, {vr(S[x] + 8 * which, 8)}, v{vIDX}"


def half(a, x, j, pre=None):
    e = [f"v_exp_f32 v{S[x] + i}, v{S[x] + i}" for i in range(16)]
    if x == 0:
        m = [pv(1, 1, j - 1), qk(1, 0, j), qk(1, 1, j), pv(0, 0, j)]
        r = [rdV(0, 1, j + 1), rdV(1, 0, j + 1), rdV(1, 1, j + 1), None]
    else:
        m = [pv(0, 1, j), qk(0, 0, j + 1), qk(0, 1, j + 1), pv(1, 0, j)]
        r = [rdK(0, j + 2), rdK(1, j + 2), None, rdV(0, 0, j + 2)]
    cuts = [2, 6, 10, 14]
    pos = 0
    for g in range(4):
        for i in range(pos, cuts[g]):
            a(e[i])
        pos = cuts[g]
        if g == 0 and pre:
            pre(a)
        a(m[g])
        if r[g]:
            a(r[g])
    for i in range(pos, 16):
        a(e[i])


def stamp(a, opts, n):
    if opts.get("stamps"):
        a(f"s_memtime s[{sTS + 2 * n}:{sTS + 2 * n + 1}]")


def prologue(a, opts):
    a("s_cmp_ge_u32 s2, 256")
    a("s_cbranch_scc1 L_end")
    stamp(a, opts, 0)
    a("s_load_dwordx8 s[4:11], s[0:1], 0")
    a("s_load_dwordx2 s[12:13], s[0:1], 32")
    a(f"""v_lshrrev_b32 v{vT[0]}, 6, v0
    v_and_b32 v{vL}, 63, v0
    s_and_b32 s{sA}, s2, 7
    v_readfirstlane_b32 s{sW}, v{vT[0]}
    s_lshl_b32 s{sA}, s{sA}, 1
    s_bfe_u32 s{sB}, s2, 0x10003
    s_add_u32 s{sH}, s{sA}, s{sB}
    s_lshr_b32 s{sC}, s2, 4
    v_mul_u32_u24 v{vKG}, 56, v0
    s_mul_i32 s{sA}, s{sH}, {HEADB}
    s_mul_i32 s{sB}, s{sC}, 14336
    s_add_u32 s{sB}, s{sB}, s{sA}
    v_and_b32 v{vT[1]}, 255, v0
    v_mul_u32_u24 v{vT[1]}, 56, v{vT[1]}
    s_lshr_b32 s{sKS}, s{sW}, 2
    s_mul_i32 s{sM0}, s{sW}, 3584
    v_lshlrev_b32 v{vVG}, 4, v{vL}
    v_add_u32 v{vVG}, s{sM0}, v{vVG}
    s_add_u32 s{sM0}, s{sM0}, {VB[0]}
    s_lshr_b32 s{sD}, s{sH}, 1
    s_lshl_b32 s{sD}, s{sD}, 2
    s_mov_b32 s{sK+2}, {HEADB}
    s_mov_b32 s{sK+3}, 0x20000
    s_mov_b32 s{sQ+2}, 14336
    s_mov_b32 s{sQ+3}, 0x20000
    s_mov_b32 s{sV+2}, {HEADB}
    s_mov_b32 s{sV+3}, 0x20000
    s_mov_b32 s{sO+2}, 14336
    s_mov_b32 s{sO+3}, 0x20000
    s_waitcnt lgkmcnt(0)
    s_add_u32 s{sK}, s6, s{sA}
    s_addc_u32 s{sK+1}, s7, 0
    s_add_u32 s{sQ}, s4, s{sB}
    s_addc_u32 s{sQ+1}, s5, 0
    s_load_dword s{sT}, s[10:11], s{sD}""")
    load_rows(a, R, vKG, sK, 0)
    load_rows(a, RQ, vT[1], sQ, 0)
    a(f"""s_add_u32 s{sV}, s8, s{sA}
    s_addc_u32 s{sV+1}, s9, 0
    s_add_u32 s{sO}, s12, s{sB}
    s_addc_u32 s{sO+1}, s13, 0""")
    dma_v(a, 0)
    t0, t1, t2, t3, t4 = vT[2:7]
    a(f"""v_lshrrev_b32 v{t0}, 5, v0
    v_lshlrev_b32 v{t0}, 11, v{t0}
    v_and_b32 v{t1}, 31, v0
    v_lshl_add_u32 v{vKW}, v{t1}, 4, v{t0}
    s_lshl_b32 s{sA}, s{sKS}, 14
    v_lshlrev_b32 v{vAK}, 4, v{vL}
    v_add_u32 v{vAK}, s{sA}, v{vAK}
    v_bfe_u32 v{t0}, v0, 2, 2
    v_bfe_u32 v{t1}, v0, 5, 1
    v_lshl_add_u32 v{t0}, v{t1}, 3, v{t0}
    v_mul_u32_u24 v{t0}, 56, v{t0}
    v_and_b32 v{t2}, 3, v0
    v_lshl_add_u32 v{t0}, v{t2}, 3, v{t0}
    v_bfe_u32 v{t3}, v0, 4, 1
    v_lshl_add_u32 v{t0}, v{t3}, 5, v{t0}
    s_mul_i32 s{sA}, s{sKS}, {8 * 1792}
    s_add_u32 s{sA}, s{sA}, {VB[0]}
    v_add_u32 v{vAV}, s{sA}, v{t0}
    v_add_u32 v{vDV}, {VB[1] - VB[0]}, v{vAV}
    v_xor_b32 v{vDV}, v{vDV}, v{vAV}
    v_lshlrev_b32 v{t1}, 6, v{t1}
    v_sub_u32 v{t1}, {ONES + 224}, v{t1}
    v_and_b32 v{t2}, 19, v0
    v_cmp_eq_u32 vcc, 19, v{t2}
    v_mov_b32 v{t3}, 0
    v_mov_b32 v{vIDX}, 0xdddddddd
    v_cndmask_b32 v{vAV}, v{vAV}, v{t1}, vcc
    v_cndmask_b32 v{vDV}, v{vDV}, v{t3}, vcc""")
    a(f"""v_mov_b32 v{D[0]}, 0x3f80
    v_mov_b32 v{D[0]+1}, 0
    v_mov_b32 v{D[0]+2}, 0x3f80
    v_mov_b32 v{D[0]+3}, 0
    v_lshlrev_b32 v{t0}, 4, v0
    v_add_u32 v{t0}, {ONES}, v{t0}
    ds_write_b128 v{t0}, {vr(D[0], 4)}
    ds_write_b128 v{t0}, {vr(D[0], 4)} offset:8192""")
    a(f"""v_bfe_u32 v{t0}, v0, 2, 1
    v_bfe_u32 v{t1}, v0, 5, 1
    v_cmp_eq_u32 vcc, v{t0}, v{t1}
    v_and_b32 v{t0}, 1, v0
    v_lshlrev_b32 v{t0}, 4, v{t0}
    v_mov_b32 v{t1}, 0x3f80
    v_lshlrev_b32 v{t1}, v{t0}, v{t1}
    v_cndmask_b32 v{t1}, 0, v{t1}, vcc
    v_bfe_u32 v{t0}, v0, 1, 1
    v_bfe_u32 v{t2}, v0, 3, 2
    v_lshl_add_u32 v{t0}, v{t2}, 1, v{t0}""")
    for p in range(8):
        a(f"v_cmp_eq_u32 vcc, {p}, v{t0}")
        a(f"v_mov_b32 v{O[0] + 2 * p}, 0")
        a(f"v_mov_b32 v{O[0] + 2 * p + 1}, 0")
        a(f"v_cndmask_b32 v{A1 + p}, 0, v{t1}, vcc")
    for i in range(16):
        a(f"v_mov_b32 v{O[1] + i}, 0")
    for i in range(8):
        a(f"v_mov_b32 v{S[1] + 8 + i}, 0")
    for i in range(4):
        a(f"v_mov_b32 v{V2[1] + i}, 0")
    a(f"""v_mov_b32 v{R+14}, 0x3f80
    v_mov_b32 v{R+15}, 0
    v_mov_b32 v{RQ+14}, 0
    v_mov_b32 v{RQ+15}, 0
    s_waitcnt lgkmcnt(0)
    s_bitcmp1_b32 s{sH}, 0
    s_cselect_b32 s{sA}, 0, 16
    s_lshl_b32 s{sT}, s{sT}, s{sA}
    s_and_b32 s{sT}, s{sT}, 0xffff0000
    s_and_b32 s{sA}, s{sT}, 0x7fffffff
    s_cmp_gt_u32 s{sA}, {hex(T_LIMIT)}
    s_cbranch_scc1 L_slow
    v_mov_b32 v{t4}, {hex(LOG2E)}
    v_mul_f32 v{t4}, s{sT}, v{t4}""")
    stamp(a, opts, 1)
    a("s_waitcnt vmcnt(8)")
    stamp(a, opts, 2)
    normalise(a, R)
    write_k(a)
    a("s_waitcnt vmcnt(4)")
    normalise(a, RQ, scale=t4)
    a(f"v_cvt_pk_bf16_f32 v{RQ+14}, -abs(v{t4}), 0")
    a(f"v_xor_b32 v{vKW}, 0x8000, v{vKW}")
    a("s_nop 0")
    for f in range(2):
        for i in range(4):
            a(f"v_permlane32_swap_b32 v{RQ + 8 * f + i}, v{RQ + 8 * f + 4 + i}")
    a(f"""s_mov_b32 s{sOFF}, {CHB}
    s_add_u32 s{sDM}, s{sM0}, {VB[1] - VB[0]}
    s_xor_b32 s{sDM}, s{sDM}, s{sM0}
    s_xor_b32 s{sM0}, s{sM0}, s{sDM}
    s_mov_b32 s{sI}, 0
    s_waitcnt vmcnt(0) lgkmcnt(0)""")
    stamp(a, opts, 3)
    a("s_barrier")
    a(rdK(0, 0)); a(rdK(1, 0))
    a(rdV(0, 0, 0)); a(rdV(0, 1, 0)); a(rdV(1, 0, 0)); a(rdV(1, 1, 0))
    a(rdK(0, 1)); a(rdK(1, 1)); a(rdV(0, 0, 1))
    load_rows(a, R, vKG, sK, f"s{sOFF}")
    dma_v(a, f"s{sOFF}")
    a("s_waitcnt lgkmcnt(3)")
    a(qk(0, 0, 0)); a(qk(0, 1, 0))
    a("s_nop 11")
    stamp(a, opts, 4)


def main_loop(a, opts):
    lump_at = opts.get("lump", 3)
    prio = opts.get("prio", 1)

    def wait2(a):
        a("s_waitcnt lgkmcnt(2)")

    def sync(a):
        a("s_waitcnt vmcnt(0) lgkmcnt(0)")
        a("s_barrier")
        if prio:
            a("s_setprio 3")
        a(f"v_xor_b32 v{vAK}, 0x8000, v{vAK}")
        a(f"v_xor_b32 v{vAV}, v{vDV}, v{vAV}")

    a.raw(".p2align 6")
    a.label("L_loop")
    for j in range(8):
        if prio and j in (0, 2, 4):
            a(f"s_setprio {2 - j // 2}")
        half(a, 0, j)
        half(a, 1, j, pre=sync if j == 6 else wait2)
        if j == 6:
            a(f"""s_add_u32 s{sOFF}, s{sOFF}, {CHB}
            s_xor_b32 s{sM0}, s{sM0}, s{sDM}
            s_cmp_ge_u32 s{sI}, 6
            s_cbranch_scc1 L_noload""")
            load_rows(a, R, vKG, sK, f"s{sOFF}")
            dma_v(a, f"s{sOFF}")
            a.label("L_noload")
        if j == lump_at:
            a(f"s_cmp_eq_u32 s{sI}, 7")
            a("s_cbranch_scc1 L_nolump")
            a("s_waitcnt vmcnt(4)")
            normalise(a, R)
            write_k(a)
            a(f"v_xor_b32 v{vKW}, 0x8000, v{vKW}")
            a.label("L_nolump")
    a(f"s_add_u32 s{sI}, s{sI}, 1")
    a(f"s_cmp_lt_u32 s{sI}, 8")
    a("s_cbranch_scc1 L_loop")
    a("s_nop 0")
    a(pv(1, 1, 7))


def epilogue(a, opts):
    a.label("L_epi")
    stamp(a, opts, 5)
    t0, t1, t2 = vT[0:3]
    a(f"""s_lshl_b32 s{sA}, s{sW}, 12
    v_lshlrev_b32 v{t0}, 4, v{vL}
    v_add_u32 v{t0}, s{sA}, v{t0}
    v_xor_b32 v{t1}, 0x4000, v{t0}
    v_and_b32 v{t2}, 31, v0
    v_mul_u32_u24 v{t2}, 56, v{t2}
    v_bfe_u32 v{vT[3]}, v0, 5, 1
    v_lshl_add_u32 v{t2}, v{vT[3]}, 3, v{t2}
    s_and_b32 s{sA}, s{sW}, 3
    s_lshl_b32 s{sA}, s{sA}, 1
    s_add_u32 s{sA}, s{sA}, s{sKS}
    s_mul_i32 s{sA}, s{sA}, {32 * 56}
    s_waitcnt lgkmcnt(0)
    s_cmp_eq_u32 s{sKS}, 0
    s_cbranch_scc1 L_epi0""")
    for x in (1, 0):
        if x == 0:
            a.label("L_epi0")
        keep, send = O[x], O[1 - x]
        if x == 0:
            a("s_nop 3")
        for p in range(4):
            a(f"ds_write_b128 v{t0}, {vr(send + 4 * p, 4)} offset:{1024 * p}")
        a("s_waitcnt lgkmcnt(0)")
        a("s_barrier")
        for p in range(4):
            a(f"ds_read_b128 {vr(S[0] + 4 * p, 4)}, v{t1} offset:{1024 * p}")
        for p in (3, 0, 1, 2):
            if p == 3:
                a("s_waitcnt lgkmcnt(0)")
            for i in range(4):
                a(f"v_add_f32 v{S[0] + 4 * p + i}, v{S[0] + 4 * p + i}, v{keep + 4 * p + i}")
        if x == 1:
            a("s_branch L_epi1")
    a.label("L_epi1")
    l0, l1 = vT[3], vT[4]
    a(f"""v_mov_b32 v{l0}, v{S[0] + 12}
    v_mov_b32 v{l1}, v{S[0] + 12}
    s_nop 1
    v_permlane32_swap_b32 v{l0}, v{l1}
    s_nop 1
    v_rcp_f32 v{l1}, v{l1}
    s_nop 0""")
    for g in range(4):
        for i in range(4):
            a(f"v_mul_f32 v{S[0] + 4 * g + i}, v{l1}, v{S[0] + 4 * g + i}")
        a(f"v_cvt_pk_bf16_f32 v{S[1] + 2 * g}, v{S[0] + 4 * g}, v{S[0] + 4 * g + 1}")
        a(f"v_cvt_pk_bf16_f32 v{S[1] + 2 * g + 1}, v{S[0] + 4 * g + 2}, v{S[0] + 4 * g + 3}")
        if g == 3:
            a("s_mov_b32 exec_hi, 0")
        a(f"buffer_store_dwordx2 {vr(S[1] + 2 * g, 2)}, v{t2}, s[{sO}:{sO+3}], s{sA} offen offset:{16 * g}")
    if opts.get("stamps"):
        a("s_mov_b64 exec, -1")
        a("s_waitcnt vmcnt(0)")
        stamp(a, opts, 6)
        a(f"""s_memrealtime s[60:61]
        s_load_dwordx2 s[4:5], s[0:1], 48
        s_waitcnt lgkmcnt(0)
        s_mov_b32 s6, 0x1000000
        s_mov_b32 s7, 0x20000
        s_lshl_b32 s8, s2, 3
        s_add_u32 s8, s8, s{sW}
        s_lshl_b32 s8, s8, 6
        v_mov_b32 v0, 0""")
        for n in range(7):
            a(f"v_mov_b32 v1, s{sTS + 2 * n}")
            a(f"buffer_store_dword v1, v0, s[4:7], s8 offen offset:{4 * n}")
        a("v_mov_b32 v1, s60")
        a("buffer_store_dword v1, v0, s[4:7], s8 offen offset:28")
    a.label("L_end")
    a("s_endpgm")


def slow_path(a):
    sP, sJ = 43, 60
    x0, x1 = vT[2], vT[3]
    a.label("L_slow")
    a("s_waitcnt vmcnt(0)")
    normalise(a, RQ)
    a("s_nop 1")
    for f in range(2):
        for i in range(4):
            a(f"v_permlane32_swap_b32 v{RQ + 8 * f + i}, v{RQ + 8 * f + 4 + i}")
    a(f"""v_mov_b32 v{MX[0]}, 0xff800000
    v_mov_b32 v{MX[1]}, 0xff800000
    s_mov_b32 s{sP}, 0""")
    a.label("L_slow_pass")
    a(f"s_mov_b32 s{sOFF}, 0")
    a.label("L_slow_chunk")
    a("s_waitcnt vmcnt(0) lgkmcnt(0)")
    a("s_barrier")
    load_rows(a, R, vKG, sK, f"s{sOFF}")
    dma_v(a, f"s{sOFF}")
    a("s_waitcnt vmcnt(0)")
    normalise(a, R)
    write_k(a)
    a("s_waitcnt lgkmcnt(0)")
    a("s_barrier")
    for j in range(8):
        a(f"ds_read_b128 {vr(KF[0], 4)}, v{vAK} offset:{j * 2048}")
        a(f"ds_read_b128 {vr(KF[0] + 4, 4)}, v{vAK} offset:{j * 2048 + 1024}")
        for which in range(2):
            for part in range(2):
                base = (V1, V2)[which][0] + 2 * part
                a(f"ds_read_b64_tr_b16 {vr(base, 2)}, v{vAV} offset:{j * 1792 + 896 * which + 224 * part}")
        a("s_waitcnt lgkmcnt(0)")
        a("s_call_b64 s[64:65], L_slow_tile")
    a(f"""s_add_u32 s{sOFF}, s{sOFF}, {CHB}
    s_cmp_lt_u32 s{sOFF}, {HEADB}
    s_cbranch_scc1 L_slow_chunk
    s_cmp_eq_u32 s{sP}, 1
    s_cbranch_scc1 L_slow_done""")
    for x in range(2):
        a(f"""v_mov_b32 v{x0}, v{MX[x]}
        s_nop 1
        v_permlane32_swap_b32 v{x0}, v{MX[x]}
        s_nop 1
        v_max_f32 v{MX[x]}, v{x0}, v{MX[x]}""")
    a(f"""s_barrier
    v_lshlrev_b32 v{x0}, 3, v0
    ds_write_b64 v{x0}, {vr(MX[0], 2)}
    s_waitcnt lgkmcnt(0)
    s_barrier
    v_xor_b32 v{x0}, 2048, v{x0}
    ds_read_b64 {vr(S[0], 2)}, v{x0}
    s_waitcnt lgkmcnt(0)
    v_max_f32 v{MX[0]}, v{MX[0]}, v{S[0]}
    v_max_f32 v{MX[1]}, v{MX[1]}, v{S[0] + 1}
    s_mov_b32 s{sP}, 1
    s_branch L_slow_pass""")
    a.label("L_slow_done")
    a("s_barrier")
    a("s_nop 7")
    a("s_branch L_epi")
    a.label("L_slow_tile")
    for x in range(2):
        a(qk(x, 0, 0)); a(qk(x, 1, 0))
    a("s_nop 15")
    for x in range(2):
        for i in range(16):
            a(f"v_mul_f32 v{S[x] + i}, s{sT}, v{S[x] + i}")
    a(f"s_cmp_eq_u32 s{sP}, 1")
    a("s_cbranch_scc1 L_slow_exp")
    for x in range(2):
        for i in range(16):
            a(f"v_max_f32 v{MX[x]}, v{MX[x]}, v{S[x] + i}")
    a("s_setpc_b64 s[64:65]")
    a.label("L_slow_exp")
    for x in range(2):
        for i in range(16):
            a(f"v_sub_f32 v{S[x] + i}, v{S[x] + i}, v{MX[x]}")
            a(f"v_mul_f32 v{S[x] + i}, {hex(LOG2E)}, v{S[x] + i}")
            a(f"v_exp_f32 v{S[x] + i}, v{S[x] + i}")
    a("s_nop 1")
    for x in range(2):
        a(pv(x, 0, 0)); a(pv(x, 1, 0))
    a("s_setpc_b64 s[64:65]")


def build(opts):
    a = Asm()
    name = "standalone__qk_norm__prompt_kernel"
    a.raw(HEADER + f"; @launch grid=(256,1,1) block=(512,1,1) lds={LDS_BYTES}")
    a.raw('.amdgcn_target "amdgcn-amd-amdhsa--gfx950"\n.text')
    a.raw(f".globl {name}\n.p2align 8\n.type {name},@function\n{name}:")
    prologue(a, opts)
    main_loop(a, opts)
    epilogue(a, opts)
    slow_path(a)
    a.raw(f""".section .rodata,"a"
.p2align 6
.amdhsa_kernel {name}
  .amdhsa_next_free_vgpr {NVGPR}
  .amdhsa_next_free_sgpr 72
  .amdhsa_accum_offset {NVGPR}
  .amdhsa_group_segment_fixed_size 0
  .amdhsa_kernarg_size 56
  .amdhsa_user_sgpr_count 2
  .amdhsa_user_sgpr_kernarg_segment_ptr 1
  .amdhsa_system_sgpr_workgroup_id_x 1
  .amdhsa_float_denorm_mode_32 3
.end_amdhsa_kernel""")
    return a.text()


if __name__ == "__main__":
    opts = {}
    out = "standalone__qk_norm__prompt.s"
    for arg in sys.argv[1:]:
        k, _, v = arg.partition("=")
        if k == "out":
            out = v
        else:
            opts[k] = int(v)
    open(out, "w").write(build(opts))
```

```python
import sys

HEADER = """; Kernarg layout for this problem (56 bytes, ptrs only, base s[0:1]):
;   offset  32: d_out     shape=(1, 16, 4096, 28) dtype=bfloat16 (2 bytes/elem)
"""

HEADB = 229376
CHB = 28672
KB = [0, 32768]
VB = [65536, 94720]
ONES = 123904
LDS_BYTES = ONES + 16384
T_LIMIT = 0x41800000
LOG2E = 0x3fb8aa3b
EPS = 0x358637bd

sQ, sK, sV, sO = 16, 20, 24, 28
sH, sC, sW, sT, sI, sOFF, sM0, sKS = 32, 33, 34, 35, 36, 37, 38, 39
sA, sB, sD, sDM = 40, 41, 42, 66
sTS = 44
vL, vKG, vVG, vKW, vAK, vAV, vDV, vIDX = 1, 2, 3, 4, 5, 6, 7, 8
vT = [9, 10, 11, 12, 13, 14, 15]
RQ = 16
QF = [[16, 24], [20, 28]]
O = [32, 48]
S = [64, 80]
KF = [96, 104]
V1 = [112, 116]
V2 = [120, 124]
R = 128
D = [144, 160]
A1, A2 = 176, 180
MX = [184, 185]
NVGPR = 188


class Asm:
    def __init__(self):
        self.l = []
    def __call__(self, s):
        for x in s.split("\n"):
            self.l.append("    " + x.strip())
    def label(self, n):
        self.l.append(n + ":")
    def raw(self, s):
        self.l.append(s)
    def text(self):
        return "\n".join(self.l) + "\n"


def vr(a, n):
    return f"v[{a}:{a + n - 1}]"


def load_rows(a, dst, vaddr, srd, soff):
    a(f"buffer_load_dwordx4 {vr(dst, 4)}, v{vaddr}, s[{srd}:{srd+3}], {soff} offen")
    a(f"buffer_load_dwordx4 {vr(dst + 4, 4)}, v{vaddr}, s[{srd}:{srd+3}], {soff} offen offset:16")
    a(f"buffer_load_dwordx4 {vr(dst + 8, 4)}, v{vaddr}, s[{srd}:{srd+3}], {soff} offen offset:32")
    a(f"buffer_load_dwordx2 {vr(dst + 12, 2)}, v{vaddr}, s[{srd}:{srd+3}], {soff} offen offset:48")


def dma_v(a, soff):
    a(f"s_mov_b32 m0, s{sM0}")
    a("s_nop 0")
    for p in range(4):
        a(f"buffer_load_dwordx4 v{vVG}, s[{sV}:{sV+3}], {soff} offen offset:{1024 * p} lds")


def normalise(a, r, scale=None):
    acc, nrm = vT[0], vT[1]
    mm = [f"v_mfma_f32_32x32x16_bf16 {vr(D[0], 16)}, {vr(A1, 4)}, {vr(r, 4)}, 0",
          f"v_mfma_f32_32x32x16_bf16 {vr(D[0], 16)}, {vr(A2, 4)}, {vr(r + 4, 4)}, {vr(D[0], 16)}",
          f"v_mfma_f32_32x32x16_bf16 {vr(D[1], 16)}, {vr(A1, 4)}, {vr(r + 8, 4)}, 0",
          f"v_mfma_f32_32x32x16_bf16 {vr(D[1], 16)}, {vr(A2, 4)}, {vr(r + 12, 4)}, {vr(D[1], 16)}"]
    dots = [f"v_dot2_f32_bf16 v{acc}, v{r + i}, v{r + i}, {'0' if i == 0 else 'v%d' % acc}" for i in range(14)]
    a(mm[0]); [a(x) for x in dots[0:4]]
    a(mm[1]); [a(x) for x in dots[4:8]]
    a(mm[2]); [a(x) for x in dots[8:12]]
    a(mm[3]); [a(x) for x in dots[12:14]]
    a("s_nop 2")
    a(f"v_sqrt_f32 v{nrm}, v{acc}")
    a("s_nop 0")
    a(f"v_add_f32 v{nrm}, {hex(EPS)}, v{nrm}")
    a(f"v_rcp_f32 v{nrm}, v{nrm}")
    a("s_nop 0")
    if scale is not None:
        a(f"v_mul_f32 v{nrm}, v{scale}, v{nrm}")
    for i in range(14):
        d = D[0] + 2 * i
        a(f"v_pk_mul_f32 {vr(d, 2)}, {vr(d, 2)}, {vr(nrm, 2)} op_sel_hi:[1,0]")
        if i >= 1:
            a(f"v_cvt_pk_bf16_f32 v{r + i - 1}, v{d - 2}, v{d - 1}")
    a(f"v_cvt_pk_bf16_f32 v{r + 13}, v{D[0] + 26}, v{D[0] + 27}")


def write_k(a):
    for p in range(4):
        a(f"ds_write_b128 v{vKW}, {vr(R + 4 * p, 4)} offset:{(p >> 1) * 1024 + (p & 1) * 512}")


def rdK(f, tile):
    b = tile & 1
    return f"ds_read_b128 {vr(KF[b] + 4 * f, 4)}, v{vAK} offset:{(tile % 8) * 2048 + 1024 * f}"


def rdV(which, part, tile):
    b = tile & 1
    base = (V1, V2)[which][b] + 2 * part
    return f"ds_read_b64_tr_b16 {vr(base, 2)}, v{vAV} offset:{(tile % 8) * 1792 + 896 * which + 224 * part}"


def qk(x, f, tile):
    k = KF[tile & 1] + 4 * f
    c = "0" if f == 0 else vr(S[x], 16)
    return f"v_mfma_f32_32x32x16_bf16 {vr(S[x], 16)}, {vr(k, 4)}, {vr(QF[x][f], 4)}, {c}"


def pv(x, which, tile):
    v = (V1, V2)[which][tile & 1]
    return f"v_smfmac_f32_32x32x32_bf16 {vr(O[x], 16)}, {vr(v, 4)}, {vr(S[x] + 8 * which, 8)}, v{vIDX}"


def half(a, x, j, pre=None):
    e = [f"v_exp_f32 v{S[x] + i}, v{S[x] + i}" for i in range(16)]
    if x == 0:
        m = [pv(1, 1, j - 1), qk(1, 0, j), qk(1, 1, j), pv(0, 0, j)]
        r = [rdV(0, 1, j + 1), rdV(1, 0, j + 1), rdV(1, 1, j + 1), None]
    else:
        m = [pv(0, 1, j), qk(0, 0, j + 1), qk(0, 1, j + 1), pv(1, 0, j)]
        r = [rdK(0, j + 2), rdK(1, j + 2), None, rdV(0, 0, j + 2)]
    cuts = [2, 6, 10, 14]
    pos = 0
    for g in range(4):
        for i in range(pos, cuts[g]):
            a(e[i])
        pos = cuts[g]
        if g == 0 and pre:
            pre(a)
        a(m[g])
        if r[g]:
            a(r[g])
    for i in range(pos, 16):
        a(e[i])


def stamp(a, opts, n):
    if opts.get("stamps"):
        a(f"s_memtime s[{sTS + 2 * n}:{sTS + 2 * n + 1}]")


def prologue(a, opts):
    a("s_cmp_ge_u32 s2, 256")
    a("s_cbranch_scc1 L_end")
    stamp(a, opts, 0)
    if opts.get("stamps"):
        a("s_memrealtime s[58:59]")
    a("s_load_dwordx8 s[4:11], s[0:1], 0")
    a("s_load_dwordx2 s[12:13], s[0:1], 32")
    a(f"""v_lshrrev_b32 v{vT[0]}, 6, v0
    v_and_b32 v{vL}, 63, v0
    s_and_b32 s{sA}, s2, 7
    v_readfirstlane_b32 s{sW}, v{vT[0]}
    s_lshl_b32 s{sA}, s{sA}, 1
    s_bfe_u32 s{sB}, s2, 0x10003
    s_add_u32 s{sH}, s{sA}, s{sB}
    s_lshr_b32 s{sC}, s2, 4
    v_mul_u32_u24 v{vKG}, 56, v0
    s_mul_i32 s{sA}, s{sH}, {HEADB}
    s_mul_i32 s{sB}, s{sC}, 14336
    s_add_u32 s{sB}, s{sB}, s{sA}
    v_and_b32 v{vT[1]}, 255, v0
    v_mul_u32_u24 v{vT[1]}, 56, v{vT[1]}
    s_lshr_b32 s{sKS}, s{sW}, 2
    s_mul_i32 s{sM0}, s{sW}, 3584
    v_lshlrev_b32 v{vVG}, 4, v{vL}
    v_add_u32 v{vVG}, s{sM0}, v{vVG}
    s_add_u32 s{sM0}, s{sM0}, {VB[0]}
    s_lshr_b32 s{sD}, s{sH}, 1
    s_lshl_b32 s{sD}, s{sD}, 2
    s_mov_b32 s{sK+2}, {HEADB}
    s_mov_b32 s{sK+3}, 0x20000
    s_mov_b32 s{sQ+2}, 14336
    s_mov_b32 s{sQ+3}, 0x20000
    s_mov_b32 s{sV+2}, {HEADB}
    s_mov_b32 s{sV+3}, 0x20000
    s_mov_b32 s{sO+2}, 14336
    s_mov_b32 s{sO+3}, 0x20000
    s_waitcnt lgkmcnt(0)
    s_add_u32 s{sK}, s6, s{sA}
    s_addc_u32 s{sK+1}, s7, 0
    s_add_u32 s{sQ}, s4, s{sB}
    s_addc_u32 s{sQ+1}, s5, 0
    s_load_dword s{sT}, s[10:11], s{sD}""")
    load_rows(a, R, vKG, sK, 0)
    load_rows(a, RQ, vT[1], sQ, 0)
    a(f"""s_add_u32 s{sV}, s8, s{sA}
    s_addc_u32 s{sV+1}, s9, 0
    s_add_u32 s{sO}, s12, s{sB}
    s_addc_u32 s{sO+1}, s13, 0""")
    dma_v(a, 0)
    t0, t1, t2, t3, t4 = vT[2:7]
    a(f"""v_lshrrev_b32 v{t0}, 5, v0
    v_lshlrev_b32 v{t0}, 11, v{t0}
    v_and_b32 v{t1}, 31, v0
    v_lshl_add_u32 v{vKW}, v{t1}, 4, v{t0}
    s_lshl_b32 s{sA}, s{sKS}, 14
    v_lshlrev_b32 v{vAK}, 4, v{vL}
    v_add_u32 v{vAK}, s{sA}, v{vAK}
    v_bfe_u32 v{t0}, v0, 2, 2
    v_bfe_u32 v{t1}, v0, 5, 1
    v_lshl_add_u32 v{t0}, v{t1}, 3, v{t0}
    v_mul_u32_u24 v{t0}, 56, v{t0}
    v_and_b32 v{t2}, 3, v0
    v_lshl_add_u32 v{t0}, v{t2}, 3, v{t0}
    v_bfe_u32 v{t3}, v0, 4, 1
    v_lshl_add_u32 v{t0}, v{t3}, 5, v{t0}
    s_mul_i32 s{sA}, s{sKS}, {8 * 1792}
    s_add_u32 s{sA}, s{sA}, {VB[0]}
    v_add_u32 v{vAV}, s{sA}, v{t0}
    v_add_u32 v{vDV}, {VB[1] - VB[0]}, v{vAV}
    v_xor_b32 v{vDV}, v{vDV}, v{vAV}
    v_lshlrev_b32 v{t1}, 6, v{t1}
    v_sub_u32 v{t1}, {ONES + 224}, v{t1}
    v_and_b32 v{t2}, 19, v0
    v_cmp_eq_u32 vcc, 19, v{t2}
    v_mov_b32 v{t3}, 0
    v_mov_b32 v{vIDX}, 0xdddddddd
    v_cndmask_b32 v{vAV}, v{vAV}, v{t1}, vcc
    v_cndmask_b32 v{vDV}, v{vDV}, v{t3}, vcc""")
    a(f"""v_mov_b32 v{D[0]}, 0x3f80
    v_mov_b32 v{D[0]+1}, 0
    v_mov_b32 v{D[0]+2}, 0x3f80
    v_mov_b32 v{D[0]+3}, 0
    v_lshlrev_b32 v{t0}, 4, v0
    v_add_u32 v{t0}, {ONES}, v{t0}
    ds_write_b128 v{t0}, {vr(D[0], 4)}
    ds_write_b128 v{t0}, {vr(D[0], 4)} offset:8192""")
    a(f"""v_bfe_u32 v{t0}, v0, 2, 1
    v_bfe_u32 v{t1}, v0, 5, 1
    v_cmp_eq_u32 vcc, v{t0}, v{t1}
    v_and_b32 v{t0}, 1, v0
    v_lshlrev_b32 v{t0}, 4, v{t0}
    v_mov_b32 v{t1}, 0x3f80
    v_lshlrev_b32 v{t1}, v{t0}, v{t1}
    v_cndmask_b32 v{t1}, 0, v{t1}, vcc
    v_bfe_u32 v{t0}, v0, 1, 1
    v_bfe_u32 v{t2}, v0, 3, 2
    v_lshl_add_u32 v{t0}, v{t2}, 1, v{t0}""")
    for p in range(8):
        a(f"v_cmp_eq_u32 vcc, {p}, v{t0}")
        a(f"v_mov_b32 v{O[0] + 2 * p}, 0")
        a(f"v_mov_b32 v{O[0] + 2 * p + 1}, 0")
        a(f"v_cndmask_b32 v{A1 + p}, 0, v{t1}, vcc")
    for i in range(16):
        a(f"v_mov_b32 v{O[1] + i}, 0")
    for i in range(8):
        a(f"v_mov_b32 v{S[1] + 8 + i}, 0")
    for i in range(4):
        a(f"v_mov_b32 v{V2[1] + i}, 0")
    a(f"""v_mov_b32 v{R+14}, 0x3f80
    v_mov_b32 v{R+15}, 0
    v_mov_b32 v{RQ+14}, 0
    v_mov_b32 v{RQ+15}, 0
    s_waitcnt lgkmcnt(0)
    s_bitcmp1_b32 s{sH}, 0
    s_cselect_b32 s{sA}, 0, 16
    s_lshl_b32 s{sT}, s{sT}, s{sA}
    s_and_b32 s{sT}, s{sT}, 0xffff0000
    s_and_b32 s{sA}, s{sT}, 0x7fffffff
    s_cmp_gt_u32 s{sA}, {hex(T_LIMIT)}
    s_cbranch_scc1 L_slow
    v_mov_b32 v{t4}, {hex(LOG2E)}
    v_mul_f32 v{t4}, s{sT}, v{t4}""")
    stamp(a, opts, 1)
    a("s_waitcnt vmcnt(8)")
    stamp(a, opts, 2)
    normalise(a, R)
    write_k(a)
    a("s_waitcnt vmcnt(4)")
    normalise(a, RQ, scale=t4)
    a(f"v_cvt_pk_bf16_f32 v{RQ+14}, -abs(v{t4}), 0")
    a(f"v_xor_b32 v{vKW}, 0x8000, v{vKW}")
    a("s_nop 0")
    for f in range(2):
        for i in range(4):
            a(f"v_permlane32_swap_b32 v{RQ + 8 * f + i}, v{RQ + 8 * f + 4 + i}")
    a(f"""s_mov_b32 s{sOFF}, {CHB}
    s_add_u32 s{sDM}, s{sM0}, {VB[1] - VB[0]}
    s_xor_b32 s{sDM}, s{sDM}, s{sM0}
    s_xor_b32 s{sM0}, s{sM0}, s{sDM}
    s_mov_b32 s{sI}, 0
    s_waitcnt vmcnt(0) lgkmcnt(0)""")
    stamp(a, opts, 3)
    a("s_barrier")
    a(rdK(0, 0)); a(rdK(1, 0))
    a(rdV(0, 0, 0)); a(rdV(0, 1, 0)); a(rdV(1, 0, 0)); a(rdV(1, 1, 0))
    a(rdK(0, 1)); a(rdK(1, 1)); a(rdV(0, 0, 1))
    load_rows(a, R, vKG, sK, f"s{sOFF}")
    dma_v(a, f"s{sOFF}")
    a("s_waitcnt lgkmcnt(3)")
    a(qk(0, 0, 0)); a(qk(0, 1, 0))
    a("s_nop 11")
    stamp(a, opts, 4)


def main_loop(a, opts):
    lump_at = opts.get("lump", 3)
    prio = opts.get("prio", 1)

    def wait2(a):
        a("s_waitcnt lgkmcnt(2)")

    def sync(a):
        a("s_waitcnt vmcnt(0) lgkmcnt(0)")
        a("s_barrier")
        if prio:
            a("s_setprio 3")
        a(f"v_xor_b32 v{vAK}, 0x8000, v{vAK}")
        a(f"v_xor_b32 v{vAV}, v{vDV}, v{vAV}")

    a.raw(".p2align 6")
    a.label("L_loop")
    for j in range(8):
        if prio and j in (0, 2, 4):
            a(f"s_setprio {2 - j // 2}")
        half(a, 0, j)
        half(a, 1, j, pre=sync if j == 6 else wait2)
        if j == 6:
            a(f"""s_add_u32 s{sOFF}, s{sOFF}, {CHB}
            s_xor_b32 s{sM0}, s{sM0}, s{sDM}
            s_cmp_ge_u32 s{sI}, 6
            s_cbranch_scc1 L_noload""")
            load_rows(a, R, vKG, sK, f"s{sOFF}")
            dma_v(a, f"s{sOFF}")
            a.label("L_noload")
        if j == lump_at:
            a(f"s_cmp_eq_u32 s{sI}, 7")
            a("s_cbranch_scc1 L_nolump")
            a("s_waitcnt vmcnt(4)")
            normalise(a, R)
            write_k(a)
            a(f"v_xor_b32 v{vKW}, 0x8000, v{vKW}")
            a.label("L_nolump")
    a(f"s_add_u32 s{sI}, s{sI}, 1")
    a(f"s_cmp_lt_u32 s{sI}, 8")
    a("s_cbranch_scc1 L_loop")
    a("s_nop 0")
    a(pv(1, 1, 7))


def epilogue(a, opts):
    a.label("L_epi")
    stamp(a, opts, 5)
    t0, t1, t2 = vT[0:3]
    a(f"""s_lshl_b32 s{sA}, s{sW}, 12
    v_lshlrev_b32 v{t0}, 4, v{vL}
    v_add_u32 v{t0}, s{sA}, v{t0}
    v_xor_b32 v{t1}, 0x4000, v{t0}
    v_and_b32 v{t2}, 31, v0
    v_mul_u32_u24 v{t2}, 56, v{t2}
    v_bfe_u32 v{vT[3]}, v0, 5, 1
    v_lshl_add_u32 v{t2}, v{vT[3]}, 3, v{t2}
    s_and_b32 s{sA}, s{sW}, 3
    s_lshl_b32 s{sA}, s{sA}, 1
    s_add_u32 s{sA}, s{sA}, s{sKS}
    s_mul_i32 s{sA}, s{sA}, {32 * 56}
    s_waitcnt lgkmcnt(0)
    s_cmp_eq_u32 s{sKS}, 0
    s_cbranch_scc1 L_epi0""")
    for x in (1, 0):
        if x == 0:
            a.label("L_epi0")
        keep, send = O[x], O[1 - x]
        if x == 0:
            a("s_nop 3")
        for p in range(4):
            a(f"ds_write_b128 v{t0}, {vr(send + 4 * p, 4)} offset:{1024 * p}")
        a("s_waitcnt lgkmcnt(0)")
        a("s_barrier")
        for p in range(4):
            a(f"ds_read_b128 {vr(S[0] + 4 * p, 4)}, v{t1} offset:{1024 * p}")
        for p in (3, 0, 1, 2):
            if p == 3:
                a("s_waitcnt lgkmcnt(0)")
            for i in range(4):
                a(f"v_add_f32 v{S[0] + 4 * p + i}, v{S[0] + 4 * p + i}, v{keep + 4 * p + i}")
        if x == 1:
            a("s_branch L_epi1")
    a.label("L_epi1")
    l0, l1 = vT[3], vT[4]
    a(f"""v_mov_b32 v{l0}, v{S[0] + 12}
    v_mov_b32 v{l1}, v{S[0] + 12}
    s_nop 1
    v_permlane32_swap_b32 v{l0}, v{l1}
    s_nop 1
    v_rcp_f32 v{l1}, v{l1}
    s_nop 0""")
    for g in range(4):
        for i in range(4):
            a(f"v_mul_f32 v{S[0] + 4 * g + i}, v{l1}, v{S[0] + 4 * g + i}")
        a(f"v_cvt_pk_bf16_f32 v{S[1] + 2 * g}, v{S[0] + 4 * g}, v{S[0] + 4 * g + 1}")
        a(f"v_cvt_pk_bf16_f32 v{S[1] + 2 * g + 1}, v{S[0] + 4 * g + 2}, v{S[0] + 4 * g + 3}")
        if g == 3:
            a("s_mov_b32 exec_hi, 0")
        a(f"buffer_store_dwordx2 {vr(S[1] + 2 * g, 2)}, v{t2}, s[{sO}:{sO+3}], s{sA} offen offset:{16 * g}")
    if opts.get("stamps"):
        a("s_mov_b64 exec, -1")
        a("s_waitcnt vmcnt(0)")
        stamp(a, opts, 6)
        a(f"""s_memrealtime s[60:61]
        s_load_dwordx2 s[4:5], s[0:1], {40 if opts["stamps"] == 2 else 48}
        s_waitcnt lgkmcnt(0)
        s_mov_b32 s6, {64 if opts["stamps"] == 2 else 0x1000000}
        s_mov_b32 s7, 0x20000
        s_lshl_b32 s8, s2, 3
        s_add_u32 s8, s8, s{sW}""")
        if opts["stamps"] == 2:
            a("""s_cmp_eq_u32 s8, 2047
            s_cselect_b32 s9, 1, 2
            s_cmp_eq_u32 s8, 0
            s_cselect_b32 s8, 0, s9""")
        a("""s_lshl_b32 s8, s8, 5
        v_mov_b32 v0, 0
        v_mov_b32 v1, s58
        buffer_store_dword v1, v0, s[4:7], s8 offen""")
        for n in range(1, 7):
            a(f"s_sub_u32 s9, s{sTS + 2 * n}, s{sTS}")
            a("v_mov_b32 v1, s9")
            a(f"buffer_store_dword v1, v0, s[4:7], s8 offen offset:{4 * n}")
        a("s_sub_u32 s9, s60, s58")
        a("v_mov_b32 v1, s9")
        a("buffer_store_dword v1, v0, s[4:7], s8 offen offset:28")
    a.label("L_end")
    a("s_endpgm")


def slow_path(a):
    sP, sJ = 43, 60
    x0, x1 = vT[2], vT[3]
    a.label("L_slow")
    a("s_waitcnt vmcnt(0)")
    normalise(a, RQ)
    a("s_nop 1")
    for f in range(2):
        for i in range(4):
            a(f"v_permlane32_swap_b32 v{RQ + 8 * f + i}, v{RQ + 8 * f + 4 + i}")
    a(f"""v_mov_b32 v{MX[0]}, 0xff800000
    v_mov_b32 v{MX[1]}, 0xff800000
    s_mov_b32 s{sP}, 0""")
    a.label("L_slow_pass")
    a(f"s_mov_b32 s{sOFF}, 0")
    a.label("L_slow_chunk")
    a("s_waitcnt vmcnt(0) lgkmcnt(0)")
    a("s_barrier")
    load_rows(a, R, vKG, sK, f"s{sOFF}")
    dma_v(a, f"s{sOFF}")
    a("s_waitcnt vmcnt(0)")
    normalise(a, R)
    write_k(a)
    a("s_waitcnt lgkmcnt(0)")
    a("s_barrier")
    for j in range(8):
        a(f"ds_read_b128 {vr(KF[0], 4)}, v{vAK} offset:{j * 2048}")
        a(f"ds_read_b128 {vr(KF[0] + 4, 4)}, v{vAK} offset:{j * 2048 + 1024}")
        for which in range(2):
            for part in range(2):
                base = (V1, V2)[which][0] + 2 * part
                a(f"ds_read_b64_tr_b16 {vr(base, 2)}, v{vAV} offset:{j * 1792 + 896 * which + 224 * part}")
        a("s_waitcnt lgkmcnt(0)")
        a("s_call_b64 s[64:65], L_slow_tile")
    a(f"""s_add_u32 s{sOFF}, s{sOFF}, {CHB}
    s_cmp_lt_u32 s{sOFF}, {HEADB}
    s_cbranch_scc1 L_slow_chunk
    s_cmp_eq_u32 s{sP}, 1
    s_cbranch_scc1 L_slow_done""")
    for x in range(2):
        a(f"""v_mov_b32 v{x0}, v{MX[x]}
        s_nop 1
        v_permlane32_swap_b32 v{x0}, v{MX[x]}
        s_nop 1
        v_max_f32 v{MX[x]}, v{x0}, v{MX[x]}""")
    a(f"""s_barrier
    v_lshlrev_b32 v{x0}, 3, v0
    ds_write_b64 v{x0}, {vr(MX[0], 2)}
    s_waitcnt lgkmcnt(0)
    s_barrier
    v_xor_b32 v{x0}, 2048, v{x0}
    ds_read_b64 {vr(S[0], 2)}, v{x0}
    s_waitcnt lgkmcnt(0)
    v_max_f32 v{MX[0]}, v{MX[0]}, v{S[0]}
    v_max_f32 v{MX[1]}, v{MX[1]}, v{S[0] + 1}
    s_mov_b32 s{sP}, 1
    s_branch L_slow_pass""")
    a.label("L_slow_done")
    a("s_barrier")
    a("s_nop 7")
    a("s_branch L_epi")
    a.label("L_slow_tile")
    for x in range(2):
        a(qk(x, 0, 0)); a(qk(x, 1, 0))
    a("s_nop 15")
    for x in range(2):
        for i in range(16):
            a(f"v_mul_f32 v{S[x] + i}, s{sT}, v{S[x] + i}")
    a(f"s_cmp_eq_u32 s{sP}, 1")
    a("s_cbranch_scc1 L_slow_exp")
    for x in range(2):
        for i in range(16):
            a(f"v_max_f32 v{MX[x]}, v{MX[x]}, v{S[x] + i}")
    a("s_setpc_b64 s[64:65]")
    a.label("L_slow_exp")
    for x in range(2):
        for i in range(16):
            a(f"v_sub_f32 v{S[x] + i}, v{S[x] + i}, v{MX[x]}")
            a(f"v_mul_f32 v{S[x] + i}, {hex(LOG2E)}, v{S[x] + i}")
            a(f"v_exp_f32 v{S[x] + i}, v{S[x] + i}")
    a("s_nop 1")
    for x in range(2):
        a(pv(x, 0, 0)); a(pv(x, 1, 0))
    a("s_setpc_b64 s[64:65]")


def build(opts):
    a = Asm()
    name = "standalone__qk_norm__prompt_kernel"
    a.raw(HEADER + f"; @launch grid=(256,1,1) block=(512,1,1) lds={LDS_BYTES}")
    a.raw('.amdgcn_target "amdgcn-amd-amdhsa--gfx950"\n.text')
    a.raw(f".globl {name}\n.p2align 8\n.type {name},@function\n{name}:")
    prologue(a, opts)
    main_loop(a, opts)
    epilogue(a, opts)
    slow_path(a)
    a.raw(f""".section .rodata,"a"
.p2align 6
.amdhsa_kernel {name}
  .amdhsa_next_free_vgpr {NVGPR}
  .amdhsa_next_free_sgpr 72
  .amdhsa_accum_offset {NVGPR}
  .amdhsa_group_segment_fixed_size 0
  .amdhsa_kernarg_size 56
  .amdhsa_user_sgpr_count 2
  .amdhsa_user_sgpr_kernarg_segment_ptr 1
  .amdhsa_system_sgpr_workgroup_id_x 1
  .amdhsa_float_denorm_mode_32 3
.end_amdhsa_kernel""")
    return a.text()


if __name__ == "__main__":
    opts = {}
    out = "standalone__qk_norm__prompt.s"
    for arg in sys.argv[1:]:
        k, _, v = arg.partition("=")
        if k == "out":
            out = v
        else:
            opts[k] = int(v)
    open(out, "w").write(build(opts))
```

```python
import sys

HEADER = """; Kernarg layout for this problem (56 bytes, ptrs only, base s[0:1]):
;   offset  32: d_out     shape=(1, 16, 4096, 28) dtype=bfloat16 (2 bytes/elem)
"""

HEADB = 229376
CHB = 28672
KB = [0, 32768]
VB = [65536, 94720]
ONES = 123904
LDS_BYTES = ONES + 16384
T_LIMIT = 0x41800000
LOG2E = 0x3fb8aa3b
EPS = 0x358637bd

sQ, sK, sV, sO = 16, 20, 24, 28
sH, sC, sW, sT, sI, sOFF, sM0, sKS = 32, 33, 34, 35, 36, 37, 38, 39
sA, sB, sD, sDM = 40, 41, 42, 66
sTS = 44
vL, vKG, vVG, vKW, vAK, vAV, vDV, vIDX = 1, 2, 3, 4, 5, 6, 7, 8
vT = [9, 10, 11, 12, 13, 14, 15]
RQ = 16
QF = [[16, 24], [20, 28]]
O = [32, 48]
S = [64, 80]
KF = [96, 104]
V1 = [112, 116]
V2 = [120, 124]
R = 128
D = [144, 160]
A1, A2 = 176, 180
MX = [184, 185]
NVGPR = 188


class Asm:
    def __init__(self):
        self.l = []
    def __call__(self, s):
        for x in s.split("\n"):
            self.l.append("    " + x.strip())
    def label(self, n):
        self.l.append(n + ":")
    def raw(self, s):
        self.l.append(s)
    def text(self):
        return "\n".join(self.l) + "\n"


def vr(a, n):
    return f"v[{a}:{a + n - 1}]"


def load_rows(a, dst, vaddr, srd, soff):
    a(f"buffer_load_dwordx4 {vr(dst, 4)}, v{vaddr}, s[{srd}:{srd+3}], {soff} offen")
    a(f"buffer_load_dwordx4 {vr(dst + 4, 4)}, v{vaddr}, s[{srd}:{srd+3}], {soff} offen offset:16")
    a(f"buffer_load_dwordx4 {vr(dst + 8, 4)}, v{vaddr}, s[{srd}:{srd+3}], {soff} offen offset:32")
    a(f"buffer_load_dwordx2 {vr(dst + 12, 2)}, v{vaddr}, s[{srd}:{srd+3}], {soff} offen offset:48")


def dma_v(a, soff):
    a(f"s_mov_b32 m0, s{sM0}")
    a("s_nop 0")
    for p in range(4):
        a(f"buffer_load_dwordx4 v{vVG}, s[{sV}:{sV+3}], {soff} offen offset:{1024 * p} lds")


def normalise(a, r, scale=None):
    acc, nrm = vT[0], vT[1]
    mm = [f"v_mfma_f32_32x32x16_bf16 {vr(D[0], 16)}, {vr(A1, 4)}, {vr(r, 4)}, 0",
          f"v_mfma_f32_32x32x16_bf16 {vr(D[0], 16)}, {vr(A2, 4)}, {vr(r + 4, 4)}, {vr(D[0], 16)}",
          f"v_mfma_f32_32x32x16_bf16 {vr(D[1], 16)}, {vr(A1, 4)}, {vr(r + 8, 4)}, 0",
          f"v_mfma_f32_32x32x16_bf16 {vr(D[1], 16)}, {vr(A2, 4)}, {vr(r + 12, 4)}, {vr(D[1], 16)}"]
    dots = [f"v_dot2_f32_bf16 v{acc}, v{r + i}, v{r + i}, {'0' if i == 0 else 'v%d' % acc}" for i in range(14)]
    a(mm[0]); [a(x) for x in dots[0:4]]
    a(mm[1]); [a(x) for x in dots[4:8]]
    a(mm[2]); [a(x) for x in dots[8:12]]
    a(mm[3]); [a(x) for x in dots[12:14]]
    a("s_nop 2")
    a(f"v_sqrt_f32 v{nrm}, v{acc}")
    a("s_nop 0")
    a(f"v_add_f32 v{nrm}, {hex(EPS)}, v{nrm}")
    a(f"v_rcp_f32 v{nrm}, v{nrm}")
    a("s_nop 0")
    if scale is not None:
        a(f"v_mul_f32 v{nrm}, v{scale}, v{nrm}")
    for i in range(14):
        d = D[0] + 2 * i
        a(f"v_pk_mul_f32 {vr(d, 2)}, {vr(d, 2)}, {vr(nrm, 2)} op_sel_hi:[1,0]")
        if i >= 1:
            a(f"v_cvt_pk_bf16_f32 v{r + i - 1}, v{d - 2}, v{d - 1}")
    a(f"v_cvt_pk_bf16_f32 v{r + 13}, v{D[0] + 26}, v{D[0] + 27}")


def write_k(a):
    for p in range(4):
        a(f"ds_write_b128 v{vKW}, {vr(R + 4 * p, 4)} offset:{(p >> 1) * 1024 + (p & 1) * 512}")


def rdK(f, tile):
    b = tile & 1
    return f"ds_read_b128 {vr(KF[b] + 4 * f, 4)}, v{vAK} offset:{(tile % 8) * 2048 + 1024 * f}"


def rdV(which, part, tile):
    b = tile & 1
    base = (V1, V2)[which][b] + 2 * part
    return f"ds_read_b64_tr_b16 {vr(base, 2)}, v{vAV} offset:{(tile % 8) * 1792 + 896 * which + 224 * part}"


def qk(x, f, tile):
    k = KF[tile & 1] + 4 * f
    c = "0" if f == 0 else vr(S[x], 16)
    return f"v_mfma_f32_32x32x16_bf16 {vr(S[x], 16)}, {vr(k, 4)}, {vr(QF[x][f], 4)}, {c}"


def pv(x, which, tile):
    v = (V1, V2)[which][tile & 1]
    return f"v_smfmac_f32_32x32x32_bf16 {vr(O[x], 16)}, {vr(v, 4)}, {vr(S[x] + 8 * which, 8)}, v{vIDX}"


def half(a, x, j, pre=None):
    e = [f"v_exp_f32 v{S[x] + i}, v{S[x] + i}" for i in range(16)]
    if x == 0:
        m = [pv(1, 1, j - 1), qk(1, 0, j), qk(1, 1, j), pv(0, 0, j)]
        r = [rdV(0, 1, j + 1), rdV(1, 0, j + 1), rdV(1, 1, j + 1), None]
    else:
        m = [pv(0, 1, j), qk(0, 0, j + 1), qk(0, 1, j + 1), pv(1, 0, j)]
        r = [rdK(0, j + 2), rdK(1, j + 2), None, rdV(0, 0, j + 2)]
    cuts = [2, 6, 10, 14]
    pos = 0
    for g in range(4):
        for i in range(pos, cuts[g]):
            a(e[i])
        pos = cuts[g]
        if g == 0 and pre:
            pre(a)
        a(m[g])
        if r[g]:
            a(r[g])
    for i in range(pos, 16):
        a(e[i])


def stamp(a, opts, n):
    if opts.get("stamps"):
        a(f"s_memtime s[{sTS + 2 * n}:{sTS + 2 * n + 1}]")


def prologue(a, opts):
    a("s_cmp_ge_u32 s2, 256")
    a("s_cbranch_scc1 L_end")
    stamp(a, opts, 0)
    if opts.get("stamps") or opts.get("hold"):
        a("s_memrealtime s[58:59]")
    a("s_load_dwordx8 s[4:11], s[0:1], 0")
    a("s_load_dwordx2 s[12:13], s[0:1], 32")
    a(f"""v_lshrrev_b32 v{vT[0]}, 6, v0
    v_and_b32 v{vL}, 63, v0
    s_and_b32 s{sA}, s2, 7
    v_readfirstlane_b32 s{sW}, v{vT[0]}
    s_lshl_b32 s{sA}, s{sA}, 1
    s_bfe_u32 s{sB}, s2, 0x10003
    s_add_u32 s{sH}, s{sA}, s{sB}
    s_lshr_b32 s{sC}, s2, 4
    v_mul_u32_u24 v{vKG}, 56, v0
    s_mul_i32 s{sA}, s{sH}, {HEADB}
    s_mul_i32 s{sB}, s{sC}, 14336
    s_add_u32 s{sB}, s{sB}, s{sA}
    v_and_b32 v{vT[1]}, 255, v0
    v_mul_u32_u24 v{vT[1]}, 56, v{vT[1]}
    s_lshr_b32 s{sKS}, s{sW}, 2
    s_mul_i32 s{sM0}, s{sW}, 3584
    v_lshlrev_b32 v{vVG}, 4, v{vL}
    v_add_u32 v{vVG}, s{sM0}, v{vVG}
    s_add_u32 s{sM0}, s{sM0}, {VB[0]}
    s_lshr_b32 s{sD}, s{sH}, 1
    s_lshl_b32 s{sD}, s{sD}, 2
    s_mov_b32 s{sK+2}, {HEADB}
    s_mov_b32 s{sK+3}, 0x20000
    s_mov_b32 s{sQ+2}, 14336
    s_mov_b32 s{sQ+3}, 0x20000
    s_mov_b32 s{sV+2}, {HEADB}
    s_mov_b32 s{sV+3}, 0x20000
    s_mov_b32 s{sO+2}, 14336
    s_mov_b32 s{sO+3}, 0x20000
    s_waitcnt lgkmcnt(0)
    s_add_u32 s{sK}, s6, s{sA}
    s_addc_u32 s{sK+1}, s7, 0
    s_add_u32 s{sQ}, s4, s{sB}
    s_addc_u32 s{sQ+1}, s5, 0
    s_load_dword s{sT}, s[10:11], s{sD}""")
    load_rows(a, R, vKG, sK, 0)
    load_rows(a, RQ, vT[1], sQ, 0)
    a(f"""s_add_u32 s{sV}, s8, s{sA}
    s_addc_u32 s{sV+1}, s9, 0
    s_add_u32 s{sO}, s12, s{sB}
    s_addc_u32 s{sO+1}, s13, 0""")
    dma_v(a, 0)
    t0, t1, t2, t3, t4 = vT[2:7]
    a(f"""v_lshrrev_b32 v{t0}, 5, v0
    v_lshlrev_b32 v{t0}, 11, v{t0}
    v_and_b32 v{t1}, 31, v0
    v_lshl_add_u32 v{vKW}, v{t1}, 4, v{t0}
    s_lshl_b32 s{sA}, s{sKS}, 14
    v_lshlrev_b32 v{vAK}, 4, v{vL}
    v_add_u32 v{vAK}, s{sA}, v{vAK}
    v_bfe_u32 v{t0}, v0, 2, 2
    v_bfe_u32 v{t1}, v0, 5, 1
    v_lshl_add_u32 v{t0}, v{t1}, 3, v{t0}
    v_mul_u32_u24 v{t0}, 56, v{t0}
    v_and_b32 v{t2}, 3, v0
    v_lshl_add_u32 v{t0}, v{t2}, 3, v{t0}
    v_bfe_u32 v{t3}, v0, 4, 1
    v_lshl_add_u32 v{t0}, v{t3}, 5, v{t0}
    s_mul_i32 s{sA}, s{sKS}, {8 * 1792}
    s_add_u32 s{sA}, s{sA}, {VB[0]}
    v_add_u32 v{vAV}, s{sA}, v{t0}
    v_add_u32 v{vDV}, {VB[1] - VB[0]}, v{vAV}
    v_xor_b32 v{vDV}, v{vDV}, v{vAV}
    v_lshlrev_b32 v{t1}, 6, v{t1}
    v_sub_u32 v{t1}, {ONES + 224}, v{t1}
    v_and_b32 v{t2}, 19, v0
    v_cmp_eq_u32 vcc, 19, v{t2}
    v_mov_b32 v{t3}, 0
    v_mov_b32 v{vIDX}, 0xdddddddd
    v_cndmask_b32 v{vAV}, v{vAV}, v{t1}, vcc
    v_cndmask_b32 v{vDV}, v{vDV}, v{t3}, vcc""")
    a(f"""v_mov_b32 v{D[0]}, 0x3f80
    v_mov_b32 v{D[0]+1}, 0
    v_mov_b32 v{D[0]+2}, 0x3f80
    v_mov_b32 v{D[0]+3}, 0
    v_lshlrev_b32 v{t0}, 4, v0
    v_add_u32 v{t0}, {ONES}, v{t0}
    ds_write_b128 v{t0}, {vr(D[0], 4)}
    ds_write_b128 v{t0}, {vr(D[0], 4)} offset:8192""")
    a(f"""v_bfe_u32 v{t0}, v0, 2, 1
    v_bfe_u32 v{t1}, v0, 5, 1
    v_cmp_eq_u32 vcc, v{t0}, v{t1}
    v_and_b32 v{t0}, 1, v0
    v_lshlrev_b32 v{t0}, 4, v{t0}
    v_mov_b32 v{t1}, 0x3f80
    v_lshlrev_b32 v{t1}, v{t0}, v{t1}
    v_cndmask_b32 v{t1}, 0, v{t1}, vcc
    v_bfe_u32 v{t0}, v0, 1, 1
    v_bfe_u32 v{t2}, v0, 3, 2
    v_lshl_add_u32 v{t0}, v{t2}, 1, v{t0}""")
    for p in range(8):
        a(f"v_cmp_eq_u32 vcc, {p}, v{t0}")
        a(f"v_mov_b32 v{O[0] + 2 * p}, 0")
        a(f"v_mov_b32 v{O[0] + 2 * p + 1}, 0")
        a(f"v_cndmask_b32 v{A1 + p}, 0, v{t1}, vcc")
    for i in range(16):
        a(f"v_mov_b32 v{O[1] + i}, 0")
    for i in range(8):
        a(f"v_mov_b32 v{S[1] + 8 + i}, 0")
    for i in range(4):
        a(f"v_mov_b32 v{V2[1] + i}, 0")
    a(f"""v_mov_b32 v{R+14}, 0x3f80
    v_mov_b32 v{R+15}, 0
    v_mov_b32 v{RQ+14}, 0
    v_mov_b32 v{RQ+15}, 0
    s_waitcnt lgkmcnt(0)
    s_bitcmp1_b32 s{sH}, 0
    s_cselect_b32 s{sA}, 0, 16
    s_lshl_b32 s{sT}, s{sT}, s{sA}
    s_and_b32 s{sT}, s{sT}, 0xffff0000
    s_and_b32 s{sA}, s{sT}, 0x7fffffff
    s_cmp_gt_u32 s{sA}, {hex(T_LIMIT)}
    s_cbranch_scc1 L_slow
    v_mov_b32 v{t4}, {hex(LOG2E)}
    v_mul_f32 v{t4}, s{sT}, v{t4}""")
    stamp(a, opts, 1)
    a("s_waitcnt vmcnt(8)")
    stamp(a, opts, 2)
    normalise(a, R)
    write_k(a)
    a("s_waitcnt vmcnt(4)")
    normalise(a, RQ, scale=t4)
    a(f"v_cvt_pk_bf16_f32 v{RQ+14}, -abs(v{t4}), 0")
    a(f"v_xor_b32 v{vKW}, 0x8000, v{vKW}")
    a("s_nop 0")
    for f in range(2):
        for i in range(4):
            a(f"v_permlane32_swap_b32 v{RQ + 8 * f + i}, v{RQ + 8 * f + 4 + i}")
    a(f"""s_mov_b32 s{sOFF}, {CHB}
    s_add_u32 s{sDM}, s{sM0}, {VB[1] - VB[0]}
    s_xor_b32 s{sDM}, s{sDM}, s{sM0}
    s_xor_b32 s{sM0}, s{sM0}, s{sDM}
    s_mov_b32 s{sI}, 0
    s_waitcnt vmcnt(0) lgkmcnt(0)""")
    stamp(a, opts, 3)
    a("s_barrier")
    a(rdK(0, 0)); a(rdK(1, 0))
    a(rdV(0, 0, 0)); a(rdV(0, 1, 0)); a(rdV(1, 0, 0)); a(rdV(1, 1, 0))
    a(rdK(0, 1)); a(rdK(1, 1)); a(rdV(0, 0, 1))
    load_rows(a, R, vKG, sK, f"s{sOFF}")
    dma_v(a, f"s{sOFF}")
    a("s_waitcnt lgkmcnt(3)")
    a(qk(0, 0, 0)); a(qk(0, 1, 0))
    a("s_nop 11")
    stamp(a, opts, 4)


def main_loop(a, opts):
    lump_at = opts.get("lump", 3)
    prio = opts.get("prio", 1)

    def wait2(a):
        a("s_waitcnt lgkmcnt(2)")

    def sync(a):
        a("s_waitcnt vmcnt(0) lgkmcnt(0)")
        a("s_barrier")
        if prio:
            a("s_setprio 3")
        a(f"v_xor_b32 v{vAK}, 0x8000, v{vAK}")
        a(f"v_xor_b32 v{vAV}, v{vDV}, v{vAV}")

    a.raw(".p2align 6")
    a.label("L_loop")
    for j in range(8):
        if prio and j in (0, 2, 4):
            a(f"s_setprio {2 - j // 2}")
        half(a, 0, j)
        half(a, 1, j, pre=sync if j == 6 else wait2)
        if j == 6:
            a(f"""s_add_u32 s{sOFF}, s{sOFF}, {CHB}
            s_xor_b32 s{sM0}, s{sM0}, s{sDM}
            s_cmp_ge_u32 s{sI}, 6
            s_cbranch_scc1 L_noload""")
            load_rows(a, R, vKG, sK, f"s{sOFF}")
            dma_v(a, f"s{sOFF}")
            a.label("L_noload")
        if j == lump_at:
            a(f"s_cmp_eq_u32 s{sI}, 7")
            a("s_cbranch_scc1 L_nolump")
            a("s_waitcnt vmcnt(4)")
            normalise(a, R)
            write_k(a)
            a(f"v_xor_b32 v{vKW}, 0x8000, v{vKW}")
            a.label("L_nolump")
    a(f"s_add_u32 s{sI}, s{sI}, 1")
    a(f"s_cmp_lt_u32 s{sI}, 8")
    a("s_cbranch_scc1 L_loop")
    a("s_nop 0")
    a(pv(1, 1, 7))


def epilogue(a, opts):
    a.label("L_epi")
    stamp(a, opts, 5)
    t0, t1, t2 = vT[0:3]
    a(f"""s_lshl_b32 s{sA}, s{sW}, 12
    v_lshlrev_b32 v{t0}, 4, v{vL}
    v_add_u32 v{t0}, s{sA}, v{t0}
    v_xor_b32 v{t1}, 0x4000, v{t0}
    v_and_b32 v{t2}, 31, v0
    v_mul_u32_u24 v{t2}, 56, v{t2}
    v_bfe_u32 v{vT[3]}, v0, 5, 1
    v_lshl_add_u32 v{t2}, v{vT[3]}, 3, v{t2}
    s_and_b32 s{sA}, s{sW}, 3
    s_lshl_b32 s{sA}, s{sA}, 1
    s_add_u32 s{sA}, s{sA}, s{sKS}
    s_mul_i32 s{sA}, s{sA}, {32 * 56}
    s_waitcnt lgkmcnt(0)
    s_cmp_eq_u32 s{sKS}, 0
    s_cbranch_scc1 L_epi0""")
    for x in (1, 0):
        if x == 0:
            a.label("L_epi0")
        keep, send = O[x], O[1 - x]
        if x == 0:
            a("s_nop 3")
        for p in range(4):
            a(f"ds_write_b128 v{t0}, {vr(send + 4 * p, 4)} offset:{1024 * p}")
        a("s_waitcnt lgkmcnt(0)")
        a("s_barrier")
        for p in range(4):
            a(f"ds_read_b128 {vr(S[0] + 4 * p, 4)}, v{t1} offset:{1024 * p}")
        for p in (3, 0, 1, 2):
            if p == 3:
                a("s_waitcnt lgkmcnt(0)")
            for i in range(4):
                a(f"v_add_f32 v{S[0] + 4 * p + i}, v{S[0] + 4 * p + i}, v{keep + 4 * p + i}")
        if x == 1:
            a("s_branch L_epi1")
    a.label("L_epi1")
    l0, l1 = vT[3], vT[4]
    a(f"""v_mov_b32 v{l0}, v{S[0] + 12}
    v_mov_b32 v{l1}, v{S[0] + 12}
    s_nop 1
    v_permlane32_swap_b32 v{l0}, v{l1}
    s_nop 1
    v_rcp_f32 v{l1}, v{l1}
    s_nop 0""")
    for g in range(4):
        for i in range(4):
            a(f"v_mul_f32 v{S[0] + 4 * g + i}, v{l1}, v{S[0] + 4 * g + i}")
        a(f"v_cvt_pk_bf16_f32 v{S[1] + 2 * g}, v{S[0] + 4 * g}, v{S[0] + 4 * g + 1}")
        a(f"v_cvt_pk_bf16_f32 v{S[1] + 2 * g + 1}, v{S[0] + 4 * g + 2}, v{S[0] + 4 * g + 3}")
        if g == 3:
            a("s_mov_b32 exec_hi, 0")
        a(f"buffer_store_dwordx2 {vr(S[1] + 2 * g, 2)}, v{t2}, s[{sO}:{sO+3}], s{sA} offen offset:{16 * g}")
    if opts.get("stamps"):
        a("s_mov_b64 exec, -1")
        a("s_waitcnt vmcnt(0)")
        stamp(a, opts, 6)
        a(f"""s_memrealtime s[60:61]
        s_load_dwordx2 s[4:5], s[0:1], {40 if opts["stamps"] == 2 else 48}
        s_waitcnt lgkmcnt(0)
        s_mov_b32 s6, {64 if opts["stamps"] == 2 else 0x1000000}
        s_mov_b32 s7, 0x20000
        s_lshl_b32 s8, s2, 3
        s_add_u32 s8, s8, s{sW}""")
        if opts["stamps"] == 2:
            a("""s_cmp_eq_u32 s8, 2047
            s_cselect_b32 s9, 1, 2
            s_cmp_eq_u32 s8, 0
            s_cselect_b32 s8, 0, s9""")
        a("""s_lshl_b32 s8, s8, 5
        v_mov_b32 v0, 0
        v_mov_b32 v1, s58
        buffer_store_dword v1, v0, s[4:7], s8 offen""")
        for n in range(1, 7):
            a(f"s_sub_u32 s9, s{sTS + 2 * n}, s{sTS}")
            a("v_mov_b32 v1, s9")
            a(f"buffer_store_dword v1, v0, s[4:7], s8 offen offset:{4 * n}")
        a("s_sub_u32 s9, s60, s58")
        a("v_mov_b32 v1, s9")
        a("buffer_store_dword v1, v0, s[4:7], s8 offen offset:28")
    if opts.get("hold"):
        a.label("L_hold")
        a(f"""s_sleep 4
        s_memrealtime s[60:61]
        s_waitcnt lgkmcnt(0)
        s_sub_u32 s9, s60, s58
        s_cmp_lt_u32 s9, {opts["hold"]}
        s_cbranch_scc1 L_hold""")
    a.label("L_end")
    a("s_endpgm")


def slow_path(a):
    sP, sJ = 43, 60
    x0, x1 = vT[2], vT[3]
    a.label("L_slow")
    a("s_waitcnt vmcnt(0)")
    normalise(a, RQ)
    a("s_nop 1")
    for f in range(2):
        for i in range(4):
            a(f"v_permlane32_swap_b32 v{RQ + 8 * f + i}, v{RQ + 8 * f + 4 + i}")
    a(f"""v_mov_b32 v{MX[0]}, 0xff800000
    v_mov_b32 v{MX[1]}, 0xff800000
    s_mov_b32 s{sP}, 0""")
    a.label("L_slow_pass")
    a(f"s_mov_b32 s{sOFF}, 0")
    a.label("L_slow_chunk")
    a("s_waitcnt vmcnt(0) lgkmcnt(0)")
    a("s_barrier")
    load_rows(a, R, vKG, sK, f"s{sOFF}")
    dma_v(a, f"s{sOFF}")
    a("s_waitcnt vmcnt(0)")
    normalise(a, R)
    write_k(a)
    a("s_waitcnt lgkmcnt(0)")
    a("s_barrier")
    for j in range(8):
        a(f"ds_read_b128 {vr(KF[0], 4)}, v{vAK} offset:{j * 2048}")
        a(f"ds_read_b128 {vr(KF[0] + 4, 4)}, v{vAK} offset:{j * 2048 + 1024}")
        for which in range(2):
            for part in range(2):
                base = (V1, V2)[which][0] + 2 * part
                a(f"ds_read_b64_tr_b16 {vr(base, 2)}, v{vAV} offset:{j * 1792 + 896 * which + 224 * part}")
        a("s_waitcnt lgkmcnt(0)")
        a("s_call_b64 s[64:65], L_slow_tile")
    a(f"""s_add_u32 s{sOFF}, s{sOFF}, {CHB}
    s_cmp_lt_u32 s{sOFF}, {HEADB}
    s_cbranch_scc1 L_slow_chunk
    s_cmp_eq_u32 s{sP}, 1
    s_cbranch_scc1 L_slow_done""")
    for x in range(2):
        a(f"""v_mov_b32 v{x0}, v{MX[x]}
        s_nop 1
        v_permlane32_swap_b32 v{x0}, v{MX[x]}
        s_nop 1
        v_max_f32 v{MX[x]}, v{x0}, v{MX[x]}""")
    a(f"""s_barrier
    v_lshlrev_b32 v{x0}, 3, v0
    ds_write_b64 v{x0}, {vr(MX[0], 2)}
    s_waitcnt lgkmcnt(0)
    s_barrier
    v_xor_b32 v{x0}, 2048, v{x0}
    ds_read_b64 {vr(S[0], 2)}, v{x0}
    s_waitcnt lgkmcnt(0)
    v_max_f32 v{MX[0]}, v{MX[0]}, v{S[0]}
    v_max_f32 v{MX[1]}, v{MX[1]}, v{S[0] + 1}
    s_mov_b32 s{sP}, 1
    s_branch L_slow_pass""")
    a.label("L_slow_done")
    a("s_barrier")
    a("s_nop 7")
    a("s_branch L_epi")
    a.label("L_slow_tile")
    for x in range(2):
        a(qk(x, 0, 0)); a(qk(x, 1, 0))
    a("s_nop 15")
    for x in range(2):
        for i in range(16):
            a(f"v_mul_f32 v{S[x] + i}, s{sT}, v{S[x] + i}")
    a(f"s_cmp_eq_u32 s{sP}, 1")
    a("s_cbranch_scc1 L_slow_exp")
    for x in range(2):
        for i in range(16):
            a(f"v_max_f32 v{MX[x]}, v{MX[x]}, v{S[x] + i}")
    a("s_setpc_b64 s[64:65]")
    a.label("L_slow_exp")
    for x in range(2):
        for i in range(16):
            a(f"v_sub_f32 v{S[x] + i}, v{S[x] + i}, v{MX[x]}")
            a(f"v_mul_f32 v{S[x] + i}, {hex(LOG2E)}, v{S[x] + i}")
            a(f"v_exp_f32 v{S[x] + i}, v{S[x] + i}")
    a("s_nop 1")
    for x in range(2):
        a(pv(x, 0, 0)); a(pv(x, 1, 0))
    a("s_setpc_b64 s[64:65]")


def build(opts):
    a = Asm()
    name = "standalone__qk_norm__prompt_kernel"
    a.raw(HEADER + f"; @launch grid=(256,1,1) block=(512,1,1) lds={LDS_BYTES}")
    a.raw('.amdgcn_target "amdgcn-amd-amdhsa--gfx950"\n.text')
    a.raw(f".globl {name}\n.p2align 8\n.type {name},@function\n{name}:")
    prologue(a, opts)
    main_loop(a, opts)
    epilogue(a, opts)
    slow_path(a)
    a.raw(f""".section .rodata,"a"
.p2align 6
.amdhsa_kernel {name}
  .amdhsa_next_free_vgpr {NVGPR}
  .amdhsa_next_free_sgpr 72
  .amdhsa_accum_offset {NVGPR}
  .amdhsa_group_segment_fixed_size 0
  .amdhsa_kernarg_size 56
  .amdhsa_user_sgpr_count 2
  .amdhsa_user_sgpr_kernarg_segment_ptr 1
  .amdhsa_system_sgpr_workgroup_id_x 1
  .amdhsa_float_denorm_mode_32 3
.end_amdhsa_kernel""")
    return a.text()


if __name__ == "__main__":
    opts = {}
    out = "standalone__qk_norm__prompt.s"
    for arg in sys.argv[1:]:
        k, _, v = arg.partition("=")
        if k == "out":
            out = v
        else:
            opts[k] = int(v)
    open(out, "w").write(build(opts))
```

```python
import sys

HEADER = """; Kernarg layout for this problem (56 bytes, ptrs only, base s[0:1]):
;   offset  32: d_out     shape=(1, 16, 4096, 28) dtype=bfloat16 (2 bytes/elem)
"""

HEADB = 229376
CHB = 28672
KB = [0, 32768]
VB = [65536, 94720]
ONES = 123904
LDS_BYTES = ONES + 16384
T_LIMIT = 0x41800000
LOG2E = 0x3fb8aa3b
EPS = 0x358637bd

sQ, sK, sV, sO = 16, 20, 24, 28
sH, sC, sW, sT, sI, sOFF, sM0, sKS = 32, 33, 34, 35, 36, 37, 38, 39
sA, sB, sD, sDM = 40, 41, 42, 66
sTS = 44
vL, vKG, vVG, vKW, vAK, vAV, vDV, vIDX = 1, 2, 3, 4, 5, 6, 7, 8
vT = [9, 10, 11, 12, 13, 14, 15]
RQ = 16
QF = [[16, 24], [20, 28]]
O = [32, 48]
S = [64, 80]
KF = [96, 104]
V1 = [112, 116]
V2 = [120, 124]
R = 128
D = [144, 160]
A1, A2 = 176, 180
MX = [184, 185]
NVGPR = 188


class Asm:
    def __init__(self):
        self.l = []
    def __call__(self, s):
        for x in s.split("\n"):
            self.l.append("    " + x.strip())
    def label(self, n):
        self.l.append(n + ":")
    def raw(self, s):
        self.l.append(s)
    def text(self):
        return "\n".join(self.l) + "\n"


def vr(a, n):
    return f"v[{a}:{a + n - 1}]"


def load_rows(a, dst, vaddr, srd, soff):
    a(f"buffer_load_dwordx4 {vr(dst, 4)}, v{vaddr}, s[{srd}:{srd+3}], {soff} offen")
    a(f"buffer_load_dwordx4 {vr(dst + 4, 4)}, v{vaddr}, s[{srd}:{srd+3}], {soff} offen offset:16")
    a(f"buffer_load_dwordx4 {vr(dst + 8, 4)}, v{vaddr}, s[{srd}:{srd+3}], {soff} offen offset:32")
    a(f"buffer_load_dwordx2 {vr(dst + 12, 2)}, v{vaddr}, s[{srd}:{srd+3}], {soff} offen offset:48")


def dma_v(a, soff):
    a(f"s_mov_b32 m0, s{sM0}")
    a("s_nop 0")
    for p in range(4):
        a(f"buffer_load_dwordx4 v{vVG}, s[{sV}:{sV+3}], {soff} offen offset:{1024 * p} lds")


def normalise(a, r, scale=None, pk=True):
    acc, nrm = vT[0], vT[1]
    mm = [f"v_mfma_f32_32x32x16_bf16 {vr(D[0], 16)}, {vr(A1, 4)}, {vr(r, 4)}, 0",
          f"v_mfma_f32_32x32x16_bf16 {vr(D[0], 16)}, {vr(A2, 4)}, {vr(r + 4, 4)}, {vr(D[0], 16)}",
          f"v_mfma_f32_32x32x16_bf16 {vr(D[1], 16)}, {vr(A1, 4)}, {vr(r + 8, 4)}, 0",
          f"v_mfma_f32_32x32x16_bf16 {vr(D[1], 16)}, {vr(A2, 4)}, {vr(r + 12, 4)}, {vr(D[1], 16)}"]
    dots = [f"v_dot2_f32_bf16 v{acc}, v{r + i}, v{r + i}, {'0' if i == 0 else 'v%d' % acc}" for i in range(14)]
    a(mm[0]); [a(x) for x in dots[0:4]]
    a(mm[1]); [a(x) for x in dots[4:8]]
    a(mm[2]); [a(x) for x in dots[8:12]]
    a(mm[3]); [a(x) for x in dots[12:14]]
    a("s_nop 2")
    a(f"v_sqrt_f32 v{nrm}, v{acc}")
    a("s_nop 0")
    a(f"v_add_f32 v{nrm}, {hex(EPS)}, v{nrm}")
    a(f"v_rcp_f32 v{nrm}, v{nrm}")
    a("s_nop 0")
    if scale is not None:
        a(f"v_mul_f32 v{nrm}, v{scale}, v{nrm}")
    for i in range(14):
        d = D[0] + 2 * i
        if pk:
            a(f"v_pk_mul_f32 {vr(d, 2)}, {vr(d, 2)}, {vr(nrm, 2)} op_sel_hi:[1,0]")
        else:
            a(f"v_mul_f32 v{d}, v{d}, v{nrm}")
            a(f"v_mul_f32 v{d + 1}, v{d + 1}, v{nrm}")
        if i >= 1:
            a(f"v_cvt_pk_bf16_f32 v{r + i - 1}, v{d - 2}, v{d - 1}")
    a(f"v_cvt_pk_bf16_f32 v{r + 13}, v{D[0] + 26}, v{D[0] + 27}")


def write_k(a):
    for p in range(4):
        a(f"ds_write_b128 v{vKW}, {vr(R + 4 * p, 4)} offset:{(p >> 1) * 1024 + (p & 1) * 512}")


def rdK(f, tile):
    b = tile & 1
    return f"ds_read_b128 {vr(KF[b] + 4 * f, 4)}, v{vAK} offset:{(tile % 8) * 2048 + 1024 * f}"


def rdV(which, part, tile):
    b = tile & 1
    base = (V1, V2)[which][b] + 2 * part
    return f"ds_read_b64_tr_b16 {vr(base, 2)}, v{vAV} offset:{(tile % 8) * 1792 + 896 * which + 224 * part}"


def qk(x, f, tile):
    k = KF[tile & 1] + 4 * f
    c = "0" if f == 0 else vr(S[x], 16)
    return f"v_mfma_f32_32x32x16_bf16 {vr(S[x], 16)}, {vr(k, 4)}, {vr(QF[x][f], 4)}, {c}"


def pv(x, which, tile):
    v = (V1, V2)[which][tile & 1]
    return f"v_smfmac_f32_32x32x32_bf16 {vr(O[x], 16)}, {vr(v, 4)}, {vr(S[x] + 8 * which, 8)}, v{vIDX}"


def half(a, x, j, pre=None):
    e = [f"v_exp_f32 v{S[x] + i}, v{S[x] + i}" for i in range(16)]
    if x == 0:
        m = [pv(1, 1, j - 1), qk(1, 0, j), qk(1, 1, j), pv(0, 0, j)]
        r = [rdV(0, 1, j + 1), rdV(1, 0, j + 1), rdV(1, 1, j + 1), None]
    else:
        m = [pv(0, 1, j), qk(0, 0, j + 1), qk(0, 1, j + 1), pv(1, 0, j)]
        r = [rdK(0, j + 2), rdK(1, j + 2), None, rdV(0, 0, j + 2)]
    cuts = [2, 6, 10, 14]
    pos = 0
    for g in range(4):
        for i in range(pos, cuts[g]):
            a(e[i])
        pos = cuts[g]
        if g == 0 and pre:
            pre(a)
        a(m[g])
        if r[g]:
            a(r[g])
    for i in range(pos, 16):
        a(e[i])


def stamp(a, opts, n):
    if opts.get("stamps"):
        a(f"s_memtime s[{sTS + 2 * n}:{sTS + 2 * n + 1}]")


def prologue(a, opts):
    a("s_cmp_ge_u32 s2, 256")
    a("s_cbranch_scc1 L_end")
    stamp(a, opts, 0)
    if opts.get("stamps") or opts.get("hold"):
        a("s_memrealtime s[58:59]")
    a("s_load_dwordx8 s[4:11], s[0:1], 0")
    a("s_load_dwordx2 s[12:13], s[0:1], 32")
    a(f"""v_lshrrev_b32 v{vT[0]}, 6, v0
    v_and_b32 v{vL}, 63, v0
    s_and_b32 s{sA}, s2, 7
    v_readfirstlane_b32 s{sW}, v{vT[0]}
    s_lshl_b32 s{sA}, s{sA}, 1
    s_bfe_u32 s{sB}, s2, 0x10003
    s_add_u32 s{sH}, s{sA}, s{sB}
    s_lshr_b32 s{sC}, s2, 4
    v_mul_u32_u24 v{vKG}, 56, v0
    s_mul_i32 s{sA}, s{sH}, {HEADB}
    s_mul_i32 s{sB}, s{sC}, 14336
    s_add_u32 s{sB}, s{sB}, s{sA}
    v_and_b32 v{vT[1]}, 255, v0
    v_mul_u32_u24 v{vT[1]}, 56, v{vT[1]}
    s_lshr_b32 s{sKS}, s{sW}, 2
    s_mul_i32 s{sM0}, s{sW}, 3584
    v_lshlrev_b32 v{vVG}, 4, v{vL}
    v_add_u32 v{vVG}, s{sM0}, v{vVG}
    s_add_u32 s{sM0}, s{sM0}, {VB[0]}
    s_lshr_b32 s{sD}, s{sH}, 1
    s_lshl_b32 s{sD}, s{sD}, 2
    s_mov_b32 s{sK+2}, {HEADB}
    s_mov_b32 s{sK+3}, 0x20000
    s_mov_b32 s{sQ+2}, 14336
    s_mov_b32 s{sQ+3}, 0x20000
    s_mov_b32 s{sV+2}, {HEADB}
    s_mov_b32 s{sV+3}, 0x20000
    s_mov_b32 s{sO+2}, 14336
    s_mov_b32 s{sO+3}, 0x20000
    s_waitcnt lgkmcnt(0)
    s_add_u32 s{sK}, s6, s{sA}
    s_addc_u32 s{sK+1}, s7, 0
    s_add_u32 s{sQ}, s4, s{sB}
    s_addc_u32 s{sQ+1}, s5, 0
    s_load_dword s{sT}, s[10:11], s{sD}""")
    load_rows(a, R, vKG, sK, 0)
    load_rows(a, RQ, vT[1], sQ, 0)
    a(f"""s_add_u32 s{sV}, s8, s{sA}
    s_addc_u32 s{sV+1}, s9, 0
    s_add_u32 s{sO}, s12, s{sB}
    s_addc_u32 s{sO+1}, s13, 0""")
    dma_v(a, 0)
    t0, t1, t2, t3, t4 = vT[2:7]
    a(f"""v_lshrrev_b32 v{t0}, 5, v0
    v_lshlrev_b32 v{t0}, 11, v{t0}
    v_and_b32 v{t1}, 31, v0
    v_lshl_add_u32 v{vKW}, v{t1}, 4, v{t0}
    s_lshl_b32 s{sA}, s{sKS}, 14
    v_lshlrev_b32 v{vAK}, 4, v{vL}
    v_add_u32 v{vAK}, s{sA}, v{vAK}
    v_bfe_u32 v{t0}, v0, 2, 2
    v_bfe_u32 v{t1}, v0, 5, 1
    v_lshl_add_u32 v{t0}, v{t1}, 3, v{t0}
    v_mul_u32_u24 v{t0}, 56, v{t0}
    v_and_b32 v{t2}, 3, v0
    v_lshl_add_u32 v{t0}, v{t2}, 3, v{t0}
    v_bfe_u32 v{t3}, v0, 4, 1
    v_lshl_add_u32 v{t0}, v{t3}, 5, v{t0}
    s_mul_i32 s{sA}, s{sKS}, {8 * 1792}
    s_add_u32 s{sA}, s{sA}, {VB[0]}
    v_add_u32 v{vAV}, s{sA}, v{t0}
    v_add_u32 v{vDV}, {VB[1] - VB[0]}, v{vAV}
    v_xor_b32 v{vDV}, v{vDV}, v{vAV}
    v_lshlrev_b32 v{t1}, 6, v{t1}
    v_sub_u32 v{t1}, {ONES + 224}, v{t1}
    v_and_b32 v{t2}, 19, v0
    v_cmp_eq_u32 vcc, 19, v{t2}
    v_mov_b32 v{t3}, 0
    v_mov_b32 v{vIDX}, 0xdddddddd
    v_cndmask_b32 v{vAV}, v{vAV}, v{t1}, vcc
    v_cndmask_b32 v{vDV}, v{vDV}, v{t3}, vcc""")
    a(f"""v_mov_b32 v{D[0]}, 0x3f80
    v_mov_b32 v{D[0]+1}, 0
    v_mov_b32 v{D[0]+2}, 0x3f80
    v_mov_b32 v{D[0]+3}, 0
    v_lshlrev_b32 v{t0}, 4, v0
    v_add_u32 v{t0}, {ONES}, v{t0}
    ds_write_b128 v{t0}, {vr(D[0], 4)}
    ds_write_b128 v{t0}, {vr(D[0], 4)} offset:8192""")
    a(f"""v_bfe_u32 v{t0}, v0, 2, 1
    v_bfe_u32 v{t1}, v0, 5, 1
    v_cmp_eq_u32 vcc, v{t0}, v{t1}
    v_and_b32 v{t0}, 1, v0
    v_lshlrev_b32 v{t0}, 4, v{t0}
    v_mov_b32 v{t1}, 0x3f80
    v_lshlrev_b32 v{t1}, v{t0}, v{t1}
    v_cndmask_b32 v{t1}, 0, v{t1}, vcc
    v_bfe_u32 v{t0}, v0, 1, 1
    v_bfe_u32 v{t2}, v0, 3, 2
    v_lshl_add_u32 v{t0}, v{t2}, 1, v{t0}""")
    for p in range(8):
        a(f"v_cmp_eq_u32 vcc, {p}, v{t0}")
        a(f"v_mov_b32 v{O[0] + 2 * p}, 0")
        a(f"v_mov_b32 v{O[0] + 2 * p + 1}, 0")
        a(f"v_cndmask_b32 v{A1 + p}, 0, v{t1}, vcc")
    for i in range(16):
        a(f"v_mov_b32 v{O[1] + i}, 0")
    for i in range(8):
        a(f"v_mov_b32 v{S[1] + 8 + i}, 0")
    for i in range(4):
        a(f"v_mov_b32 v{V2[1] + i}, 0")
    a(f"""v_mov_b32 v{R+14}, 0x3f80
    v_mov_b32 v{R+15}, 0
    v_mov_b32 v{RQ+14}, 0
    v_mov_b32 v{RQ+15}, 0
    s_waitcnt lgkmcnt(0)
    s_bitcmp1_b32 s{sH}, 0
    s_cselect_b32 s{sA}, 0, 16
    s_lshl_b32 s{sT}, s{sT}, s{sA}
    s_and_b32 s{sT}, s{sT}, 0xffff0000
    s_and_b32 s{sA}, s{sT}, 0x7fffffff
    s_cmp_gt_u32 s{sA}, {hex(T_LIMIT)}
    s_cbranch_scc1 L_slow
    v_mov_b32 v{t4}, {hex(LOG2E)}
    v_mul_f32 v{t4}, s{sT}, v{t4}""")
    stamp(a, opts, 1)
    a("s_waitcnt vmcnt(8)")
    stamp(a, opts, 2)
    normalise(a, R)
    write_k(a)
    a("s_waitcnt vmcnt(4)")
    normalise(a, RQ, scale=t4)
    a(f"v_cvt_pk_bf16_f32 v{RQ+14}, -abs(v{t4}), 0")
    a(f"v_xor_b32 v{vKW}, 0x8000, v{vKW}")
    a("s_nop 0")
    for f in range(2):
        for i in range(4):
            a(f"v_permlane32_swap_b32 v{RQ + 8 * f + i}, v{RQ + 8 * f + 4 + i}")
    a(f"""s_mov_b32 s{sOFF}, {CHB}
    s_add_u32 s{sDM}, s{sM0}, {VB[1] - VB[0]}
    s_xor_b32 s{sDM}, s{sDM}, s{sM0}
    s_xor_b32 s{sM0}, s{sM0}, s{sDM}
    s_mov_b32 s{sI}, 0
    s_waitcnt vmcnt(0) lgkmcnt(0)""")
    stamp(a, opts, 3)
    a("s_barrier")
    a(rdK(0, 0)); a(rdK(1, 0))
    a(rdV(0, 0, 0)); a(rdV(0, 1, 0)); a(rdV(1, 0, 0)); a(rdV(1, 1, 0))
    a(rdK(0, 1)); a(rdK(1, 1)); a(rdV(0, 0, 1))
    load_rows(a, R, vKG, sK, f"s{sOFF}")
    dma_v(a, f"s{sOFF}")
    a("s_waitcnt lgkmcnt(3)")
    a(qk(0, 0, 0)); a(qk(0, 1, 0))
    a("s_nop 11")
    stamp(a, opts, 4)


def main_loop(a, opts):
    lump_at = opts.get("lump", 3)
    prio = opts.get("prio", 1)

    def wait2(a):
        a("s_waitcnt lgkmcnt(2)")

    def sync(a):
        a("s_waitcnt vmcnt(0) lgkmcnt(0)")
        a("s_barrier")
        if prio:
            a("s_setprio 3")
        a(f"v_xor_b32 v{vAK}, 0x8000, v{vAK}")
        a(f"v_xor_b32 v{vAV}, v{vDV}, v{vAV}")

    a.raw(".p2align 6")
    a.label("L_loop")
    for j in range(8):
        if prio and j in (0, 2, 4):
            a(f"s_setprio {2 - j // 2}")
        half(a, 0, j)
        half(a, 1, j, pre=sync if j == 6 else wait2)
        if j == 6:
            a(f"""s_add_u32 s{sOFF}, s{sOFF}, {CHB}
            s_xor_b32 s{sM0}, s{sM0}, s{sDM}
            s_cmp_ge_u32 s{sI}, 6
            s_cbranch_scc1 L_noload""")
            if not opts.get("x_noload"):
                load_rows(a, R, vKG, sK, f"s{sOFF}")
            if not opts.get("x_nodma"):
                dma_v(a, f"s{sOFF}")
            a.label("L_noload")
        if j == lump_at and not opts.get("x_nolump"):
            a(f"s_cmp_eq_u32 s{sI}, 7")
            a("s_cbranch_scc1 L_nolump")
            a("s_waitcnt vmcnt(4)")
            normalise(a, R, pk=opts.get("pk", 1))
            write_k(a)
            a(f"v_xor_b32 v{vKW}, 0x8000, v{vKW}")
            a.label("L_nolump")
    a(f"s_add_u32 s{sI}, s{sI}, 1")
    a(f"s_cmp_lt_u32 s{sI}, 8")
    a("s_cbranch_scc1 L_loop")
    a("s_nop 0")
    a(pv(1, 1, 7))


def epilogue(a, opts):
    a.label("L_epi")
    stamp(a, opts, 5)
    t0, t1, t2 = vT[0:3]
    a(f"""s_lshl_b32 s{sA}, s{sW}, 12
    v_lshlrev_b32 v{t0}, 4, v{vL}
    v_add_u32 v{t0}, s{sA}, v{t0}
    v_xor_b32 v{t1}, 0x4000, v{t0}
    v_and_b32 v{t2}, 31, v0
    v_mul_u32_u24 v{t2}, 56, v{t2}
    v_bfe_u32 v{vT[3]}, v0, 5, 1
    v_lshl_add_u32 v{t2}, v{vT[3]}, 3, v{t2}
    s_and_b32 s{sA}, s{sW}, 3
    s_lshl_b32 s{sA}, s{sA}, 1
    s_add_u32 s{sA}, s{sA}, s{sKS}
    s_mul_i32 s{sA}, s{sA}, {32 * 56}
    s_waitcnt lgkmcnt(0)
    s_cmp_eq_u32 s{sKS}, 0
    s_cbranch_scc1 L_epi0""")
    for x in (1, 0):
        if x == 0:
            a.label("L_epi0")
        keep, send = O[x], O[1 - x]
        if x == 0:
            a("s_nop 3")
        for p in range(4):
            a(f"ds_write_b128 v{t0}, {vr(send + 4 * p, 4)} offset:{1024 * p}")
        a("s_waitcnt lgkmcnt(0)")
        a("s_barrier")
        for p in range(4):
            a(f"ds_read_b128 {vr(S[0] + 4 * p, 4)}, v{t1} offset:{1024 * p}")
        for p in (3, 0, 1, 2):
            if p == 3:
                a("s_waitcnt lgkmcnt(0)")
            for i in range(4):
                a(f"v_add_f32 v{S[0] + 4 * p + i}, v{S[0] + 4 * p + i}, v{keep + 4 * p + i}")
        if x == 1:
            a("s_branch L_epi1")
    a.label("L_epi1")
    l0, l1 = vT[3], vT[4]
    a(f"""v_mov_b32 v{l0}, v{S[0] + 12}
    v_mov_b32 v{l1}, v{S[0] + 12}
    s_nop 1
    v_permlane32_swap_b32 v{l0}, v{l1}
    s_nop 1
    v_rcp_f32 v{l1}, v{l1}
    s_nop 0""")
    for g in range(4):
        for i in range(4):
            a(f"v_mul_f32 v{S[0] + 4 * g + i}, v{l1}, v{S[0] + 4 * g + i}")
        a(f"v_cvt_pk_bf16_f32 v{S[1] + 2 * g}, v{S[0] + 4 * g}, v{S[0] + 4 * g + 1}")
        a(f"v_cvt_pk_bf16_f32 v{S[1] + 2 * g + 1}, v{S[0] + 4 * g + 2}, v{S[0] + 4 * g + 3}")
        if g == 3:
            a("s_mov_b32 exec_hi, 0")
        a(f"buffer_store_dwordx2 {vr(S[1] + 2 * g, 2)}, v{t2}, s[{sO}:{sO+3}], s{sA} offen offset:{16 * g}")
    if opts.get("stamps"):
        a("s_mov_b64 exec, -1")
        a("s_waitcnt vmcnt(0)")
        stamp(a, opts, 6)
        a(f"""s_memrealtime s[60:61]
        s_load_dwordx2 s[4:5], s[0:1], {40 if opts["stamps"] == 2 else 48}
        s_waitcnt lgkmcnt(0)
        s_mov_b32 s6, {64 if opts["stamps"] == 2 else 0x1000000}
        s_mov_b32 s7, 0x20000
        s_lshl_b32 s8, s2, 3
        s_add_u32 s8, s8, s{sW}""")
        if opts["stamps"] == 2:
            a("""s_cmp_eq_u32 s8, 2047
            s_cselect_b32 s9, 1, 2
            s_cmp_eq_u32 s8, 0
            s_cselect_b32 s8, 0, s9""")
        a("""s_lshl_b32 s8, s8, 5
        v_mov_b32 v0, 0
        v_mov_b32 v1, s58
        buffer_store_dword v1, v0, s[4:7], s8 offen""")
        for n in range(1, 7):
            a(f"s_sub_u32 s9, s{sTS + 2 * n}, s{sTS}")
            a("v_mov_b32 v1, s9")
            a(f"buffer_store_dword v1, v0, s[4:7], s8 offen offset:{4 * n}")
        a("s_sub_u32 s9, s60, s58")
        a("v_mov_b32 v1, s9")
        a("buffer_store_dword v1, v0, s[4:7], s8 offen offset:28")
    if opts.get("hold"):
        a.label("L_hold")
        a(f"""s_sleep 4
        s_memrealtime s[60:61]
        s_waitcnt lgkmcnt(0)
        s_sub_u32 s9, s60, s58
        s_cmp_lt_u32 s9, {opts["hold"]}
        s_cbranch_scc1 L_hold""")
    a.label("L_end")
    a("s_endpgm")


def slow_path(a):
    sP, sJ = 43, 60
    x0, x1 = vT[2], vT[3]
    a.label("L_slow")
    a("s_waitcnt vmcnt(0)")
    normalise(a, RQ)
    a("s_nop 1")
    for f in range(2):
        for i in range(4):
            a(f"v_permlane32_swap_b32 v{RQ + 8 * f + i}, v{RQ + 8 * f + 4 + i}")
    a(f"""v_mov_b32 v{MX[0]}, 0xff800000
    v_mov_b32 v{MX[1]}, 0xff800000
    s_mov_b32 s{sP}, 0""")
    a.label("L_slow_pass")
    a(f"s_mov_b32 s{sOFF}, 0")
    a.label("L_slow_chunk")
    a("s_waitcnt vmcnt(0) lgkmcnt(0)")
    a("s_barrier")
    load_rows(a, R, vKG, sK, f"s{sOFF}")
    dma_v(a, f"s{sOFF}")
    a("s_waitcnt vmcnt(0)")
    normalise(a, R)
    write_k(a)
    a("s_waitcnt lgkmcnt(0)")
    a("s_barrier")
    for j in range(8):
        a(f"ds_read_b128 {vr(KF[0], 4)}, v{vAK} offset:{j * 2048}")
        a(f"ds_read_b128 {vr(KF[0] + 4, 4)}, v{vAK} offset:{j * 2048 + 1024}")
        for which in range(2):
            for part in range(2):
                base = (V1, V2)[which][0] + 2 * part
                a(f"ds_read_b64_tr_b16 {vr(base, 2)}, v{vAV} offset:{j * 1792 + 896 * which + 224 * part}")
        a("s_waitcnt lgkmcnt(0)")
        a("s_call_b64 s[64:65], L_slow_tile")
    a(f"""s_add_u32 s{sOFF}, s{sOFF}, {CHB}
    s_cmp_lt_u32 s{sOFF}, {HEADB}
    s_cbranch_scc1 L_slow_chunk
    s_cmp_eq_u32 s{sP}, 1
    s_cbranch_scc1 L_slow_done""")
    for x in range(2):
        a(f"""v_mov_b32 v{x0}, v{MX[x]}
        s_nop 1
        v_permlane32_swap_b32 v{x0}, v{MX[x]}
        s_nop 1
        v_max_f32 v{MX[x]}, v{x0}, v{MX[x]}""")
    a(f"""s_barrier
    v_lshlrev_b32 v{x0}, 3, v0
    ds_write_b64 v{x0}, {vr(MX[0], 2)}
    s_waitcnt lgkmcnt(0)
    s_barrier
    v_xor_b32 v{x0}, 2048, v{x0}
    ds_read_b64 {vr(S[0], 2)}, v{x0}
    s_waitcnt lgkmcnt(0)
    v_max_f32 v{MX[0]}, v{MX[0]}, v{S[0]}
    v_max_f32 v{MX[1]}, v{MX[1]}, v{S[0] + 1}
    s_mov_b32 s{sP}, 1
    s_branch L_slow_pass""")
    a.label("L_slow_done")
    a("s_barrier")
    a("s_nop 7")
    a("s_branch L_epi")
    a.label("L_slow_tile")
    for x in range(2):
        a(qk(x, 0, 0)); a(qk(x, 1, 0))
    a("s_nop 15")
    for x in range(2):
        for i in range(16):
            a(f"v_mul_f32 v{S[x] + i}, s{sT}, v{S[x] + i}")
    a(f"s_cmp_eq_u32 s{sP}, 1")
    a("s_cbranch_scc1 L_slow_exp")
    for x in range(2):
        for i in range(16):
            a(f"v_max_f32 v{MX[x]}, v{MX[x]}, v{S[x] + i}")
    a("s_setpc_b64 s[64:65]")
    a.label("L_slow_exp")
    for x in range(2):
        for i in range(16):
            a(f"v_sub_f32 v{S[x] + i}, v{S[x] + i}, v{MX[x]}")
            a(f"v_mul_f32 v{S[x] + i}, {hex(LOG2E)}, v{S[x] + i}")
            a(f"v_exp_f32 v{S[x] + i}, v{S[x] + i}")
    a("s_nop 1")
    for x in range(2):
        a(pv(x, 0, 0)); a(pv(x, 1, 0))
    a("s_setpc_b64 s[64:65]")


def sel_matrices(a, t0, t1, t2):
    a(f"""v_bfe_u32 v{t0}, v0, 2, 1
    v_bfe_u32 v{t1}, v0, 5, 1
    v_cmp_eq_u32 vcc, v{t0}, v{t1}
    v_and_b32 v{t0}, 1, v0
    v_lshlrev_b32 v{t0}, 4, v{t0}
    v_mov_b32 v{t1}, 0x3f80
    v_lshlrev_b32 v{t1}, v{t0}, v{t1}
    v_cndmask_b32 v{t1}, 0, v{t1}, vcc
    v_bfe_u32 v{t0}, v0, 1, 1
    v_bfe_u32 v{t2}, v0, 3, 2
    v_lshl_add_u32 v{t0}, v{t2}, 1, v{t0}""")
    for p in range(8):
        a(f"v_cmp_eq_u32 vcc, {p}, v{t0}")
        a("s_nop 1")
        a(f"v_cndmask_b32 v{A1 + p}, 0, v{t1}, vcc")


def prep_kernel(a, opts):
    a.raw(".globl prep_kernel\n.p2align 8\n.type prep_kernel,@function\nprep_kernel:")
    a("s_cmp_ge_u32 s2, 256")
    a("s_cbranch_scc1 L_prep_end")
    if opts["prep"] == 2:
        a(f"""s_load_dwordx2 s[4:5], s[0:1], 8
        s_load_dwordx2 s[8:9], s[0:1], 48
        s_mul_i32 s12, s2, 14336
        s_lshl_b32 s13, s2, 14
        v_mul_u32_u24 v2, 56, v0
        v_lshrrev_b32 v3, 5, v0
        v_lshlrev_b32 v3, 11, v3
        v_and_b32 v4, 31, v0
        v_lshl_add_u32 v3, v4, 4, v3
        s_mov_b32 s6, {16 * HEADB}
        s_mov_b32 s7, 0x20000
        s_mov_b32 s10, {1 << 22}
        s_mov_b32 s11, 0x20000
        s_waitcnt lgkmcnt(0)""")
        load_rows(a, R, 2, 4, "s12")
        sel_matrices(a, *vT[2:5])
        a(f"v_mov_b32 v{R+14}, 0x3f80")
        a(f"v_mov_b32 v{R+15}, 0")
        a("s_waitcnt vmcnt(0)")
        normalise(a, R)
        for p in range(4):
            a(f"buffer_store_dwordx4 {vr(R + 4 * p, 4)}, v3, s[8:11], s13 offen offset:{(p >> 1) * 1024 + (p & 1) * 512}")
    a.label("L_prep_end")
    a("s_endpgm")


def build(opts):
    a = Asm()
    name = "standalone__qk_norm__prompt_kernel"
    if opts.get("prep"):
        a.raw(HEADER + f"; @launch kernel=prep_kernel grid=(256,1,1) block=(256,1,1) lds=0\n; @launch kernel={name} grid=(256,1,1) block=(512,1,1) lds={LDS_BYTES}")
    else:
        a.raw(HEADER + f"; @launch grid=(256,1,1) block=(512,1,1) lds={LDS_BYTES}")
    a.raw('.amdgcn_target "amdgcn-amd-amdhsa--gfx950"\n.text')
    if opts.get("prep"):
        prep_kernel(a, opts)
    a.raw(f".globl {name}\n.p2align 8\n.type {name},@function\n{name}:")
    prologue(a, opts)
    main_loop(a, opts)
    epilogue(a, opts)
    slow_path(a)
    a.raw(f""".section .rodata,"a"
.p2align 6
.amdhsa_kernel {name}
  .amdhsa_next_free_vgpr {NVGPR}
  .amdhsa_next_free_sgpr 72
  .amdhsa_accum_offset {NVGPR}
  .amdhsa_group_segment_fixed_size 0
  .amdhsa_kernarg_size 56
  .amdhsa_user_sgpr_count 2
  .amdhsa_user_sgpr_kernarg_segment_ptr 1
  .amdhsa_system_sgpr_workgroup_id_x 1
  .amdhsa_float_denorm_mode_32 3
.end_amdhsa_kernel""")
    if opts.get("prep"):
        a.raw(f""".p2align 6
.amdhsa_kernel prep_kernel
  .amdhsa_next_free_vgpr {NVGPR}
  .amdhsa_next_free_sgpr 72
  .amdhsa_accum_offset {NVGPR}
  .amdhsa_group_segment_fixed_size 0
  .amdhsa_kernarg_size 56
  .amdhsa_user_sgpr_count 2
  .amdhsa_user_sgpr_kernarg_segment_ptr 1
  .amdhsa_system_sgpr_workgroup_id_x 1
  .amdhsa_float_denorm_mode_32 3
.end_amdhsa_kernel""")
    return a.text()


if __name__ == "__main__":
    opts = {}
    out = "standalone__qk_norm__prompt.s"
    for arg in sys.argv[1:]:
        k, _, v = arg.partition("=")
        if k == "out":
            out = v
        else:
            opts[k] = int(v)
    open(out, "w").write(build(opts))
```

```python
import sys

HEADER = """; Kernarg layout for this problem (56 bytes, ptrs only, base s[0:1]):
;   offset   0: d_in[0] q  shape=(1, 16, 4096, 28) dtype=bfloat16 strides=(3670016, 229376, 56, 2) contiguous=True
;   offset   8: d_in[1] k  shape=(1, 16, 4096, 28) dtype=bfloat16 strides=(3670016, 229376, 56, 2) contiguous=True
;   offset  16: d_in[2] v  shape=(1, 16, 4096, 28) dtype=bfloat16 strides=(3670016, 229376, 56, 2) contiguous=True
;   offset  32: d_out     shape=(1, 16, 4096, 28) dtype=bfloat16 (2 bytes/elem)
"""

HEADB = 229376
CHB = 28672
WSH = 262144
KB = [0, 32768]
VB = [65536, 94720]
ONES = 123904
QB = ONES + 14336
CNT = QB + 16384
LDS_BYTES = CNT + 256
T_LIMIT = 0x41800000
LOG2E = 0x3fb8aa3b
EPS = 0x358637bd
FIRST_PUB = 4

sK, sV, sO, sX, sG = 16, 20, 24, 28, 32
sH, sC, sW, sT, sI, sVOFF, sM0V, sKS = 36, 37, 38, 39, 40, 41, 42, 43
sA, sB, sD = 44, 45, 46
sDMV, sM0K, sKOFF, sKINC, sMODE, sPUB, sSLOW = 47, 48, 49, 50, 51, 52, 53
sWS = 54
sP = 56
sLINK = 58
sTS = 60
NSGPR = 80
vL, vKS, vVG, vKW, vAK, vAV, vDV, vIDX = 1, 2, 3, 4, 5, 6, 7, 8
vT = [9, 10, 11, 12, 13, 14, 15]
RQ = 16
QF = [[16, 20], [24, 28]]
O = [32, 48]
S = [64, 80]
KF = [96, 104]
V1 = [112, 116]
V2 = [120, 124]
R = 128
D = [144, 160]
A1, A2 = 176, 180
MX = [184, 185]
vRR, vPOLL = 186, 187
NVGPR = 188


class Asm:
    def __init__(self):
        self.l = []
    def __call__(self, s):
        for x in s.split("\n"):
            self.l.append("    " + x.strip())
    def label(self, n):
        self.l.append(n + ":")
    def raw(self, s):
        self.l.append(s)
    def text(self):
        return "\n".join(self.l) + "\n"


def vr(a, n):
    return f"v[{a}:{a + n - 1}]"


def dma4(a, m0, vaddr, srd, soff, flags=""):
    a(f"s_mov_b32 m0, s{m0}")
    a("s_nop 0")
    for p in range(4):
        a(f"buffer_load_dwordx4 v{vaddr}, s[{srd}:{srd+3}], {soff} offen offset:{1024 * p}{flags} lds")


def read_rows(a, r, vaddr):
    for i in range(7):
        a(f"ds_read_b64 {vr(r + 2 * i, 2)}, v{vaddr} offset:{8 * i}")


def normalise(a, r, scale=None, mid=None):
    acc, nrm = vT[0], vT[1]
    mm = [f"v_mfma_f32_32x32x16_bf16 {vr(D[0], 16)}, {vr(A1, 4)}, {vr(r, 4)}, 0",
          f"v_mfma_f32_32x32x16_bf16 {vr(D[0], 16)}, {vr(A2, 4)}, {vr(r + 4, 4)}, {vr(D[0], 16)}",
          f"v_mfma_f32_32x32x16_bf16 {vr(D[1], 16)}, {vr(A1, 4)}, {vr(r + 8, 4)}, 0",
          f"v_mfma_f32_32x32x16_bf16 {vr(D[1], 16)}, {vr(A2, 4)}, {vr(r + 12, 4)}, {vr(D[1], 16)}"]
    dots = [f"v_dot2_f32_bf16 v{acc}, v{r + i}, v{r + i}, {'0' if i == 0 else 'v%d' % acc}" for i in range(14)]
    a(mm[0]); [a(x) for x in dots[0:4]]
    a(mm[1]); [a(x) for x in dots[4:8]]
    a(mm[2]); [a(x) for x in dots[8:12]]
    a(mm[3]); [a(x) for x in dots[12:14]]
    a("s_nop 2")
    a(f"v_sqrt_f32 v{nrm}, v{acc}")
    a("s_nop 0")
    a(f"v_add_f32 v{nrm}, {hex(EPS)}, v{nrm}")
    a(f"v_rcp_f32 v{nrm}, v{nrm}")
    a("s_nop 0")
    if scale is not None:
        a(f"v_mul_f32 v{nrm}, v{scale}, v{nrm}")
    if mid:
        mid(a)
    for i in range(14):
        d = D[0] + 2 * i
        a(f"v_pk_mul_f32 {vr(d, 2)}, {vr(d, 2)}, {vr(nrm, 2)} op_sel_hi:[1,0]")
        if i >= 1:
            a(f"v_cvt_pk_bf16_f32 v{r + i - 1}, v{d - 2}, v{d - 1}")
    a(f"v_cvt_pk_bf16_f32 v{r + 13}, v{D[0] + 26}, v{D[0] + 27}")


def piece_off(p):
    return (p >> 1) * 1024 + (p & 1) * 512


def write_frags(a, r, vaddr):
    for p in range(4):
        a(f"ds_write_b128 v{vaddr}, {vr(r + 4 * p, 4)} offset:{piece_off(p)}")


def rdK(f, tile):
    b = tile & 1
    return f"ds_read_b128 {vr(KF[b] + 4 * f, 4)}, v{vAK} offset:{(tile % 8) * 2048 + 1024 * f}"


def rdV(which, part, tile):
    b = tile & 1
    base = (V1, V2)[which][b] + 2 * part
    return f"ds_read_b64_tr_b16 {vr(base, 2)}, v{vAV} offset:{(tile % 8) * 1792 + 896 * which + 224 * part}"


def qk(x, f, tile):
    k = KF[tile & 1] + 4 * f
    c = "0" if f == 0 else vr(S[x], 16)
    return f"v_mfma_f32_32x32x16_bf16 {vr(S[x], 16)}, {vr(k, 4)}, {vr(QF[x][f], 4)}, {c}"


def pv(x, which, tile):
    v = (V1, V2)[which][tile & 1]
    return f"v_smfmac_f32_32x32x32_bf16 {vr(O[x], 16)}, {vr(v, 4)}, {vr(S[x] + 8 * which, 8)}, v{vIDX}"


def half(a, x, j, pre=None):
    e = [f"v_exp_f32 v{S[x] + i}, v{S[x] + i}" for i in range(16)]
    if x == 0:
        m = [pv(1, 1, j - 1), qk(1, 0, j), qk(1, 1, j), pv(0, 0, j)]
        r = [rdV(0, 1, j + 1), rdV(1, 0, j + 1), rdV(1, 1, j + 1), None]
    else:
        m = [pv(0, 1, j), qk(0, 0, j + 1), qk(0, 1, j + 1), pv(1, 0, j)]
        r = [rdK(0, j + 2), rdK(1, j + 2), None, rdV(0, 0, j + 2)]
    cuts = [2, 6, 10, 14]
    pos = 0
    for g in range(4):
        for i in range(pos, cuts[g]):
            a(e[i])
        pos = cuts[g]
        if g == 0 and pre:
            pre(a)
        a(m[g])
        if r[g]:
            a(r[g])
    for i in range(pos, 16):
        a(e[i])


def stamp(a, opts, name):
    if opts.get("stamps") and name in opts["slots"]:
        n = opts["slots"].index(name)
        a(f"s_memtime s[{sTS + 2 * n}:{sTS + 2 * n + 1}]")


def prologue(a, opts):
    t0, t1, t2, t3, t4 = vT[2:7]
    a("s_cmp_ge_u32 s2, 256")
    a("s_cbranch_scc1 L_end")
    stamp(a, opts, "start")
    if opts.get("stamps") or opts.get("hold"):
        a("s_memrealtime s[74:75]")
    a("s_load_dwordx8 s[4:11], s[0:1], 0")
    a("s_load_dwordx4 s[12:15], s[0:1], 32")
    a(f"s_load_dwordx2 s[{sWS}:{sWS+1}], s[0:1], 48")
    a(f"""v_lshrrev_b32 v{t0}, 6, v0
    v_and_b32 v{vL}, 63, v0
    s_and_b32 s{sA}, s2, 7
    v_readfirstlane_b32 s{sW}, v{t0}
    s_lshl_b32 s{sA}, s{sA}, 1
    s_bfe_u32 s{sB}, s2, 0x10003
    s_add_u32 s{sH}, s{sA}, s{sB}
    s_lshr_b32 s{sC}, s2, 4""")
    if opts.get("pf", 1):
        a(f"""s_cmp_eq_u32 s{sW}, 7
        s_cbranch_scc0 L_nopf
        s_getpc_b64 s[{sG}:{sG+1}]
        s_mov_b32 s{sG+2}, L_slow-standalone__qk_norm__prompt_kernel
        s_mov_b32 s{sG+3}, 0x20000
        v_lshlrev_b32 v{t0}, 7, v{vL}
        buffer_load_dword v{vPOLL}, v{t0}, s[{sG}:{sG+3}], 0 offen""")
        a.label("L_nopf")
    a(f"""s_mul_i32 s{sA}, s{sH}, {HEADB}
    s_mul_i32 s{sD}, s{sC}, 14336
    s_add_u32 s{sB}, s{sD}, s{sA}
    s_lshr_b32 s{sKS}, s{sW}, 2
    s_mul_i32 s{sM0V}, s{sW}, 3584
    v_lshlrev_b32 v{vAK}, 4, v{vL}
    v_add_u32 v{vVG}, s{sM0V}, v{vAK}
    s_add_u32 s{sM0V}, s{sM0V}, {VB[0]}
    s_lshl_b32 s{sM0K}, s{sW}, 12
    s_mov_b32 s{sK+2}, {HEADB}
    s_mov_b32 s{sK+3}, 0x20000
    s_mov_b32 s{sX+3}, 0x20000
    s_mov_b32 s{sV+2}, {HEADB}
    s_mov_b32 s{sV+3}, 0x20000
    s_mov_b32 s{sO+2}, 14336
    s_mov_b32 s{sO+3}, 0x20000
    s_sub_u32 s{sKOFF}, s{sD}, 14336
    s_lshr_b32 s{sD}, s{sH}, 1
    s_lshl_b32 s{sD}, s{sD}, 2
    s_cmp_ge_u32 s{sC}, {FIRST_PUB}
    s_cselect_b32 s{sPUB}, s{sKS}, 0
    s_waitcnt lgkmcnt(0)""")
    stamp(a, opts, "karg")
    a(f"""s_add_u32 s{sK}, s6, s{sA}
    s_addc_u32 s{sK+1}, s7, 0""")
    dma4(a, sM0K, vVG, sK, 0)
    a(f"s_load_dword s{sT}, s[10:11], s{sD}")
    a(f"""v_mov_b32 v{R+14}, 0x3f80
    s_mov_b32 vcc_lo, 0xaaaaaaaa
    s_mov_b32 vcc_hi, 0xaaaaaaaa
    v_cndmask_b32 v{t1}, v{R+14}, 1.0, vcc""")
    for p in range(8):
        lo = 3 << (8 * (p >> 1) + 2 * (p & 1))
        a(f"s_mov_b32 vcc_lo, {hex(lo)}")
        a(f"s_mov_b32 vcc_hi, {hex(lo << 4)}")
        a(f"v_cndmask_b32 v{A1 + p}, 0, v{t1}, vcc")
    a(f"""v_mov_b32 v{R+15}, 0
    v_lshrrev_b32 v{t0}, 5, v0
    v_mul_u32_u24 v{t0}, 1536, v{t0}
    v_lshl_add_u32 v{vKW}, v0, 4, v{t0}
    v_mad_u32_u24 v{vRR}, v{vL}, 56, s{sM0K}""")
    a(f"""s_add_u32 s{sX}, s4, s{sB}
    s_addc_u32 s{sX+1}, s5, 0
    s_cmp_eq_u32 s{sKS}, 0
    s_cselect_b32 s{sX}, s{sX}, s{sK}
    s_cselect_b32 s{sX+1}, s{sX+1}, s{sK+1}
    s_cselect_b32 s{sX+2}, 14336, s{sK+2}
    s_cselect_b32 s{sKOFF}, 0, s{sKOFF}
    s_mov_b32 s{sD}, {KB[1]}
    s_cselect_b32 s{sD}, {QB}, s{sD}
    s_add_u32 s{sKINC}, s{sD}, s{sM0K}
    s_cmp_eq_u32 s{sKS}, s{sPUB}
    s_cbranch_scc0 L_nosecond""")
    dma4(a, sKINC, vVG, sX, f"s{sKOFF}")
    a.label("L_nosecond")
    a(f"""s_add_u32 s{sV}, s8, s{sA}
    s_addc_u32 s{sV+1}, s9, 0
    s_add_u32 s{sO}, s12, s{sB}
    s_addc_u32 s{sO+1}, s13, 0
    s_mov_b32 s{sG}, s14
    s_mov_b32 s{sG+1}, s15
    s_mov_b32 s{sG+2}, 256
    s_mov_b32 s{sG+3}, 0x20000
    s_lshl_b32 s{sA}, s{sKS}, 14
    v_add_u32 v{vAK}, s{sA}, v{vAK}
    s_mul_i32 s{sA}, s{sKS}, {8 * 1792}
    s_add_u32 s{sA}, s{sA}, {VB[0]}
    v_and_b32 v{t0}, 15, v0
    v_bfe_u32 v{t1}, v0, 2, 2
    v_mad_u32_u24 v{t0}, v{t1}, 3, v{t0}
    v_lshrrev_b32 v{t1}, 4, v{vL}
    v_lshl_add_u32 v{t0}, v{t1}, 2, v{t0}
    v_lshrrev_b32 v{t1}, 5, v{vL}
    v_mad_u32_u24 v{t0}, v{t1}, 48, v{t0}
    v_lshl_add_u32 v{vAV}, v{t0}, 3, s{sA}
    v_add_u32 v{vDV}, {VB[1] - VB[0]}, v{vAV}
    v_xor_b32 v{vDV}, v{vDV}, v{vAV}
    v_lshlrev_b32 v{t1}, 6, v{t1}
    v_sub_u32 v{t1}, {ONES + 224}, v{t1}
    s_mov_b32 vcc_lo, 0x88880000
    s_mov_b32 vcc_hi, 0x88880000
    v_cndmask_b32 v{vAV}, v{vAV}, v{t1}, vcc
    v_cndmask_b32 v{vDV}, v{vDV}, v{R+15}, vcc""")
    dma4(a, sM0V, vVG, sV, 0)
    stamp(a, opts, "issued")
    z = V2[1]
    a(f"""v_mov_b64 {vr(z, 2)}, 0
    v_mov_b64 {vr(z + 2, 2)}, 0
    v_mov_b32 v{vIDX}, 0xdddddddd
    v_mov_b32 v{RQ+15}, 0
    v_mfma_f32_32x32x16_bf16 {vr(O[0], 16)}, {vr(z, 4)}, {vr(z, 4)}, 0
    v_mov_b32 v{vKS}, v{vVG}
    v_add_u32 v{t2}, s{sD}, v{vRR}
    v_add_u32 v{t3}, s{sD}, v{vKW}
    v_mfma_f32_32x32x16_bf16 {vr(O[1], 16)}, {vr(z, 4)}, {vr(z, 4)}, 0
    s_cmp_eq_u32 s{sW}, 6
    s_cbranch_scc0 L_noones
    v_lshrrev_b32 v{t0}, 3, v{vL}
    v_mul_u32_u24 v{t0}, 1792, v{t0}
    v_bfe_u32 v{t1}, v0, 2, 1
    v_mul_u32_u24 v{t1}, 896, v{t1}
    v_add_u32 v{t0}, v{t0}, v{t1}
    v_bfe_u32 v{t1}, v0, 1, 1
    v_mul_u32_u24 v{t1}, 224, v{t1}
    v_add_u32 v{t0}, v{t0}, v{t1}
    v_and_b32 v{t1}, 1, v0
    v_lshl_add_u32 v{t0}, v{t1}, 6, v{t0}
    v_add_u32 v{t0}, {ONES + 160}, v{t0}
    v_mov_b32 v{t1}, {CNT}
    ds_write_b64 v{t0}, {vr(R + 14, 2)}
    ds_write_b32 v{t1}, v{R+15}""")
    a.label("L_noones")
    a(f"""v_mfma_f32_32x32x16_bf16 {vr(S[1], 16)}, {vr(z, 4)}, {vr(z, 4)}, 0
    s_waitcnt lgkmcnt(0)
    s_bitcmp1_b32 s{sH}, 0
    s_cselect_b32 s{sA}, 0, 16
    s_lshl_b32 s{sT}, s{sT}, s{sA}
    s_and_b32 s{sT}, s{sT}, 0xffff0000
    s_and_b32 s{sA}, s{sT}, 0x7fffffff
    s_cmp_gt_u32 s{sA}, {hex(T_LIMIT)}
    s_cselect_b32 s{sSLOW}, 1, 0
    v_mov_b32 v{t4}, {hex(LOG2E)}
    v_mul_f32 v{t4}, s{sT}, v{t4}
    s_or_b32 s{sA}, s{sSLOW}, s{sKS}
    s_cselect_b64 vcc, -1, 0
    v_cvt_pk_bf16_f32 v{RQ+14}, -abs(v{t4}), 0
    s_mul_i32 s{sA}, s{sKS}, 0x3f80
    v_mov_b32 v{t0}, s{sA}
    v_cndmask_b32 v{t4}, v{t4}, 1.0, vcc
    v_cndmask_b32 v{RQ+14}, v{RQ+14}, v{t0}, vcc
    s_cmp_eq_u32 s{sKS}, s{sPUB}
    s_cbranch_scc1 L_two""")
    stamp(a, opts, "setup")
    a("s_waitcnt vmcnt(4)")
    read_rows(a, R, vRR)
    a("s_waitcnt lgkmcnt(0)")
    normalise(a, R)
    write_frags(a, R, vKW)
    a("s_waitcnt vmcnt(0)")
    a("s_branch L_join")
    a.label("L_two")
    stamp(a, opts, "setup")
    a("s_waitcnt vmcnt(8)")
    stamp(a, opts, "kdata")
    read_rows(a, R, vRR)
    a("s_waitcnt lgkmcnt(0)")

    def second_rows(a):
        stamp(a, opts, "mid")
        a("s_waitcnt vmcnt(4)")
        stamp(a, opts, "qdata")
        read_rows(a, RQ, t2)
    normalise(a, R, mid=second_rows)
    write_frags(a, R, vKW)
    a("s_waitcnt lgkmcnt(4)")
    normalise(a, RQ, scale=t4)
    stamp(a, opts, "lump2")
    a(f"s_cmp_eq_u32 s{sKS}, 0")
    a("s_cbranch_scc0 L_publish")
    write_frags(a, RQ, t3)
    a("s_waitcnt vmcnt(0)")
    a("s_branch L_join")
    a.label("L_publish")
    a(f"""s_mul_i32 s{sA}, s{sH}, {WSH}
    s_add_u32 s{sX}, s{sWS}, s{sA}
    s_addc_u32 s{sX+1}, s{sWS+1}, 0
    s_mov_b32 s{sX+2}, {WSH}
    s_lshl_b32 s{sA}, s{sC}, 14
    s_sub_u32 s{sA}, s{sA}, 16384
    s_waitcnt vmcnt(0)""")
    for p in range(4):
        a(f"buffer_store_dwordx4 {vr(RQ + 4 * p, 4)}, v{vKW}, s[{sX}:{sX+3}], s{sA} offen offset:{piece_off(p)} sc1")
    a.label("L_join")
    a(f"""v_xor_b32 v{vKW}, 0x8000, v{vKW}
    v_xor_b32 v{vRR}, 0x8000, v{vRR}
    s_and_b32 s{sA}, s{sW}, 3
    s_lshl_b32 s{sA}, s{sA}, 12
    s_add_u32 s{sA}, s{sA}, {QB}
    v_lshl_add_u32 v{t0}, v{vL}, 4, s{sA}
    s_mov_b32 s{sVOFF}, {CHB}
    s_mov_b32 s{sKOFF}, {CHB}
    s_mov_b32 s{sKINC}, {CHB}
    s_mov_b32 s{sMODE}, 0
    s_add_u32 s{sDMV}, s{sM0V}, {VB[1] - VB[0]}
    s_xor_b32 s{sDMV}, s{sDMV}, s{sM0V}
    s_xor_b32 s{sM0V}, s{sM0V}, s{sDMV}
    s_xor_b32 s{sM0K}, s{sM0K}, 0x8000
    s_mov_b32 s{sI}, 0
    s_waitcnt lgkmcnt(0)""")
    stamp(a, opts, "prebar")
    a("s_barrier")
    a(rdK(0, 0))
    a(f"ds_read_b128 {vr(QF[0][0], 4)}, v{t0}")
    a(rdK(1, 0))
    a(f"ds_read_b128 {vr(QF[0][1], 4)}, v{t0} offset:1024")
    a(f"ds_read_b128 {vr(QF[1][0], 4)}, v{t0} offset:2048")
    a(f"ds_read_b128 {vr(QF[1][1], 4)}, v{t0} offset:3072")
    a(f"s_cmp_eq_u32 s{sSLOW}, 1")
    a("s_cbranch_scc1 L_slow")
    a(rdV(0, 0, 0)); a(rdV(0, 1, 0)); a(rdV(1, 0, 0)); a(rdV(1, 1, 0))
    a(rdK(0, 1)); a(rdK(1, 1)); a(rdV(0, 0, 1))
    a("s_waitcnt lgkmcnt(9)")
    a(qk(0, 0, 0)); a(qk(0, 1, 0))
    dma4(a, sM0V, vVG, sV, f"s{sVOFF}")
    a("s_waitcnt lgkmcnt(3)")
    a("s_nop 4")
    stamp(a, opts, "loop")


def main_loop(a, opts):
    kdma_at = opts.get("kdma", 0)
    sig_at = opts.get("sig", 2)
    lump_at = opts.get("lump", 4)
    prio = opts.get("prio", 1)
    t0, t1 = vT[2], vT[3]

    def wait2(a):
        a("s_waitcnt lgkmcnt(2)")

    def sync(a):
        a("s_waitcnt vmcnt(0) lgkmcnt(0)")
        a("s_barrier")
        if prio:
            a("s_setprio 3")
        a(f"v_xor_b32 v{vAK}, 0x8000, v{vAK}")
        a(f"v_xor_b32 v{vAV}, v{vDV}, v{vAV}")

    a.raw(".p2align 6")
    a.label("L_loop")
    for j in range(8):
        if prio and j in (0, 2, 4):
            a(f"s_setprio {2 - j // 2}")
        half(a, 0, j)
        half(a, 1, j, pre=sync if j == 6 else wait2)
        if j == kdma_at:
            a(f"""s_cmp_eq_u32 s{sI}, 7
            s_cbranch_scc1 L_nok
            s_cmp_eq_u32 s{sMODE}, 0
            s_cbranch_scc1 L_check""")
            a.label("L_kdma")
            dma4(a, sM0K, vKS, sK, f"s{sKOFF}", " sc1" if opts.get("ksc1", 1) else "")
            a(f"s_add_u32 s{sKOFF}, s{sKOFF}, s{sKINC}")
            a(f"s_xor_b32 s{sM0K}, s{sM0K}, 0x8000")
            a.label("L_nok")
        if j == sig_at:
            a(f"s_cmp_eq_u32 s{sPUB}, 1")
            a("s_cbranch_scc1 L_signal")
            a.label("L_signalled")
        if j == lump_at:
            a(f"s_cmp_eq_u32 s{sMODE}, 0")
            a("s_cbranch_scc1 L_lump")
            a.label("L_lumped")
        if j == 6:
            a(f"""s_add_u32 s{sVOFF}, s{sVOFF}, {CHB}
            s_xor_b32 s{sM0V}, s{sM0V}, s{sDMV}
            s_cmp_ge_u32 s{sI}, 6
            s_cbranch_scc1 L_nov
            s_cmp_eq_u32 s{sMODE}, 0
            s_cbranch_scc1 L_poll""")
            a.label("L_polled")
            dma4(a, sM0V, vVG, sV, f"s{sVOFF}")
            a.label("L_nov")
    a(f"s_add_u32 s{sI}, s{sI}, 1")
    a(f"s_cmp_lt_u32 s{sI}, 8")
    a("s_cbranch_scc1 L_loop")
    a("s_nop 0")
    a(pv(1, 1, 7))


def side_blocks(a, opts):
    t0, t1 = vT[2], vT[3]
    a.label("L_poll")
    a(f"""s_lshl_b32 s{sA}, s{sH}, 4
    v_mov_b32 v{t0}, 0
    buffer_load_dword v{vPOLL}, v{t0}, s[{sG}:{sG+3}], s{sA} offen sc1
    s_branch L_polled""")
    a.label("L_check")
    a(f"""s_cmp_eq_u32 s{sI}, 0
    s_cbranch_scc1 L_kdma
    s_waitcnt vmcnt(4)
    v_readfirstlane_b32 s{sA}, v{vPOLL}
    s_cmp_eq_u32 s{sA}, {99 if opts.get("x_self") else 16 - FIRST_PUB}
    s_cbranch_scc0 L_kdma
    {"buffer_inv sc1" if opts.get("inv") else "s_nop 0"}
    s_mul_i32 s{sA}, s{sH}, {WSH}
    s_add_u32 s{sK}, s{sWS}, s{sA}
    s_addc_u32 s{sK+1}, s{sWS+1}, 0
    s_mov_b32 s{sK+2}, {WSH}
    s_add_u32 s{sKOFF}, s{sI}, 1
    s_lshl_b32 s{sKOFF}, s{sKOFF}, 15
    s_mov_b32 s{sKINC}, 32768
    s_mov_b32 s{sMODE}, 1
    s_lshl_b32 s{sA}, s{sW}, 12
    v_lshl_add_u32 v{vKS}, v{vL}, 4, s{sA}
    s_branch L_kdma""")
    a.label("L_signal")
    a(f"""s_mov_b32 s{sPUB}, 0
    v_mov_b32 v{t0}, {CNT}
    v_mov_b32 v{t1}, 1
    s_waitcnt vmcnt(8)
    s_mov_b64 exec, 1
    ds_add_rtn_u32 v{t0}, v{t0}, v{t1}
    s_waitcnt lgkmcnt(0)
    v_readfirstlane_b32 s{sA}, v{t0}
    s_cmp_eq_u32 s{sA}, 3
    s_cbranch_scc0 L_notlast
    s_lshl_b32 s{sA}, s{sH}, 4
    v_mov_b32 v{t0}, 0
    s_mov_b32 s{sPUB}, 2
    s_waitcnt vmcnt(0)
    buffer_atomic_add v{t1}, v{t0}, s[{sG}:{sG+3}], s{sA} offen sc1""")
    a.label("L_notlast")
    a("s_mov_b64 exec, -1")
    a("s_branch L_signalled")
    a.label("L_lump")
    a(f"s_cmp_eq_u32 s{sI}, 7")
    a("s_cbranch_scc1 L_lumped")
    a(f"s_cmp_eq_u32 s{sPUB}, 2")
    a(f"s_mov_b32 s{sPUB}, 0")
    a("s_cbranch_scc1 L_lump_ready")
    a("s_waitcnt vmcnt(0)")
    a.label("L_lump_ready")
    read_rows(a, R, vRR)
    a("s_waitcnt lgkmcnt(0)")
    normalise(a, R)
    write_frags(a, R, vKW)
    a(f"v_xor_b32 v{vKW}, 0x8000, v{vKW}")
    a(f"v_xor_b32 v{vRR}, 0x8000, v{vRR}")
    a("s_branch L_lumped")


def epilogue(a, opts):
    a.label("L_epi")
    stamp(a, opts, "done")
    t0, t1, t2 = vT[0:3]
    a(f"""s_lshl_b32 s{sB}, s{sW}, 12
    v_lshl_add_u32 v{t0}, v{vL}, 4, s{sB}
    v_xor_b32 v{t1}, 0x4000, v{t0}
    v_and_b32 v{t2}, 31, v0
    v_mul_u32_u24 v{t2}, 56, v{t2}
    v_bfe_u32 v{vT[3]}, v0, 5, 1
    v_lshl_add_u32 v{t2}, v{vT[3]}, 3, v{t2}
    s_and_b32 s{sA}, s{sW}, 3
    s_lshl_b32 s{sA}, s{sA}, 1
    s_add_u32 s{sA}, s{sA}, s{sKS}
    s_mul_i32 s{sA}, s{sA}, {32 * 56}
    s_waitcnt lgkmcnt(0)
    s_cmp_eq_u32 s{sKS}, 0
    s_cbranch_scc1 L_epi0""")
    for x in (1, 0):
        if x == 0:
            a.label("L_epi0")
        keep, send = O[x], O[1 - x]
        if x == 0:
            a("s_nop 3")
        for p in range(4):
            a(f"ds_write_b128 v{t0}, {vr(send + 4 * p, 4)} offset:{1024 * p}")
        a("s_waitcnt lgkmcnt(0)")
        stamp(a, opts, "sent")
        a("s_barrier")
        for p in (3, 0, 1, 2):
            a(f"ds_read_b128 {vr(S[0] + 4 * p, 4)}, v{t1} offset:{1024 * p}")
        for n, p in enumerate((3, 0, 1, 2)):
            a(f"s_waitcnt lgkmcnt({3 - n})")
            for i in range(4):
                a(f"v_add_f32 v{S[0] + 4 * p + i}, v{S[0] + 4 * p + i}, v{keep + 4 * p + i}")
        if x == 1:
            a("s_branch L_epi1")
    a.label("L_epi1")
    l0, l1 = vT[3], vT[4]
    a(f"""v_mov_b32 v{l0}, v{S[0] + 12}
    v_mov_b32 v{l1}, v{S[0] + 12}
    s_nop 1
    v_permlane32_swap_b32 v{l0}, v{l1}
    s_nop 1
    v_rcp_f32 v{l1}, v{l1}
    s_nop 0""")
    flags = {0: "", 1: " sc1", 2: " nt", 3: " sc0 sc1"}[opts.get("stf", 0)]
    wide = opts.get("wide", 1)
    if wide:
        a(f"s_add_u32 s{sB}, s{sB}, {KB[1]}")
        a(f"v_add_u32 v{t2}, s{sB}, v{t2}")
    for g in range(4):
        for i in range(4):
            a(f"v_mul_f32 v{S[0] + 4 * g + i}, v{l1}, v{S[0] + 4 * g + i}")
        a(f"v_cvt_pk_bf16_f32 v{S[1] + 2 * g}, v{S[0] + 4 * g}, v{S[0] + 4 * g + 1}")
        a(f"v_cvt_pk_bf16_f32 v{S[1] + 2 * g + 1}, v{S[0] + 4 * g + 2}, v{S[0] + 4 * g + 3}")
        if g == 3:
            a("s_mov_b32 exec_hi, 0")
        if wide:
            a(f"ds_write_b64 v{t2}, {vr(S[1] + 2 * g, 2)} offset:{16 * g}")
        else:
            a(f"buffer_store_dwordx2 {vr(S[1] + 2 * g, 2)}, v{t2}, s[{sO}:{sO+3}], s{sA} offen offset:{16 * g}{flags}")
    if wide:
        a(f"""s_mov_b32 exec_hi, -1
        v_lshlrev_b32 v{t1}, 4, v{vL}
        ds_read_b128 {vr(S[0], 4)}, v{t0} offset:{KB[1]}
        ds_read_b128 {vr(S[0] + 4, 4)}, v{t0} offset:{KB[1] + 1024}
        s_waitcnt lgkmcnt(1)
        buffer_store_dwordx4 {vr(S[0], 4)}, v{t1}, s[{sO}:{sO+3}], s{sA} offen{flags}
        s_mov_b32 exec_hi, 0xffff
        s_waitcnt lgkmcnt(0)
        buffer_store_dwordx4 {vr(S[0] + 4, 4)}, v{t1}, s[{sO}:{sO+3}], s{sA} offen offset:1024{flags}""")
    if opts.get("stamps"):
        a("s_mov_b64 exec, -1")
        stamp(a, opts, "stored")
        a("s_waitcnt vmcnt(0)")
        stamp(a, opts, "end")
        dbg = opts["stamps"] == 2
        a(f"""s_memrealtime s[76:77]
        s_load_dwordx2 s[4:5], s[0:1], {40 if dbg else 48}
        s_waitcnt lgkmcnt(0)
        s_mov_b32 s6, {64 if dbg else 0x2000000}
        s_mov_b32 s7, 0x20000
        s_lshl_b32 s8, s2, 3
        s_add_u32 s8, s8, s{sW}""")
        if dbg:
            a("""s_cmp_eq_u32 s8, 2047
            s_cselect_b32 s9, 1, 2
            s_cmp_eq_u32 s8, 0
            s_cselect_b32 s8, 0, s9""")
        a("s_lshl_b32 s8, s8, 5")
        if not dbg:
            a("s_add_u32 s8, s8, 0x1000000")
        a("""v_mov_b32 v0, 0
        v_mov_b32 v1, s74
        buffer_store_dword v1, v0, s[4:7], s8 offen""")
        for n in range(1, 7):
            if opts["slots"][n] == "mode":
                a(f"s_mov_b32 s9, s{sP}")
            else:
                a(f"s_sub_u32 s9, s{sTS + 2 * n}, s{sTS}")
            a("v_mov_b32 v1, s9")
            a(f"buffer_store_dword v1, v0, s[4:7], s8 offen offset:{4 * n}")
        a("s_sub_u32 s9, s76, s74")
        a("v_mov_b32 v1, s9")
        a("buffer_store_dword v1, v0, s[4:7], s8 offen offset:28")
    if opts.get("hold"):
        a.label("L_hold")
        a(f"""s_sleep 4
        s_memrealtime s[76:77]
        s_waitcnt lgkmcnt(0)
        s_sub_u32 s9, s76, s74
        s_cmp_lt_u32 s9, {opts["hold"]}
        s_cbranch_scc1 L_hold""")
    a.label("L_end")
    a("s_endpgm")


def slow_path(a):
    x0 = vT[2]
    a.label("L_slow")
    a(f"""v_xor_b32 v{vKW}, 0x8000, v{vKW}
    v_xor_b32 v{vRR}, 0x8000, v{vRR}
    s_xor_b32 s{sM0V}, s{sM0V}, s{sDMV}
    s_xor_b32 s{sM0K}, s{sM0K}, 0x8000
    v_mov_b32 v{MX[0]}, 0xff800000
    v_mov_b32 v{MX[1]}, 0xff800000
    s_mov_b32 s{sP}, 0""")
    a.label("L_slow_pass")
    a(f"s_mov_b32 s{sVOFF}, 0")
    a.label("L_slow_chunk")
    a("s_waitcnt vmcnt(0) lgkmcnt(0)")
    a("s_barrier")
    dma4(a, sM0K, vVG, sK, f"s{sVOFF}")
    dma4(a, sM0V, vVG, sV, f"s{sVOFF}")
    a("s_waitcnt vmcnt(0)")
    read_rows(a, R, vRR)
    a("s_waitcnt lgkmcnt(0)")
    normalise(a, R)
    write_frags(a, R, vKW)
    a("s_waitcnt lgkmcnt(0)")
    a("s_barrier")
    for j in range(8):
        a(f"ds_read_b128 {vr(KF[0], 4)}, v{vAK} offset:{j * 2048}")
        a(f"ds_read_b128 {vr(KF[0] + 4, 4)}, v{vAK} offset:{j * 2048 + 1024}")
        for which in range(2):
            for part in range(2):
                base = (V1, V2)[which][0] + 2 * part
                a(f"ds_read_b64_tr_b16 {vr(base, 2)}, v{vAV} offset:{j * 1792 + 896 * which + 224 * part}")
        a("s_waitcnt lgkmcnt(0)")
        a(f"s_call_b64 s[{sLINK}:{sLINK+1}], L_slow_tile")
    a(f"""s_add_u32 s{sVOFF}, s{sVOFF}, {CHB}
    s_cmp_lt_u32 s{sVOFF}, {HEADB}
    s_cbranch_scc1 L_slow_chunk
    s_cmp_eq_u32 s{sP}, 1
    s_cbranch_scc1 L_slow_done""")
    for x in range(2):
        a(f"""v_mov_b32 v{x0}, v{MX[x]}
        s_nop 1
        v_permlane32_swap_b32 v{x0}, v{MX[x]}
        s_nop 1
        v_max_f32 v{MX[x]}, v{x0}, v{MX[x]}""")
    a(f"""s_barrier
    v_lshlrev_b32 v{x0}, 3, v0
    ds_write_b64 v{x0}, {vr(MX[0], 2)}
    s_waitcnt lgkmcnt(0)
    s_barrier
    v_xor_b32 v{x0}, 2048, v{x0}
    ds_read_b64 {vr(S[0], 2)}, v{x0}
    s_waitcnt lgkmcnt(0)
    v_max_f32 v{MX[0]}, v{MX[0]}, v{S[0]}
    v_max_f32 v{MX[1]}, v{MX[1]}, v{S[0] + 1}
    s_mov_b32 s{sP}, 1
    s_branch L_slow_pass""")
    a.label("L_slow_done")
    a("s_barrier")
    a("s_nop 7")
    a("s_branch L_epi")
    a.label("L_slow_tile")
    for x in range(2):
        a(qk(x, 0, 0)); a(qk(x, 1, 0))
    a("s_nop 15")
    for x in range(2):
        for i in range(16):
            a(f"v_mul_f32 v{S[x] + i}, s{sT}, v{S[x] + i}")
    a(f"s_cmp_eq_u32 s{sP}, 1")
    a("s_cbranch_scc1 L_slow_exp")
    for x in range(2):
        for i in range(16):
            a(f"v_max_f32 v{MX[x]}, v{MX[x]}, v{S[x] + i}")
    a(f"s_setpc_b64 s[{sLINK}:{sLINK+1}]")
    a.label("L_slow_exp")
    for x in range(2):
        for i in range(16):
            a(f"v_sub_f32 v{S[x] + i}, v{S[x] + i}, v{MX[x]}")
            a(f"v_mul_f32 v{S[x] + i}, {hex(LOG2E)}, v{S[x] + i}")
            a(f"v_exp_f32 v{S[x] + i}, v{S[x] + i}")
    a("s_nop 1")
    for x in range(2):
        a(pv(x, 0, 0)); a(pv(x, 1, 0))
    a(f"s_setpc_b64 s[{sLINK}:{sLINK+1}]")


SLOTS = {0: ["start", "setup", "prebar", "loop", "mode", "done", "end"],
         1: ["start", "karg", "issued", "setup", "kdata", "prebar", "end"],
         2: ["start", "loop", "done", "sent", "stored", "mode", "end"],
         3: ["start", "kdata", "mid", "qdata", "lump2", "prebar", "end"]}


def build(opts):
    opts["slots"] = SLOTS[opts.get("pro", 0)]
    a = Asm()
    name = "standalone__qk_norm__prompt_kernel"
    a.raw(HEADER + f"; @launch grid=(256,1,1) block=(512,1,1) lds={LDS_BYTES}")
    a.raw('.amdgcn_target "amdgcn-amd-amdhsa--gfx950"\n.text')
    a.raw(f".globl {name}\n.p2align 8\n.type {name},@function\n{name}:")
    prologue(a, opts)
    main_loop(a, opts)
    epilogue(a, opts)
    side_blocks(a, opts)
    slow_path(a)
    txt = a.text()
    if opts.get("stamps"):
        txt = txt.replace(f"    s_mov_b32 s{sMODE}, 0\n", f"    s_mov_b32 s{sMODE}, 0\n    s_mov_b32 s{sP}, 99\n")
        txt = txt.replace(f"    s_mov_b32 s{sMODE}, 1\n", f"    s_mov_b32 s{sMODE}, 1\n    s_mov_b32 s{sP}, s{sI}\n")
    txt += f""".section .rodata,"a"
.p2align 6
.amdhsa_kernel {name}
  .amdhsa_next_free_vgpr {NVGPR}
  .amdhsa_next_free_sgpr {NSGPR}
  .amdhsa_accum_offset {NVGPR}
  .amdhsa_group_segment_fixed_size 0
  .amdhsa_kernarg_size 56
  .amdhsa_user_sgpr_count 2
  .amdhsa_user_sgpr_kernarg_segment_ptr 1
  .amdhsa_system_sgpr_workgroup_id_x 1
  .amdhsa_float_denorm_mode_32 3
.end_amdhsa_kernel
"""
    return txt


if __name__ == "__main__":
    opts = {}
    out = "standalone__qk_norm__prompt.s"
    for arg in sys.argv[1:]:
        k, _, v = arg.partition("=")
        if k == "out":
            out = v
        else:
            opts[k] = int(v)
    open(out, "w").write(build(opts))
```

```python
import sys

HEADER = """; Kernarg layout for this problem (56 bytes, ptrs only, base s[0:1]):
;   offset   0: d_in[0] q  shape=(1, 16, 4096, 28) dtype=bfloat16 strides=(3670016, 229376, 56, 2) contiguous=True
;   offset   8: d_in[1] k  shape=(1, 16, 4096, 28) dtype=bfloat16 strides=(3670016, 229376, 56, 2) contiguous=True
;   offset  16: d_in[2] v  shape=(1, 16, 4096, 28) dtype=bfloat16 strides=(3670016, 229376, 56, 2) contiguous=True
;   offset  32: d_out     shape=(1, 16, 4096, 28) dtype=bfloat16 (2 bytes/elem)
"""

HEADB = 229376
CHB = 28672
WSH = 262144
PAR = 0x10000
KB = [0, PAR]
VB = [32768, PAR + 32768]
ONES = 2 * PAR
QB = ONES + 14336
FLAG = QB + 16384
LDS_BYTES = FLAG + 256
T_LIMIT = 0x41800000
LOG2E = 0x3fb8aa3b
EPS = 0x358637bd

sK, sV, sO, sX, sG = 16, 20, 24, 28, 32
sH, sC, sW, sT, sI, sVOFF, sM0V, sKS = 36, 37, 38, 39, 40, 41, 42, 43
sA, sB, sD = 44, 45, 46
sPAR, sM0K, sKOFF, sRAW, sMODE, sPUB, sSLOW = 47, 48, 49, 50, 51, 52, 53
sWS = 54
sP = 56
sLINK = 58
sTS = 60
NSGPR = 80
vL, vKS, vVG, vKW, vAK, vAV, vDV, vIDX = 1, 2, 3, 4, 5, 6, 7, 8
vT = [9, 10, 11, 12, 13, 14, 15]
RQ = 16
QF = [[16, 20], [24, 28]]
O = [32, 48]
S = [64, 80]
KF = [96, 104]
V1 = [112, 116]
V2 = [120, 124]
R = 128
D = [144, 160]
A1, A2 = 176, 180
MX = [184, 185]
vRR, vPOLL = 186, 187
MXS = [188, 189]
NVGPR = 192


def first_pub(opts):
    return 2


def all_ready(opts):
    return sum(2 << (2 * n) for n in range(first_pub(opts) // 2, 8))


class Asm:
    def __init__(self):
        self.l = []
    def __call__(self, s):
        for x in s.split("\n"):
            self.l.append("    " + x.strip())
    def label(self, n):
        self.l.append(n + ":")
    def raw(self, s):
        self.l.append(s)
    def text(self):
        return "\n".join(self.l) + "\n"


def vr(a, n):
    return f"v[{a}:{a + n - 1}]"


def dma4(a, m0, vaddr, srd, soff, flags=""):
    a(f"s_mov_b32 m0, s{m0}")
    a("s_nop 0")
    for p in range(4):
        a(f"buffer_load_dwordx4 v{vaddr}, s[{srd}:{srd+3}], {soff} offen offset:{1024 * p}{flags} lds")


def read_rows(a, r, vaddr):
    for i in range(3):
        a(f"ds_read2_b64 {vr(r + 4 * i, 4)}, v{vaddr} offset0:{2 * i} offset1:{2 * i + 1}")
    a(f"ds_read_b64 {vr(r + 12, 2)}, v{vaddr} offset:48")


def normalise(a, r, scale=None, mid=None, mid2=None):
    nrm = vT[1]
    acc = MX[0]
    a(f"v_mfma_f32_32x32x16_bf16 {vr(D[0], 16)}, {vr(A1, 4)}, {vr(r, 4)}, 0")
    a(f"v_mfma_f32_32x32x16_bf16 {vr(D[0], 16)}, {vr(A2, 4)}, {vr(r + 4, 4)}, {vr(D[0], 16)}")
    a(f"v_mfma_f32_32x32x16_bf16 {vr(D[1], 16)}, {vr(A1, 4)}, {vr(r + 8, 4)}, 0")
    a(f"v_mfma_f32_32x32x16_bf16 {vr(D[1], 16)}, {vr(A2, 4)}, {vr(r + 12, 4)}, {vr(D[1], 16)}")
    if mid:
        mid(a)
    a("s_nop 3" if mid else "s_nop 9")
    for i in range(14):
        d = vr(D[0] + 2 * i, 2)
        if i == 0:
            a(f"v_pk_mul_f32 {vr(acc, 2)}, {d}, {d}")
        else:
            a(f"v_pk_fma_f32 {vr(acc, 2)}, {d}, {d}, {vr(acc, 2)}")
    a(f"v_add_f32 v{nrm}, v{acc}, v{acc + 1}")
    a(f"v_sqrt_f32 v{nrm}, v{nrm}")
    a("s_nop 0")
    a(f"v_add_f32 v{nrm}, {hex(EPS)}, v{nrm}")
    a(f"v_rcp_f32 v{nrm}, v{nrm}")
    a("s_nop 0")
    if scale is not None:
        a(f"v_mul_f32 v{nrm}, v{scale}, v{nrm}")
    if mid2:
        mid2(a)
    for i in range(14):
        d = D[0] + 2 * i
        a(f"v_pk_mul_f32 {vr(d, 2)}, {vr(d, 2)}, {vr(nrm, 2)} op_sel_hi:[1,0]")
        if i >= 1:
            a(f"v_cvt_pk_bf16_f32 v{r + i - 1}, v{d - 2}, v{d - 1}")
    a(f"v_cvt_pk_bf16_f32 v{r + 13}, v{D[0] + 26}, v{D[0] + 27}")


def piece_off(p):
    return (p >> 1) * 1024 + (p & 1) * 512


def write_frags(a, r, vaddr):
    for p in range(4):
        a(f"ds_write_b128 v{vaddr}, {vr(r + 4 * p, 4)} offset:{piece_off(p)}")


def rdK(f, tile):
    b = tile & 1
    return f"ds_read_b128 {vr(KF[b] + 4 * f, 4)}, v{vAK} offset:{(tile % 8) * 2048 + 1024 * f}"


def rdV(which, part, tile):
    b = tile & 1
    base = (V1, V2)[which][b] + 2 * part
    return f"ds_read_b64_tr_b16 {vr(base, 2)}, v{vAV} offset:{(tile % 8) * 1792 + 896 * which + 224 * part}"


def qk(x, f, tile):
    k = KF[tile & 1] + 4 * f
    c = "0" if f == 0 else vr(S[x], 16)
    return f"v_mfma_f32_32x32x16_bf16 {vr(S[x], 16)}, {vr(k, 4)}, {vr(QF[x][f], 4)}, {c}"


def pv(x, which, tile):
    v = (V1, V2)[which][tile & 1]
    return f"v_smfmac_f32_32x32x32_bf16 {vr(O[x], 16)}, {vr(v, 4)}, {vr(S[x] + 8 * which, 8)}, v{vIDX}"


def half(a, x, j, pre=None, slots=None):
    e = [f"v_exp_f32 v{S[x] + i}, v{S[x] + i}" for i in range(16)]
    if x == 0:
        m = [pv(1, 1, j - 1), qk(1, 0, j), qk(1, 1, j), pv(0, 0, j)]
        r = [rdV(0, 1, j + 1), rdV(1, 0, j + 1), rdV(1, 1, j + 1), None]
    else:
        m = [pv(0, 1, j), qk(0, 0, j + 1), qk(0, 1, j + 1), pv(1, 0, j)]
        r = [rdK(0, j + 2), rdK(1, j + 2), None, rdV(0, 0, j + 2)]
    cuts = [2, 6, 10, 14]
    pos = 0
    for g in range(4):
        for i in range(pos, cuts[g]):
            a(e[i])
        pos = cuts[g]
        if g == 0 and pre:
            pre(a)
        a(m[g])
        if r[g]:
            a(r[g])
        for ins in (slots or {}).get(g, []):
            a(ins)
    for i in range(pos, 16):
        a(e[i])


HOLD_POINTS = [None, "loop", "done", "karg", "issued", "kdata", "lump2", "prebar", "setup", "qdata"]


def stamp(a, opts, name):
    if opts.get("holdk") and HOLD_POINTS[opts["holdk"]] == name:
        a("s_memrealtime s[60:61]")
    if opts.get("stamps") and name in opts["slots"]:
        n = opts["slots"].index(name)
        a(f"s_memtime s[{sTS + 2 * n}:{sTS + 2 * n + 1}]")


def stamp_it(a, opts, name, kind):
    if opts.get("stamps") and name in opts["slots"]:
        a(f"s_cmp_eq_u32 s{sI}, {opts.get('it', 0)}")
        a(f"s_cbranch_scc0 L_st_{name}_{kind}")
        stamp(a, opts, name)
        a.label(f"L_st_{name}_{kind}")


def prologue(a, opts):
    t0, t1, t2, t3, t4 = vT[2:7]
    a("s_cmp_ge_u32 s2, 256")
    a("s_cbranch_scc1 L_end")
    stamp(a, opts, "start")
    if opts.get("stamps") or opts.get("hold"):
        a("s_memrealtime s[74:75]")
    if opts.get("hold"):
        a("s_memrealtime s[60:61]")
    a("s_load_dwordx8 s[4:11], s[0:1], 0")
    a("s_load_dwordx4 s[12:15], s[0:1], 32")
    a(f"s_load_dwordx2 s[{sWS}:{sWS+1}], s[0:1], 48")
    a(f"""v_lshrrev_b32 v{t0}, 6, v0
    v_and_b32 v{vL}, 63, v0
    s_and_b32 s{sA}, s2, 7
    v_readfirstlane_b32 s{sW}, v{t0}
    s_lshl_b32 s{sA}, s{sA}, 1
    s_bfe_u32 s{sB}, s2, 0x10003
    s_add_u32 s{sH}, s{sA}, s{sB}
    s_lshr_b32 s{sC}, s2, 4""")
    if opts.get("pf", 1):
        a(f"""s_cmp_eq_u32 s{sW}, 7
        s_cbranch_scc0 L_nopf
        s_getpc_b64 s[{sG}:{sG+1}]
        s_mov_b32 s{sG+2}, L_slow-standalone__qk_norm__prompt_kernel
        s_mov_b32 s{sG+3}, 0x20000
        v_lshlrev_b32 v{t0}, 7, v{vL}
        buffer_load_dword v{vPOLL}, v{t0}, s[{sG}:{sG+3}], 0 offen
        s_movk_i32 s{sA}, 0x2000
        buffer_load_dword v{vPOLL}, v{t0}, s[{sG}:{sG+3}], s{sA} offen""")
        a.label("L_nopf")
    a(f"""s_mul_i32 s{sA}, s{sH}, {HEADB}
    s_mul_i32 s{sD}, s{sC}, 14336
    s_add_u32 s{sB}, s{sD}, s{sA}
    s_lshr_b32 s{sKS}, s{sW}, 2
    s_mul_i32 s{sM0V}, s{sW}, 3584
    v_lshlrev_b32 v{vAK}, 4, v{vL}
    v_add_u32 v{vVG}, s{sM0V}, v{vAK}
    s_add_u32 s{sM0V}, s{sM0V}, {VB[0]}
    s_lshl_b32 s{sM0K}, s{sW}, 12
    s_mov_b32 s{sK+2}, {HEADB}
    s_mov_b32 s{sK+3}, 0x20000
    s_mov_b32 s{sX+3}, 0x20000
    s_mov_b32 s{sV+2}, {HEADB}
    s_mov_b32 s{sV+3}, 0x20000
    s_mov_b32 s{sO+2}, 14336
    s_mov_b32 s{sO+3}, 0x20000
    s_lshr_b32 s{sD}, s{sH}, 1
    s_lshl_b32 s{sD}, s{sD}, 2
    s_and_b32 s{sPUB}, s{sC}, 1
    s_cmp_eq_u32 s{sPUB}, s{sKS}
    s_cselect_b32 s{sPUB}, 1, 0
    s_cmp_ge_u32 s{sC}, {first_pub(opts)}
    s_cselect_b32 s{sPUB}, s{sPUB}, 0
    s_lshr_b32 s{sKOFF}, s{sC}, 1
    s_max_u32 s{sKOFF}, s{sKOFF}, 1
    s_mul_i32 s{sVOFF}, s{sKOFF}, {CHB}
    s_lshl_b32 s{sKOFF}, s{sKOFF}, 15
    s_waitcnt lgkmcnt(0)""")
    stamp(a, opts, "karg")
    a(f"""s_add_u32 s{sK}, s6, s{sA}
    s_addc_u32 s{sK+1}, s7, 0
    s_add_u32 s{sV}, s8, s{sA}
    s_addc_u32 s{sV+1}, s9, 0""")
    a(f"""s_add_u32 s{sX}, s4, s{sB}
    s_addc_u32 s{sX+1}, s5, 0
    s_mov_b32 s{sX+2}, 14336
    s_add_u32 s{sMODE}, s{sM0K}, {QB}""")
    xk = opts.get("xk", 0)

    def load_x(a):
        a(f"s_cmp_eq_u32 s{sKS}, 0")
        a("s_cbranch_scc0 L_nox")
        dma4(a, sMODE, vVG, sX, 0)
        a.label("L_nox")

    def load_k(a):
        dma4(a, sM0K, vVG, sK, 0)
    (load_x if xk else load_k)(a)
    a(f"s_load_dword s{sT}, s[10:11], s{sD}")
    stamp(a, opts, "issued")
    a(f"""v_mov_b32 v{R+14}, 0x3f80
    s_mov_b32 vcc_lo, 0xaaaaaaaa
    s_mov_b32 vcc_hi, 0xaaaaaaaa
    v_cndmask_b32 v{t1}, v{R+14}, 1.0, vcc""")
    for p in range(8):
        lo = 3 << (8 * (p >> 1) + 2 * (p & 1))
        a(f"s_mov_b32 vcc_lo, {hex(lo)}")
        a(f"s_mov_b32 vcc_hi, {hex(lo << 4)}")
        a(f"v_cndmask_b32 v{A1 + p}, 0, v{t1}, vcc")
    a(f"""v_mov_b32 v{R+15}, 0
    v_lshrrev_b32 v{t0}, 5, v0
    v_mul_u32_u24 v{t0}, 1536, v{t0}
    v_lshl_add_u32 v{vKW}, v0, 4, v{t0}
    v_mad_u32_u24 v{vRR}, v{vL}, 56, s{sM0K}""")
    a(f"""s_add_u32 s{sO}, s12, s{sB}
    s_addc_u32 s{sO+1}, s13, 0
    s_mov_b32 s{sG}, s14
    s_mov_b32 s{sG+1}, s15
    s_mov_b32 s{sG+2}, 256
    s_mov_b32 s{sG+3}, 0x20000
    s_lshl_b32 s{sA}, s{sKS}, 14
    v_add_u32 v{vAK}, s{sA}, v{vAK}
    s_mul_i32 s{sA}, s{sKS}, {8 * 1792}
    s_add_u32 s{sA}, s{sA}, {VB[0]}
    v_and_b32 v{t0}, 15, v0
    v_bfe_u32 v{t1}, v0, 2, 2
    v_mad_u32_u24 v{t0}, v{t1}, 3, v{t0}
    v_lshrrev_b32 v{t1}, 4, v{vL}
    v_lshl_add_u32 v{t0}, v{t1}, 2, v{t0}
    v_lshrrev_b32 v{t1}, 5, v{vL}
    v_mad_u32_u24 v{t0}, v{t1}, 48, v{t0}
    v_lshl_add_u32 v{vAV}, v{t0}, 3, s{sA}
    v_mov_b32 v{vDV}, {PAR}
    v_lshlrev_b32 v{t1}, 6, v{t1}
    v_sub_u32 v{t1}, {ONES + 224}, v{t1}
    s_mov_b32 vcc_lo, 0x88880000
    s_mov_b32 vcc_hi, 0x88880000
    v_cndmask_b32 v{vAV}, v{vAV}, v{t1}, vcc
    v_cndmask_b32 v{vDV}, v{vDV}, v{R+15}, vcc""")
    z = V2[1]
    a(f"""v_mov_b64 {vr(z, 2)}, 0
    v_mov_b64 {vr(z + 2, 2)}, 0
    v_mov_b32 v{vIDX}, 0xdddddddd
    v_mov_b32 v{RQ+15}, 0
    v_mfma_f32_32x32x16_bf16 {vr(O[0], 16)}, {vr(z, 4)}, {vr(z, 4)}, 0
    v_add_u32 v{t2}, {QB}, v{vRR}
    v_add_u32 v{t3}, {QB}, v{vKW}
    v_mfma_f32_32x32x16_bf16 {vr(O[1], 16)}, {vr(z, 4)}, {vr(z, 4)}, 0
    s_cmp_eq_u32 s{sW}, 6
    s_cbranch_scc0 L_noones
    v_lshrrev_b32 v{t0}, 3, v{vL}
    v_mul_u32_u24 v{t0}, 1792, v{t0}
    v_bfe_u32 v{t1}, v0, 2, 1
    v_mul_u32_u24 v{t1}, 896, v{t1}
    v_add_u32 v{t0}, v{t0}, v{t1}
    v_bfe_u32 v{t1}, v0, 1, 1
    v_mul_u32_u24 v{t1}, 224, v{t1}
    v_add_u32 v{t0}, v{t0}, v{t1}
    v_and_b32 v{t1}, 1, v0
    v_lshl_add_u32 v{t0}, v{t1}, 6, v{t0}
    v_add_u32 v{t0}, {ONES + 160}, v{t0}
    v_mov_b32 v{t1}, {FLAG}
    ds_write_b64 v{t0}, {vr(R + 14, 2)}
    ds_write_b32 v{t1}, v{z}""")
    a.label("L_noones")
    a(f"v_mfma_f32_32x32x16_bf16 {vr(S[1], 16)}, {vr(z, 4)}, {vr(z, 4)}, 0")
    stamp(a, opts, "setup")
    (load_k if xk else load_x)(a)

    def temperature(a, with_scale):
        a(f"""s_bitcmp1_b32 s{sH}, 0
        s_cselect_b32 s{sA}, 0, 16
        s_lshl_b32 s{sT}, s{sT}, s{sA}
        s_and_b32 s{sT}, s{sT}, 0xffff0000
        s_and_b32 s{sA}, s{sT}, 0x7fffffff
        s_cmp_gt_u32 s{sA}, {hex(T_LIMIT)}
        s_cselect_b32 s{sSLOW}, 1, 0
        s_cselect_b64 vcc, -1, 0
        s_mul_i32 s{sA}, s{sH}, {WSH}
        s_add_u32 s{sX}, s{sWS}, s{sA}
        s_addc_u32 s{sX+1}, s{sWS+1}, 0
        s_mov_b32 s{sX+2}, {WSH}""")
        if with_scale:
            a(f"""v_mov_b32 v{t4}, {hex(LOG2E)}
            v_mul_f32 v{t4}, s{sT}, v{t4}
            v_cvt_pk_bf16_f32 v{RQ+14}, -abs(v{t4}), 0
            v_cndmask_b32 v{t4}, v{t4}, 1.0, vcc
            v_cndmask_b32 v{RQ+14}, v{RQ+14}, v{R+15}, vcc""")

    def load_v0(a):
        dma4(a, sM0V, vVG, sV, 0)

    a(f"s_cmp_eq_u32 s{sKS}, 0")
    a("s_cbranch_scc1 L_two")
    a("s_waitcnt vmcnt(0)")
    stamp(a, opts, "kdata")
    read_rows(a, R, vRR)
    a("s_waitcnt lgkmcnt(0)")
    temperature(a, False)
    normalise(a, R, mid=load_v0)
    write_frags(a, R, vKW)
    a("s_waitcnt vmcnt(0)")
    a("s_branch L_join")
    a.label("L_two")
    a("s_waitcnt vmcnt(4)")
    stamp(a, opts, "kdata")
    r1, a1, r2, a2 = (RQ, t2, R, vRR) if xk else (R, vRR, RQ, t2)
    read_rows(a, r1, a1)
    a("s_waitcnt lgkmcnt(0)")
    temperature(a, True)

    def second_rows(a):
        stamp(a, opts, "mid")
        a("s_waitcnt vmcnt(4)")
        stamp(a, opts, "qdata")
        read_rows(a, r2, a2)
    if xk:
        normalise(a, RQ, scale=t4, mid=load_v0, mid2=second_rows)
        write_frags(a, RQ, t3)
        a("s_waitcnt lgkmcnt(4)")
        normalise(a, R)
        write_frags(a, R, vKW)
    else:
        normalise(a, R, mid=load_v0, mid2=second_rows)
        write_frags(a, R, vKW)
        a("s_waitcnt lgkmcnt(4)")
        normalise(a, RQ, scale=t4)
        write_frags(a, RQ, t3)
    a("s_waitcnt vmcnt(0)")
    a.label("L_join")
    stamp(a, opts, "lump2")
    a(f"s_mov_b32 s{sPAR}, {PAR}")
    a(f"""v_lshl_add_u32 v{vKS}, v{vL}, 4, s{sM0K}
    s_and_b32 s{sA}, s{sW}, 3
    s_lshl_b32 s{sA}, s{sA}, 12
    s_add_u32 s{sA}, s{sA}, {QB}
    v_lshl_add_u32 v{t0}, v{vL}, 4, s{sA}
    s_mov_b32 s{sMODE}, 0
    s_mov_b32 s{sRAW}, 0
    s_mov_b32 s{sI}, 0
    s_waitcnt lgkmcnt(0)""")
    stamp(a, opts, "prebar")
    a("s_barrier")
    a(rdK(0, 0))
    a(f"ds_read_b128 {vr(QF[0][0], 4)}, v{t0}")
    a(rdK(1, 0))
    a(f"ds_read_b128 {vr(QF[0][1], 4)}, v{t0} offset:1024")
    a(f"ds_read_b128 {vr(QF[1][0], 4)}, v{t0} offset:2048")
    a(f"ds_read_b128 {vr(QF[1][1], 4)}, v{t0} offset:3072")
    a(f"s_cmp_eq_u32 s{sSLOW}, 1")
    a("s_cbranch_scc1 L_slow")
    a(rdV(0, 0, 0)); a(rdV(0, 1, 0)); a(rdV(1, 0, 0)); a(rdV(1, 1, 0))
    a("s_waitcnt lgkmcnt(6)")
    a(qk(0, 0, 0)); a(qk(0, 1, 0))
    a(rdK(0, 1)); a(rdK(1, 1)); a(rdV(0, 0, 1))
    a("s_nop 7")
    a("s_waitcnt lgkmcnt(3)")
    stamp(a, opts, "loop")


def dma1(p, vaddr, srd, soff, flags=""):
    return f"buffer_load_dwordx4 v{vaddr}, s[{srd}:{srd+3}], s{soff} offen offset:{1024 * p}{flags} lds"


def iteration(a, opts, kind):
    poll_at = opts.get("poll", 2)
    kdma_at = opts.get("kdma", 4)
    lump0_at = opts.get("lump0", 4)
    lump_at = opts.get("lump", 5)
    t0, t1 = vT[2], vT[3]
    sl = {(x, j): {} for x in range(2) for j in range(8)}

    def put(x, j, g, ins):
        sl[(x, j)].setdefault(g, []).append(ins)

    free = [(0, 3), (1, 2)]
    groups = {"first": [("K", 0), ("V", 2)], "hook": [("V", 0)], "lean": [("V", 0), ("G", 2)]}[kind]
    for what, j0 in groups:
        put(0, j0, 0, f"s_xor_b32 m0, s{sM0V if what == 'V' else sM0K}, s{sPAR}")
        for p in range(4):
            x, g = free[p & 1]
            ins = {"K": dma1(p, vVG, sK, sVOFF), "V": dma1(p, vVG, sV, sVOFF), "G": dma1(p, vKS, sX, sKOFF, " sc1")}[what]
            put(x, j0 + (p >> 1), g, ins)
    for j in range(8):
        if j != 6:
            put(0, j, 3, "s_waitcnt lgkmcnt(2)")
    for j in (1, 3, 7):
        put(1, j, 3, f"s_setprio {({7: 2, 1: 1, 3: 0})[j]}")
    put(0, 7, 3, f"s_add_u32 s{sKOFF}, s{sKOFF}, 32768")
    put(1, 6, 2, f"s_add_u32 s{sVOFF}, s{sVOFF}, {CHB}")
    put(0, 6, 3, f"s_xor_b32 s{sPAR}, s{sPAR}, {PAR}")
    put(1, 7, 0, f"s_cmp_eq_u32 s{sKOFF}, {8 * 32768}")
    put(1, 7, 2, f"s_cselect_b32 s{sKOFF}, 32768, s{sKOFF}")
    put(1, 7, 1, f"s_cselect_b32 s{sVOFF}, {CHB}, s{sVOFF}")

    def sync(a):
        a("s_waitcnt vmcnt(0) lgkmcnt(0)")
        a("s_barrier")
        a("s_setprio 3")
        a(f"v_xor_b32 v{vAK}, {PAR}, v{vAK}")
        a(f"v_xor_b32 v{vAV}, v{vDV}, v{vAV}")

    for j in range(8):
        half(a, 0, j, slots=sl[(0, j)])
        half(a, 1, j, pre=sync if j == 6 else None, slots=sl[(1, j)])
        stamp_it(a, opts, f"e{j}", kind)
        if kind == "first":
            if j == lump0_at:
                a("s_waitcnt vmcnt(4)")
                a(f"s_call_b64 s[{sLINK}:{sLINK+1}], L_lump")
            if j == 6:
                a(f"""s_and_b32 s{sA}, s{sW}, 3
                s_cselect_b32 s{sA}, 0, s{sPUB}
                s_cmp_eq_u32 s{sA}, 2
                s_cbranch_scc1 L_signal""")
                a.label("L_signalled")
        if kind == "hook":
            if j == poll_at:
                a(f"s_cmp_eq_u32 s{sW}, 0")
                a("s_cbranch_scc1 L_poll")
                a.label("L_polled")
            if j == poll_at + 1:
                a(f"s_cmp_eq_u32 s{sW}, 0")
                a("s_cbranch_scc1 L_relay")
                a.label("L_relayed")
            if j == kdma_at:
                a(f"""v_mov_b32 v{t0}, {FLAG}
                ds_read_b32 v{t0}, v{t0}
                s_xor_b32 m0, s{sM0K}, s{sPAR}
                s_lshr_b32 s{sB}, s{sKOFF}, 14
                s_add_u32 s{sB}, s{sB}, 1
                s_waitcnt lgkmcnt(0)
                v_readfirstlane_b32 s{sA}, v{t0}
                s_cmp_eq_u32 s{sA}, {hex(0x7fffffff if opts.get("x_self") else all_ready(opts))}
                s_cselect_b32 s{sMODE}, 1, 0
                s_bitcmp1_b32 s{sA}, {0 if opts.get("x_self") else "s%d" % sB}
                s_cbranch_scc0 L_raw""")
                for p in range(4):
                    a(dma1(p, vKS, sX, sKOFF, " sc1"))
                a.label("L_kdone")
            if j == lump_at:
                a(f"s_cmp_eq_u32 s{sRAW}, 1")
                a("s_cbranch_scc0 L_lumped")
                a("s_waitcnt vmcnt(0)")
                a(f"s_call_b64 s[{sLINK}:{sLINK+1}], L_lump")
                a.label("L_lumped")
        stamp_it(a, opts, f"h{j}", kind)


def main_loop(a, opts):
    a("s_setprio 2")
    iteration(a, opts, "first")
    a(f"s_mov_b32 s{sI}, 1")
    a.label("L_hook")
    iteration(a, opts, "hook")
    a(f"""s_add_u32 s{sI}, s{sI}, 1
    s_cmp_eq_u32 s{sI}, 8
    s_cbranch_scc1 L_tail
    s_cmp_eq_u32 s{sMODE}, 0
    s_cbranch_scc1 L_hook""")
    a.raw(".p2align 6")
    a.label("L_lean")
    iteration(a, opts, "lean")
    a(f"""s_add_u32 s{sI}, s{sI}, 1
    s_cmp_lt_u32 s{sI}, 8
    s_cbranch_scc1 L_lean""")
    a.label("L_tail")
    a("s_nop 0")
    a(pv(1, 1, 7))


def side_blocks(a, opts):
    t0, t1 = vT[2], vT[3]
    a.label("L_poll")
    a(f"""s_lshl_b32 s{sA}, s{sH}, 4
    v_mov_b32 v{t0}, 0
    buffer_load_dword v{vPOLL}, v{t0}, s[{sG}:{sG+3}], s{sA} offen sc1
    s_branch L_polled""")
    a.label("L_relay")
    a(f"""v_mov_b32 v{t0}, {FLAG}
    s_waitcnt vmcnt(0)
    ds_write_b32 v{t0}, v{vPOLL}
    s_branch L_relayed""")
    a.label("L_signal")
    a(f"""s_and_b32 s{sA}, s{sC}, 14
    s_lshl_b32 s{sA}, 1, s{sA}
    v_mov_b32 v{t1}, s{sA}
    v_mov_b32 v{t0}, 0
    s_lshl_b32 s{sA}, s{sH}, 4
    s_mov_b64 exec, 1
    buffer_atomic_add v{t1}, v{t0}, s[{sG}:{sG+3}], s{sA} offen sc1
    s_mov_b64 exec, -1
    s_branch L_signalled""")
    a.label("L_raw")
    a(f"s_mov_b32 s{sRAW}, 1")
    for p in range(4):
        a(dma1(p, vVG, sK, sVOFF))
    a("s_branch L_kdone")
    a.label("L_lump")
    a(f"""s_mov_b32 s{sRAW}, 0
    v_add_u32 v{t0}, s{sPAR}, v{vRR}
    v_add_u32 v{t1}, s{sPAR}, v{vKW}""")
    read_rows(a, R, t0)
    a("s_waitcnt lgkmcnt(0)")
    normalise(a, R)
    write_frags(a, R, t1)
    a(f"""s_cmp_eq_u32 s{sPUB}, 1
    s_cbranch_scc0 L_lump_ret
    s_mov_b32 s{sPUB}, 2""")
    for p in range(4):
        a(f"buffer_store_dwordx4 {vr(R + 4 * p, 4)}, v{vKW}, s[{sX}:{sX+3}], s{sKOFF} offen offset:{piece_off(p)} sc1")
    a.label("L_lump_ret")
    a(f"s_setpc_b64 s[{sLINK}:{sLINK+1}]")


def epilogue(a, opts):
    a.label("L_epi")
    stamp(a, opts, "done")
    t0, t1, t2 = vT[0:3]
    a(f"""s_lshl_b32 s{sB}, s{sW}, 12
    v_lshl_add_u32 v{t0}, v{vL}, 4, s{sB}
    v_xor_b32 v{t1}, 0x4000, v{t0}
    v_and_b32 v{t2}, 31, v0
    v_mul_u32_u24 v{t2}, 56, v{t2}
    v_bfe_u32 v{vT[3]}, v0, 5, 1
    v_lshl_add_u32 v{t2}, v{vT[3]}, 3, v{t2}
    s_and_b32 s{sA}, s{sW}, 3
    s_lshl_b32 s{sA}, s{sA}, 1
    s_add_u32 s{sA}, s{sA}, s{sKS}
    s_mul_i32 s{sA}, s{sA}, {32 * 56}
    s_waitcnt lgkmcnt(0)
    s_cmp_eq_u32 s{sKS}, 0
    s_cbranch_scc1 L_epi0""")
    for x in (1, 0):
        if x == 0:
            a.label("L_epi0")
        keep, send = O[x], O[1 - x]
        if x == 0:
            a("s_nop 3")
        for p in range(4):
            a(f"ds_write_b128 v{t0}, {vr(send + 4 * p, 4)} offset:{1024 * p}")
        a("s_waitcnt lgkmcnt(0)")
        stamp(a, opts, "sent")
        a("s_barrier")
        for p in (3, 0, 1, 2):
            a(f"ds_read_b128 {vr(S[0] + 4 * p, 4)}, v{t1} offset:{1024 * p}")
        for n, p in enumerate((3, 0, 1, 2)):
            a(f"s_waitcnt lgkmcnt({3 - n})")
            for i in (0, 2):
                a(f"v_pk_add_f32 {vr(S[0] + 4 * p + i, 2)}, {vr(S[0] + 4 * p + i, 2)}, {vr(keep + 4 * p + i, 2)}")
        if x == 1:
            a("s_branch L_epi1")
    a.label("L_epi1")
    l0, l1 = vT[4], vT[3]
    a(f"""v_mov_b32 v{l0}, v{S[0] + 12}
    v_mov_b32 v{l1}, v{S[0] + 12}
    s_nop 1
    v_permlane32_swap_b32 v{l0}, v{l1}
    s_nop 1
    v_rcp_f32 v{l1}, v{l1}
    s_nop 0""")
    flags = {0: "", 1: " sc1", 2: " nt", 3: " sc0 sc1"}[opts.get("stf", 0)]
    wide = opts.get("wide", 1)
    if wide:
        a(f"s_add_u32 s{sB}, s{sB}, {VB[0]}")
        a(f"v_add_u32 v{t2}, s{sB}, v{t2}")
    for g in range(4):
        for i in (0, 2):
            a(f"v_pk_mul_f32 {vr(S[0] + 4 * g + i, 2)}, {vr(S[0] + 4 * g + i, 2)}, {vr(l1, 2)} op_sel_hi:[1,0]")
        a(f"v_cvt_pk_bf16_f32 v{S[1] + 2 * g}, v{S[0] + 4 * g}, v{S[0] + 4 * g + 1}")
        a(f"v_cvt_pk_bf16_f32 v{S[1] + 2 * g + 1}, v{S[0] + 4 * g + 2}, v{S[0] + 4 * g + 3}")
        if g == 3:
            a("s_mov_b32 exec_hi, 0")
        if wide:
            a(f"ds_write_b64 v{t2}, {vr(S[1] + 2 * g, 2)} offset:{16 * g}")
        else:
            a(f"buffer_store_dwordx2 {vr(S[1] + 2 * g, 2)}, v{t2}, s[{sO}:{sO+3}], s{sA} offen offset:{16 * g}{flags}")
    if wide:
        a(f"""s_mov_b32 exec_hi, -1
        v_lshlrev_b32 v{t1}, 4, v{vL}
        ds_read_b128 {vr(S[0], 4)}, v{t0} offset:{VB[0]}
        ds_read_b128 {vr(S[0] + 4, 4)}, v{t0} offset:{VB[0] + 1024}
        s_waitcnt lgkmcnt(1)
        buffer_store_dwordx4 {vr(S[0], 4)}, v{t1}, s[{sO}:{sO+3}], s{sA} offen{flags}
        s_mov_b32 exec_hi, 0xffff
        s_waitcnt lgkmcnt(0)
        buffer_store_dwordx4 {vr(S[0] + 4, 4)}, v{t1}, s[{sO}:{sO+3}], s{sA} offen offset:1024{flags}""")
    if opts.get("stamps"):
        a("s_mov_b64 exec, -1")
        stamp(a, opts, "stored")
        a("s_waitcnt vmcnt(0)")
        stamp(a, opts, "end")
        dbg = opts["stamps"] == 2
        a(f"""s_memrealtime s[76:77]
        s_load_dwordx2 s[4:5], s[0:1], {40 if dbg else 48}
        s_waitcnt lgkmcnt(0)
        s_mov_b32 s6, {64 if dbg else 0x2000000}
        s_mov_b32 s7, 0x20000
        s_lshl_b32 s8, s2, 3
        s_add_u32 s8, s8, s{sW}""")
        if dbg:
            a("""s_cmp_eq_u32 s8, 2047
            s_cselect_b32 s9, 1, 2
            s_cmp_eq_u32 s8, 0
            s_cselect_b32 s8, 0, s9""")
        a("s_lshl_b32 s8, s8, 5")
        if not dbg:
            a("s_add_u32 s8, s8, 0x1000000")
        a("""v_mov_b32 v0, 0
        v_mov_b32 v1, s74
        buffer_store_dword v1, v0, s[4:7], s8 offen""")
        for n in range(1, 7):
            if opts["slots"][n] == "mode":
                a(f"s_mov_b32 s9, s{sP}")
            else:
                a(f"s_sub_u32 s9, s{sTS + 2 * n}, s{sTS}")
            a("v_mov_b32 v1, s9")
            a(f"buffer_store_dword v1, v0, s[4:7], s8 offen offset:{4 * n}")
        a("s_sub_u32 s9, s76, s74")
        a("v_mov_b32 v1, s9")
        a("buffer_store_dword v1, v0, s[4:7], s8 offen offset:28")
    if opts.get("hold"):
        if opts.get("holdk"):
            a(f"""s_waitcnt lgkmcnt(0)
            s_sub_u32 s8, s60, s74
            s_lshl_b32 s8, s8, {0 if opts["holdk"] == 2 else 2}
            s_add_u32 s74, s74, s8""")
        a.label("L_hold")
        a(f"""s_sleep 4
        s_memrealtime s[76:77]
        s_waitcnt lgkmcnt(0)
        s_sub_u32 s9, s76, s74
        s_cmp_lt_i32 s9, {opts["hold"]}
        s_cbranch_scc1 L_hold""")
    a.label("L_end")
    a("s_endpgm")


def slow_path(a):
    x0 = vT[2]
    a.label("L_slow")
    a(f"""v_mov_b32 v{MXS[0]}, 0xff800000
    v_mov_b32 v{MXS[1]}, 0xff800000
    s_mov_b32 s{sP}, 0""")
    a.label("L_slow_pass")
    a(f"s_mov_b32 s{sVOFF}, 0")
    a.label("L_slow_chunk")
    a("s_waitcnt vmcnt(0) lgkmcnt(0)")
    a("s_barrier")
    dma4(a, sM0K, vVG, sK, f"s{sVOFF}")
    dma4(a, sM0V, vVG, sV, f"s{sVOFF}")
    a("s_waitcnt vmcnt(0)")
    read_rows(a, R, vRR)
    a("s_waitcnt lgkmcnt(0)")
    normalise(a, R)
    write_frags(a, R, vKW)
    a("s_waitcnt lgkmcnt(0)")
    a("s_barrier")
    for j in range(8):
        a(f"ds_read_b128 {vr(KF[0], 4)}, v{vAK} offset:{j * 2048}")
        a(f"ds_read_b128 {vr(KF[0] + 4, 4)}, v{vAK} offset:{j * 2048 + 1024}")
        for which in range(2):
            for part in range(2):
                base = (V1, V2)[which][0] + 2 * part
                a(f"ds_read_b64_tr_b16 {vr(base, 2)}, v{vAV} offset:{j * 1792 + 896 * which + 224 * part}")
        a("s_waitcnt lgkmcnt(0)")
        a(f"s_call_b64 s[{sLINK}:{sLINK+1}], L_slow_tile")
    a(f"""s_add_u32 s{sVOFF}, s{sVOFF}, {CHB}
    s_cmp_lt_u32 s{sVOFF}, {HEADB}
    s_cbranch_scc1 L_slow_chunk
    s_cmp_eq_u32 s{sP}, 1
    s_cbranch_scc1 L_slow_done""")
    for x in range(2):
        a(f"""v_mov_b32 v{x0}, v{MXS[x]}
        s_nop 1
        v_permlane32_swap_b32 v{x0}, v{MXS[x]}
        s_nop 1
        v_max_f32 v{MXS[x]}, v{x0}, v{MXS[x]}""")
    a(f"""s_barrier
    v_lshlrev_b32 v{x0}, 3, v0
    ds_write_b64 v{x0}, {vr(MXS[0], 2)}
    s_waitcnt lgkmcnt(0)
    s_barrier
    v_xor_b32 v{x0}, 2048, v{x0}
    ds_read_b64 {vr(S[0], 2)}, v{x0}
    s_waitcnt lgkmcnt(0)
    v_max_f32 v{MXS[0]}, v{MXS[0]}, v{S[0]}
    v_max_f32 v{MXS[1]}, v{MXS[1]}, v{S[0] + 1}
    s_mov_b32 s{sP}, 1
    s_branch L_slow_pass""")
    a.label("L_slow_done")
    a("s_barrier")
    a("s_nop 7")
    a("s_branch L_epi")
    a.label("L_slow_tile")
    for x in range(2):
        a(qk(x, 0, 0)); a(qk(x, 1, 0))
    a("s_nop 15")
    for x in range(2):
        for i in range(16):
            a(f"v_mul_f32 v{S[x] + i}, s{sT}, v{S[x] + i}")
    a(f"s_cmp_eq_u32 s{sP}, 1")
    a("s_cbranch_scc1 L_slow_exp")
    for x in range(2):
        for i in range(16):
            a(f"v_max_f32 v{MXS[x]}, v{MXS[x]}, v{S[x] + i}")
    a(f"s_setpc_b64 s[{sLINK}:{sLINK+1}]")
    a.label("L_slow_exp")
    for x in range(2):
        for i in range(16):
            a(f"v_sub_f32 v{S[x] + i}, v{S[x] + i}, v{MXS[x]}")
            a(f"v_mul_f32 v{S[x] + i}, {hex(LOG2E)}, v{S[x] + i}")
            a(f"v_exp_f32 v{S[x] + i}, v{S[x] + i}")
    a("s_nop 1")
    for x in range(2):
        a(pv(x, 0, 0)); a(pv(x, 1, 0))
    a(f"s_setpc_b64 s[{sLINK}:{sLINK+1}]")


SLOTS = {0: ["start", "setup", "prebar", "loop", "mode", "done", "end"],
         1: ["start", "karg", "issued", "setup", "kdata", "prebar", "end"],
         2: ["start", "loop", "done", "sent", "stored", "mode", "end"],
         3: ["start", "kdata", "mid", "qdata", "lump2", "prebar", "end"],
         4: ["start", "loop", "e1", "h1", "e3", "h3", "end"],
         5: ["start", "e4", "h4", "e5", "h5", "e6", "end"],
         6: ["start", "e0", "e2", "e4", "e5", "e6", "e7"],
         7: ["start", "loop", "e0", "h0", "e4", "h4", "e6"],
         8: ["start", "e5", "e6", "h6", "e7", "done", "end"]}


def build(opts):
    opts["slots"] = SLOTS[opts.get("pro", 0)]
    a = Asm()
    name = "standalone__qk_norm__prompt_kernel"
    a.raw(HEADER + f"; @launch grid=(256,1,1) block=(512,1,1) lds={LDS_BYTES}")
    a.raw('.amdgcn_target "amdgcn-amd-amdhsa--gfx950"\n.text')
    a.raw(f".globl {name}\n.p2align 8\n.type {name},@function\n{name}:")
    prologue(a, opts)
    main_loop(a, opts)
    epilogue(a, opts)
    side_blocks(a, opts)
    slow_path(a)
    txt = a.text()
    if opts.get("stamps"):
        txt = txt.replace(f"    s_mov_b32 s{sMODE}, 0\n", f"    s_mov_b32 s{sMODE}, 0\n    s_mov_b32 s{sP}, 0\n")
        txt = txt.replace(f"    s_mov_b32 s{sRAW}, 1\n", f"    s_mov_b32 s{sRAW}, 1\n    s_add_u32 s{sP}, s{sP}, 1\n")
    txt += f""".section .rodata,"a"
.p2align 6
.amdhsa_kernel {name}
  .amdhsa_next_free_vgpr {NVGPR}
  .amdhsa_next_free_sgpr {NSGPR}
  .amdhsa_accum_offset {NVGPR}
  .amdhsa_group_segment_fixed_size 0
  .amdhsa_kernarg_size 56
  .amdhsa_user_sgpr_count 2
  .amdhsa_user_sgpr_kernarg_segment_ptr 1
  .amdhsa_system_sgpr_workgroup_id_x 1
  .amdhsa_float_denorm_mode_32 3
.end_amdhsa_kernel
"""
    return txt


if __name__ == "__main__":
    opts = {}
    out = "standalone__qk_norm__prompt.s"
    for arg in sys.argv[1:]:
        k, _, v = arg.partition("=")
        if k == "out":
            out = v
        else:
            opts[k] = int(v)
    open(out, "w").write(build(opts))
```

```python
import sys

HEADER = """; Kernarg layout for this problem (56 bytes, ptrs only, base s[0:1]):
;   offset   0: d_in[0] q  shape=(1, 16, 4096, 28) dtype=bfloat16 strides=(3670016, 229376, 56, 2) contiguous=True
;   offset   8: d_in[1] k  shape=(1, 16, 4096, 28) dtype=bfloat16 strides=(3670016, 229376, 56, 2) contiguous=True
;   offset  16: d_in[2] v  shape=(1, 16, 4096, 28) dtype=bfloat16 strides=(3670016, 229376, 56, 2) contiguous=True
;   offset  32: d_out     shape=(1, 16, 4096, 28) dtype=bfloat16 (2 bytes/elem)
"""

HEADB = 229376
CHB = 28672
WSH = 262144
PAR = 0x10000
KB = [0, PAR]
VB = [32768, PAR + 32768]
ONES = 2 * PAR
QB = ONES + 14336
FLAG = QB + 16384
LDS_BYTES = FLAG + 256
T_LIMIT = 0x41800000
LOG2E = 0x3fb8aa3b
EPS = 0x358637bd

sK, sV, sO, sX, sG = 16, 20, 24, 28, 32
sH, sC, sW, sT, sI, sVOFF, sM0V, sKS = 36, 37, 38, 39, 40, 41, 42, 43
sA, sB, sD = 44, 45, 46
sPAR, sM0K, sKOFF, sRAW, sMODE, sPUB, sSLOW = 47, 48, 49, 50, 51, 52, 53
sWS = 54
sP = 56
sLINK = 58
sTS = 60
NSGPR = 80
vL, vKS, vVG, vKW, vAK, vAV, vDV, vIDX = 1, 2, 3, 4, 5, 6, 7, 8
vT = [9, 10, 11, 12, 13, 14, 15]
RQ = 16
QF = [[16, 20], [24, 28]]
O = [32, 48]
S = [64, 80]
KF = [96, 104]
V1 = [112, 116]
V2 = [120, 124]
R = 128
D = [144, 160]
A1, A2 = 176, 180
MX = [184, 185]
vRR, vPOLL = 186, 187
MXS = [188, 189]
NVGPR = 192


def first_pub(opts):
    return 2


def all_ready(opts):
    return sum(2 << (2 * n) for n in range(first_pub(opts) // 2, 8))


class Asm:
    def __init__(self):
        self.l = []
    def __call__(self, s):
        for x in s.split("\n"):
            self.l.append("    " + x.strip())
    def label(self, n):
        self.l.append(n + ":")
    def raw(self, s):
        self.l.append(s)
    def text(self):
        return "\n".join(self.l) + "\n"


def vr(a, n):
    return f"v[{a}:{a + n - 1}]"


def dma4(a, m0, vaddr, srd, soff, flags=""):
    a(f"s_mov_b32 m0, s{m0}")
    a("s_nop 0")
    for p in range(4):
        a(f"buffer_load_dwordx4 v{vaddr}, s[{srd}:{srd+3}], {soff} offen offset:{1024 * p}{flags} lds")


def read_rows(a, r, vaddr):
    for i in range(3):
        a(f"ds_read2_b64 {vr(r + 4 * i, 4)}, v{vaddr} offset0:{2 * i} offset1:{2 * i + 1}")
    a(f"ds_read_b64 {vr(r + 12, 2)}, v{vaddr} offset:48")


def normalise(a, r, scale=None, mid=None, mid2=None):
    nrm = vT[1]
    acc = MX[0]
    a(f"v_mfma_f32_32x32x16_bf16 {vr(D[0], 16)}, {vr(A1, 4)}, {vr(r, 4)}, 0")
    a(f"v_mfma_f32_32x32x16_bf16 {vr(D[0], 16)}, {vr(A2, 4)}, {vr(r + 4, 4)}, {vr(D[0], 16)}")
    a(f"v_mfma_f32_32x32x16_bf16 {vr(D[1], 16)}, {vr(A1, 4)}, {vr(r + 8, 4)}, 0")
    a(f"v_mfma_f32_32x32x16_bf16 {vr(D[1], 16)}, {vr(A2, 4)}, {vr(r + 12, 4)}, {vr(D[1], 16)}")
    if mid:
        mid(a)
    a("s_nop 3" if mid else "s_nop 9")
    for i in range(14):
        d = vr(D[0] + 2 * i, 2)
        if i == 0:
            a(f"v_pk_mul_f32 {vr(acc, 2)}, {d}, {d}")
        else:
            a(f"v_pk_fma_f32 {vr(acc, 2)}, {d}, {d}, {vr(acc, 2)}")
    a(f"v_add_f32 v{nrm}, v{acc}, v{acc + 1}")
    a(f"v_sqrt_f32 v{nrm}, v{nrm}")
    a("s_nop 0")
    a(f"v_add_f32 v{nrm}, {hex(EPS)}, v{nrm}")
    a(f"v_rcp_f32 v{nrm}, v{nrm}")
    a("s_nop 0")
    if scale is not None:
        a(f"v_mul_f32 v{nrm}, v{scale}, v{nrm}")
    if mid2:
        mid2(a)
    for i in range(14):
        d = D[0] + 2 * i
        a(f"v_pk_mul_f32 {vr(d, 2)}, {vr(d, 2)}, {vr(nrm, 2)} op_sel_hi:[1,0]")
        if i >= 1:
            a(f"v_cvt_pk_bf16_f32 v{r + i - 1}, v{d - 2}, v{d - 1}")
    a(f"v_cvt_pk_bf16_f32 v{r + 13}, v{D[0] + 26}, v{D[0] + 27}")


def piece_off(p):
    return (p >> 1) * 1024 + (p & 1) * 512


def write_frags(a, r, vaddr):
    for p in range(4):
        a(f"ds_write_b128 v{vaddr}, {vr(r + 4 * p, 4)} offset:{piece_off(p)}")


def rdK(f, tile):
    b = tile & 1
    return f"ds_read_b128 {vr(KF[b] + 4 * f, 4)}, v{vAK} offset:{(tile % 8) * 2048 + 1024 * f}"


def rdV(which, part, tile):
    b = tile & 1
    base = (V1, V2)[which][b] + 2 * part
    return f"ds_read_b64_tr_b16 {vr(base, 2)}, v{vAV} offset:{(tile % 8) * 1792 + 896 * which + 224 * part}"


def qk(x, f, tile):
    k = KF[tile & 1] + 4 * f
    c = "0" if f == 0 else vr(S[x], 16)
    return f"v_mfma_f32_32x32x16_bf16 {vr(S[x], 16)}, {vr(k, 4)}, {vr(QF[x][f], 4)}, {c}"


def pv(x, which, tile):
    v = (V1, V2)[which][tile & 1]
    return f"v_smfmac_f32_32x32x32_bf16 {vr(O[x], 16)}, {vr(v, 4)}, {vr(S[x] + 8 * which, 8)}, v{vIDX}"


def half(a, x, j, pre=None, slots=None):
    e = [f"v_exp_f32 v{S[x] + i}, v{S[x] + i}" for i in range(16)]
    if x == 0:
        m = [pv(1, 1, j - 1), qk(1, 0, j), qk(1, 1, j), pv(0, 0, j)]
        r = [rdV(0, 1, j + 1), rdV(1, 0, j + 1), rdV(1, 1, j + 1), None]
    else:
        m = [pv(0, 1, j), qk(0, 0, j + 1), qk(0, 1, j + 1), pv(1, 0, j)]
        r = [rdK(0, j + 2), rdK(1, j + 2), None, rdV(0, 0, j + 2)]
    cuts = [2, 6, 10, 14]
    pos = 0
    for g in range(4):
        for i in range(pos, cuts[g]):
            a(e[i])
        pos = cuts[g]
        if g == 0 and pre:
            pre(a)
        a(m[g])
        if r[g]:
            a(r[g])
        for ins in (slots or {}).get(g, []):
            a(ins)
    for i in range(pos, 16):
        a(e[i])


HOLD_POINTS = [None, "loop", "done", "karg", "issued", "kdata", "lump2", "prebar", "setup", "qdata"]


def stamp(a, opts, name):
    if opts.get("holdk") and HOLD_POINTS[opts["holdk"]] == name:
        a("s_memrealtime s[60:61]")
    if opts.get("stamps") and name in opts["slots"]:
        n = opts["slots"].index(name)
        a(f"s_memtime s[{sTS + 2 * n}:{sTS + 2 * n + 1}]")


def stamp_it(a, opts, name, kind):
    if opts.get("span") and name in (f"e{opts['span']}", f"h{opts['span']}") and kind == "hook":
        a(f"s_cmp_eq_u32 s{sI}, 1")
        a(f"s_cbranch_scc0 L_sp_{name}")
        a("s_memrealtime s[62:63]" if name[0] == "e" else "s_memrealtime s[60:61]")
        a.label(f"L_sp_{name}")
    if opts.get("stamps") and name in opts["slots"]:
        a(f"s_cmp_eq_u32 s{sI}, {opts.get('it', 0)}")
        a(f"s_cbranch_scc0 L_st_{name}_{kind}")
        stamp(a, opts, name)
        a.label(f"L_st_{name}_{kind}")


def prologue(a, opts):
    t0, t1, t2, t3, t4 = vT[2:7]
    a("s_cmp_ge_u32 s2, 256")
    a("s_cbranch_scc1 L_end")
    stamp(a, opts, "start")
    if opts.get("stamps") or opts.get("hold"):
        a("s_memrealtime s[74:75]")
    if opts.get("hold"):
        a("s_memrealtime s[60:61]")
    a("s_load_dwordx8 s[4:11], s[0:1], 0")
    a("s_load_dwordx4 s[12:15], s[0:1], 32")
    a(f"s_load_dwordx2 s[{sWS}:{sWS+1}], s[0:1], 48")
    a(f"""v_lshrrev_b32 v{t0}, 6, v0
    v_and_b32 v{vL}, 63, v0
    s_and_b32 s{sA}, s2, 7
    v_readfirstlane_b32 s{sW}, v{t0}
    s_lshl_b32 s{sA}, s{sA}, 1
    s_bfe_u32 s{sB}, s2, 0x10003
    s_add_u32 s{sH}, s{sA}, s{sB}
    s_lshr_b32 s{sC}, s2, 4""")
    if opts.get("pf", 1):
        a(f"""s_cmp_eq_u32 s{sW}, 7
        s_cbranch_scc0 L_nopf
        s_getpc_b64 s[{sG}:{sG+1}]
        s_mov_b32 s{sG+2}, L_slow-standalone__qk_norm__prompt_kernel
        s_mov_b32 s{sG+3}, 0x20000
        v_lshlrev_b32 v{t0}, 7, v{vL}
        buffer_load_dword v{vPOLL}, v{t0}, s[{sG}:{sG+3}], 0 offen
        s_movk_i32 s{sA}, 0x2000
        buffer_load_dword v{vPOLL}, v{t0}, s[{sG}:{sG+3}], s{sA} offen""")
        a.label("L_nopf")
    a(f"""s_mul_i32 s{sA}, s{sH}, {HEADB}
    s_mul_i32 s{sD}, s{sC}, 14336
    s_add_u32 s{sB}, s{sD}, s{sA}
    s_lshr_b32 s{sKS}, s{sW}, 2
    s_mul_i32 s{sM0V}, s{sW}, 3584
    v_lshlrev_b32 v{vAK}, 4, v{vL}
    v_add_u32 v{vVG}, s{sM0V}, v{vAK}
    s_add_u32 s{sM0V}, s{sM0V}, {VB[0]}
    s_lshl_b32 s{sM0K}, s{sW}, 12
    s_mov_b32 s{sK+2}, {HEADB}
    s_mov_b32 s{sK+3}, 0x20000
    s_mov_b32 s{sX+3}, 0x20000
    s_mov_b32 s{sV+2}, {HEADB}
    s_mov_b32 s{sV+3}, 0x20000
    s_mov_b32 s{sO+2}, 14336
    s_mov_b32 s{sO+3}, 0x20000
    s_lshr_b32 s{sD}, s{sH}, 1
    s_lshl_b32 s{sD}, s{sD}, 2
    s_and_b32 s{sPUB}, s{sC}, 1
    s_cmp_eq_u32 s{sPUB}, s{sKS}
    s_cselect_b32 s{sPUB}, 1, 0
    s_cmp_ge_u32 s{sC}, {first_pub(opts)}
    s_cselect_b32 s{sPUB}, s{sPUB}, 0
    s_lshr_b32 s{sKOFF}, s{sC}, 1
    s_max_u32 s{sKOFF}, s{sKOFF}, 1
    s_mul_i32 s{sVOFF}, s{sKOFF}, {CHB}
    s_lshl_b32 s{sKOFF}, s{sKOFF}, 15
    s_waitcnt lgkmcnt(0)""")
    stamp(a, opts, "karg")
    a(f"""s_add_u32 s{sK}, s6, s{sA}
    s_addc_u32 s{sK+1}, s7, 0
    s_add_u32 s{sV}, s8, s{sA}
    s_addc_u32 s{sV+1}, s9, 0""")
    a(f"""s_add_u32 s{sX}, s4, s{sB}
    s_addc_u32 s{sX+1}, s5, 0
    s_mov_b32 s{sX+2}, 14336
    s_add_u32 s{sMODE}, s{sM0K}, {QB}""")
    xk = opts.get("xk", 0)

    def load_x(a):
        a(f"s_cmp_eq_u32 s{sKS}, 0")
        a("s_cbranch_scc0 L_nox")
        dma4(a, sMODE, vVG, sX, 0)
        a.label("L_nox")

    def load_k(a):
        dma4(a, sM0K, vVG, sK, 0)
    (load_x if xk else load_k)(a)
    if opts.get("tlb", 0):
        a(f"""s_cmp_eq_u32 s{sW}, 5
        s_cbranch_scc0 L_notlb
        s_add_u32 s{sO}, s12, s{sB}
        s_addc_u32 s{sO+1}, s13, 0
        s_mov_b64 exec, 1
        v_mov_b32 v{t0}, 0
        buffer_load_dword v{vPOLL}, v{t0}, s[{sX}:{sX+3}], 0 offen
        buffer_load_dword v{vPOLL}, v{t0}, s[{sV}:{sV+3}], 0 offen
        buffer_load_dword v{vPOLL}, v{t0}, s[{sO}:{sO+3}], 0 offen
        s_mul_i32 s{sP}, s{sH}, {WSH}
        s_add_u32 s{sX}, s{sWS}, s{sP}
        s_addc_u32 s{sX+1}, s{sWS+1}, 0
        buffer_load_dword v{vPOLL}, v{t0}, s[{sX}:{sX+3}], 0 offen
        s_mov_b32 s{sX}, s14
        s_mov_b32 s{sX+1}, s15
        buffer_load_dword v{vPOLL}, v{t0}, s[{sX}:{sX+3}], 0 offen
        s_mov_b64 exec, -1""")
        a.label("L_notlb")
    a(f"s_load_dword s{sT}, s[10:11], s{sD}")
    stamp(a, opts, "issued")
    a(f"""v_mov_b32 v{R+14}, 0x3f80
    s_mov_b32 vcc_lo, 0xaaaaaaaa
    s_mov_b32 vcc_hi, 0xaaaaaaaa
    v_cndmask_b32 v{t1}, v{R+14}, 1.0, vcc""")
    for p in range(8):
        lo = 3 << (8 * (p >> 1) + 2 * (p & 1))
        a(f"s_mov_b32 vcc_lo, {hex(lo)}")
        a(f"s_mov_b32 vcc_hi, {hex(lo << 4)}")
        a(f"v_cndmask_b32 v{A1 + p}, 0, v{t1}, vcc")
    a(f"""v_mov_b32 v{R+15}, 0
    v_lshrrev_b32 v{t0}, 5, v0
    v_mul_u32_u24 v{t0}, 1536, v{t0}
    v_lshl_add_u32 v{vKW}, v0, 4, v{t0}
    v_mad_u32_u24 v{vRR}, v{vL}, 56, s{sM0K}""")
    a(f"""s_add_u32 s{sO}, s12, s{sB}
    s_addc_u32 s{sO+1}, s13, 0
    s_mov_b32 s{sG}, s14
    s_mov_b32 s{sG+1}, s15
    s_mov_b32 s{sG+2}, 256
    s_mov_b32 s{sG+3}, 0x20000
    s_lshl_b32 s{sA}, s{sKS}, 14
    v_add_u32 v{vAK}, s{sA}, v{vAK}
    s_mul_i32 s{sA}, s{sKS}, {8 * 1792}
    s_add_u32 s{sA}, s{sA}, {VB[0]}
    v_and_b32 v{t0}, 15, v0
    v_bfe_u32 v{t1}, v0, 2, 2
    v_mad_u32_u24 v{t0}, v{t1}, 3, v{t0}
    v_lshrrev_b32 v{t1}, 4, v{vL}
    v_lshl_add_u32 v{t0}, v{t1}, 2, v{t0}
    v_lshrrev_b32 v{t1}, 5, v{vL}
    v_mad_u32_u24 v{t0}, v{t1}, 48, v{t0}
    v_lshl_add_u32 v{vAV}, v{t0}, 3, s{sA}
    v_mov_b32 v{vDV}, {PAR}
    v_lshlrev_b32 v{t1}, 6, v{t1}
    v_sub_u32 v{t1}, {ONES + 224}, v{t1}
    s_mov_b32 vcc_lo, 0x88880000
    s_mov_b32 vcc_hi, 0x88880000
    v_cndmask_b32 v{vAV}, v{vAV}, v{t1}, vcc
    v_cndmask_b32 v{vDV}, v{vDV}, v{R+15}, vcc""")
    z = V2[1]
    a(f"""v_mov_b64 {vr(z, 2)}, 0
    v_mov_b64 {vr(z + 2, 2)}, 0
    v_mov_b32 v{vIDX}, 0xdddddddd
    v_mov_b32 v{RQ+15}, 0
    v_mfma_f32_32x32x16_bf16 {vr(O[0], 16)}, {vr(z, 4)}, {vr(z, 4)}, 0
    v_add_u32 v{t2}, {QB}, v{vRR}
    v_add_u32 v{t3}, {QB}, v{vKW}
    v_mfma_f32_32x32x16_bf16 {vr(O[1], 16)}, {vr(z, 4)}, {vr(z, 4)}, 0
    s_cmp_eq_u32 s{sW}, 6
    s_cbranch_scc0 L_noones
    v_lshrrev_b32 v{t0}, 3, v{vL}
    v_mul_u32_u24 v{t0}, 1792, v{t0}
    v_bfe_u32 v{t1}, v0, 2, 1
    v_mul_u32_u24 v{t1}, 896, v{t1}
    v_add_u32 v{t0}, v{t0}, v{t1}
    v_bfe_u32 v{t1}, v0, 1, 1
    v_mul_u32_u24 v{t1}, 224, v{t1}
    v_add_u32 v{t0}, v{t0}, v{t1}
    v_and_b32 v{t1}, 1, v0
    v_lshl_add_u32 v{t0}, v{t1}, 6, v{t0}
    v_add_u32 v{t0}, {ONES + 160}, v{t0}
    v_mov_b32 v{t1}, {FLAG}
    ds_write_b64 v{t0}, {vr(R + 14, 2)}
    ds_write_b32 v{t1}, v{z}""")
    a.label("L_noones")
    a(f"v_mfma_f32_32x32x16_bf16 {vr(S[1], 16)}, {vr(z, 4)}, {vr(z, 4)}, 0")
    stamp(a, opts, "setup")
    (load_k if xk else load_x)(a)

    def temperature(a, with_scale):
        a(f"""s_bitcmp1_b32 s{sH}, 0
        s_cselect_b32 s{sA}, 0, 16
        s_lshl_b32 s{sT}, s{sT}, s{sA}
        s_and_b32 s{sT}, s{sT}, 0xffff0000
        s_and_b32 s{sA}, s{sT}, 0x7fffffff
        s_cmp_gt_u32 s{sA}, {hex(T_LIMIT)}
        s_cselect_b32 s{sSLOW}, 1, 0
        s_cselect_b64 vcc, -1, 0
        s_mul_i32 s{sA}, s{sH}, {WSH}
        s_add_u32 s{sX}, s{sWS}, s{sA}
        s_addc_u32 s{sX+1}, s{sWS+1}, 0
        s_mov_b32 s{sX+2}, {WSH}""")
        if with_scale:
            a(f"""v_mov_b32 v{t4}, {hex(LOG2E)}
            v_mul_f32 v{t4}, s{sT}, v{t4}
            v_cvt_pk_bf16_f32 v{RQ+14}, -abs(v{t4}), 0
            v_cndmask_b32 v{t4}, v{t4}, 1.0, vcc
            v_cndmask_b32 v{RQ+14}, v{RQ+14}, v{R+15}, vcc""")

    def load_v0(a):
        dma4(a, sM0V, vVG, sV, 0)

    a(f"s_cmp_eq_u32 s{sKS}, 0")
    a("s_cbranch_scc1 L_two")
    if opts.get("tlb", 0):
        a(f"""s_waitcnt vmcnt(5)
        s_cmp_eq_u32 s{sW}, 5
        s_cbranch_scc1 L_kready""")
    a("s_waitcnt vmcnt(0)")
    a.label("L_kready")
    stamp(a, opts, "kdata")
    read_rows(a, R, vRR)
    a("s_waitcnt lgkmcnt(0)")
    temperature(a, False)
    normalise(a, R, mid=load_v0)
    write_frags(a, R, vKW)
    a("s_waitcnt vmcnt(0)")
    a("s_branch L_join")
    a.label("L_two")
    a("s_waitcnt vmcnt(4)")
    stamp(a, opts, "kdata")
    r1, a1, r2, a2 = (RQ, t2, R, vRR) if xk else (R, vRR, RQ, t2)
    read_rows(a, r1, a1)
    a("s_waitcnt lgkmcnt(0)")
    temperature(a, True)

    def second_rows(a):
        stamp(a, opts, "mid")
        a("s_waitcnt vmcnt(4)")
        stamp(a, opts, "qdata")
        read_rows(a, r2, a2)
    if xk:
        normalise(a, RQ, scale=t4, mid=load_v0, mid2=second_rows)
        write_frags(a, RQ, t3)
        a("s_waitcnt lgkmcnt(4)")
        normalise(a, R)
        write_frags(a, R, vKW)
    else:
        normalise(a, R, mid=load_v0, mid2=second_rows)
        write_frags(a, R, vKW)
        a("s_waitcnt lgkmcnt(4)")
        normalise(a, RQ, scale=t4)
        write_frags(a, RQ, t3)
    a("s_waitcnt vmcnt(0)")
    a.label("L_join")
    stamp(a, opts, "lump2")
    a(f"s_mov_b32 s{sPAR}, {PAR}")
    a(f"""v_lshl_add_u32 v{vKS}, v{vL}, 4, s{sM0K}
    s_and_b32 s{sA}, s{sW}, 3
    s_lshl_b32 s{sA}, s{sA}, 12
    s_add_u32 s{sA}, s{sA}, {QB}
    v_lshl_add_u32 v{t0}, v{vL}, 4, s{sA}
    s_mov_b32 s{sMODE}, 0
    s_mov_b32 s{sRAW}, 0
    s_mov_b32 s{sI}, 0
    s_waitcnt lgkmcnt(0)""")
    stamp(a, opts, "prebar")
    a("s_barrier")
    a(rdK(0, 0))
    a(f"ds_read_b128 {vr(QF[0][0], 4)}, v{t0}")
    a(rdK(1, 0))
    a(f"ds_read_b128 {vr(QF[0][1], 4)}, v{t0} offset:1024")
    a(f"ds_read_b128 {vr(QF[1][0], 4)}, v{t0} offset:2048")
    a(f"ds_read_b128 {vr(QF[1][1], 4)}, v{t0} offset:3072")
    a(f"s_cmp_eq_u32 s{sSLOW}, 1")
    a("s_cbranch_scc1 L_slow")
    a(rdV(0, 0, 0)); a(rdV(0, 1, 0)); a(rdV(1, 0, 0)); a(rdV(1, 1, 0))
    a("s_waitcnt lgkmcnt(6)")
    a(qk(0, 0, 0)); a(qk(0, 1, 0))
    a(rdK(0, 1)); a(rdK(1, 1)); a(rdV(0, 0, 1))
    a("s_nop 7")
    a("s_waitcnt lgkmcnt(3)")
    stamp(a, opts, "loop")


def dma1(p, vaddr, srd, soff, flags=""):
    return f"buffer_load_dwordx4 v{vaddr}, s[{srd}:{srd+3}], s{soff} offen offset:{1024 * p}{flags} lds"


def iteration(a, opts, kind):
    poll_at = opts.get("poll", 2)
    kdma_at = opts.get("kdma", 4)
    lump0_at = opts.get("lump0", 4)
    lump_at = opts.get("lump", 5)
    t0, t1 = vT[2], vT[3]
    sl = {(x, j): {} for x in range(2) for j in range(8)}

    def put(x, j, g, ins):
        sl[(x, j)].setdefault(g, []).append(ins)

    free = [(0, 3), (1, 2)]
    groups = {"first": [("K", 0), ("V", 2)], "hook": [("V", 0)], "lean": [("V", 0), ("G", 2)]}[kind]
    for what, j0 in groups:
        put(0, j0, 0, f"s_xor_b32 m0, s{sM0V if what == 'V' else sM0K}, s{sPAR}")
        for p in range(4):
            x, g = free[p & 1]
            ins = {"K": dma1(p, vVG, sK, sVOFF), "V": dma1(p, vVG, sV, sVOFF), "G": dma1(p, vKS, sX, sKOFF, " sc1")}[what]
            put(x, j0 + (p >> 1), g, ins)
    for j in range(8):
        if j != 6:
            put(0, j, 3, "s_waitcnt lgkmcnt(2)")
    for j in (1, 3, 7):
        put(1, j, 3, f"s_setprio {({7: 2, 1: 1, 3: 0})[j]}")
    put(0, 7, 3, f"s_add_u32 s{sKOFF}, s{sKOFF}, 32768")
    put(1, 6, 2, f"s_add_u32 s{sVOFF}, s{sVOFF}, {CHB}")
    put(0, 6, 3, f"s_xor_b32 s{sPAR}, s{sPAR}, {PAR}")
    put(1, 7, 0, f"s_cmp_eq_u32 s{sKOFF}, {8 * 32768}")
    put(1, 7, 2, f"s_cselect_b32 s{sKOFF}, 32768, s{sKOFF}")
    put(1, 7, 1, f"s_cselect_b32 s{sVOFF}, {CHB}, s{sVOFF}")

    def sync(a):
        a("s_waitcnt vmcnt(0) lgkmcnt(0)")
        a("s_barrier")
        a("s_setprio 3")
        a(f"v_xor_b32 v{vAK}, {PAR}, v{vAK}")
        a(f"v_xor_b32 v{vAV}, v{vDV}, v{vAV}")

    for j in range(8):
        half(a, 0, j, slots=sl[(0, j)])
        half(a, 1, j, pre=sync if j == 6 else None, slots=sl[(1, j)])
        stamp_it(a, opts, f"e{j}", kind)
        if kind == "first":
            if j == lump0_at:
                a("s_waitcnt vmcnt(4)")
                a(f"s_call_b64 s[{sLINK}:{sLINK+1}], L_lump")
            if j == 6:
                a(f"""s_and_b32 s{sA}, s{sW}, 3
                s_cselect_b32 s{sA}, 0, s{sPUB}
                s_cmp_eq_u32 s{sA}, 2
                s_cbranch_scc1 L_signal""")
                a.label("L_signalled")
        if kind == "hook":
            if j == poll_at:
                a(f"s_cmp_eq_u32 s{sW}, 0")
                a("s_cbranch_scc1 L_poll")
                a.label("L_polled")
            if j == poll_at + 1:
                a(f"s_cmp_eq_u32 s{sW}, 0")
                a("s_cbranch_scc1 L_relay")
                a.label("L_relayed")
            if j == kdma_at:
                a(f"""v_mov_b32 v{t0}, {FLAG}
                ds_read_b32 v{t0}, v{t0}
                s_xor_b32 m0, s{sM0K}, s{sPAR}
                s_lshr_b32 s{sB}, s{sKOFF}, 14
                s_add_u32 s{sB}, s{sB}, 1
                s_waitcnt lgkmcnt(0)
                v_readfirstlane_b32 s{sA}, v{t0}
                s_cmp_eq_u32 s{sA}, {hex(0x7fffffff if opts.get("x_self") else all_ready(opts))}
                s_cselect_b32 s{sMODE}, 1, 0
                s_bitcmp1_b32 s{sA}, {0 if opts.get("x_self") else "s%d" % sB}
                s_cbranch_scc0 L_raw""")
                for p in range(4):
                    a(dma1(p, vKS, sX, sKOFF, " sc1"))
                a.label("L_kdone")
            if j == lump_at:
                a(f"s_cmp_eq_u32 s{sRAW}, 1")
                a("s_cbranch_scc0 L_lumped")
                a("s_waitcnt vmcnt(0)")
                a(f"s_call_b64 s[{sLINK}:{sLINK+1}], L_lump")
                a.label("L_lumped")
        stamp_it(a, opts, f"h{j}", kind)


def main_loop(a, opts):
    a("s_setprio 2")
    iteration(a, opts, "first")
    a(f"s_mov_b32 s{sI}, 1")
    a.label("L_hook")
    iteration(a, opts, "hook")
    a(f"""s_add_u32 s{sI}, s{sI}, 1
    s_cmp_eq_u32 s{sI}, 8
    s_cbranch_scc1 L_tail
    s_cmp_eq_u32 s{sMODE}, 0
    s_cbranch_scc1 L_hook""")
    a.raw(".p2align 6")
    a.label("L_lean")
    iteration(a, opts, "lean")
    a(f"""s_add_u32 s{sI}, s{sI}, 1
    s_cmp_lt_u32 s{sI}, 8
    s_cbranch_scc1 L_lean""")
    a.label("L_tail")
    a("s_nop 0")
    a(pv(1, 1, 7))


def side_blocks(a, opts):
    t0, t1 = vT[2], vT[3]
    a.label("L_poll")
    a(f"""s_lshl_b32 s{sA}, s{sH}, 4
    v_mov_b32 v{t0}, 0
    buffer_load_dword v{vPOLL}, v{t0}, s[{sG}:{sG+3}], s{sA} offen sc1
    s_branch L_polled""")
    a.label("L_relay")
    a(f"""v_mov_b32 v{t0}, {FLAG}
    s_waitcnt vmcnt(0)
    ds_write_b32 v{t0}, v{vPOLL}
    s_branch L_relayed""")
    a.label("L_signal")
    a(f"""s_and_b32 s{sA}, s{sC}, 14
    s_lshl_b32 s{sA}, 1, s{sA}
    v_mov_b32 v{t1}, s{sA}
    v_mov_b32 v{t0}, 0
    s_lshl_b32 s{sA}, s{sH}, 4
    s_mov_b64 exec, 1
    buffer_atomic_add v{t1}, v{t0}, s[{sG}:{sG+3}], s{sA} offen sc1
    s_mov_b64 exec, -1
    s_branch L_signalled""")
    a.label("L_raw")
    a(f"s_mov_b32 s{sRAW}, 1")
    for p in range(4):
        a(dma1(p, vVG, sK, sVOFF))
    a("s_branch L_kdone")
    a.label("L_lump")
    a(f"""s_mov_b32 s{sRAW}, 0
    v_add_u32 v{t0}, s{sPAR}, v{vRR}
    v_add_u32 v{t1}, s{sPAR}, v{vKW}""")
    read_rows(a, R, t0)
    a("s_waitcnt lgkmcnt(0)")
    normalise(a, R)
    write_frags(a, R, t1)
    a(f"""s_cmp_eq_u32 s{sPUB}, 1
    s_cbranch_scc0 L_lump_ret
    s_mov_b32 s{sPUB}, 2""")
    for p in range(4):
        a(f"buffer_store_dwordx4 {vr(R + 4 * p, 4)}, v{vKW}, s[{sX}:{sX+3}], s{sKOFF} offen offset:{piece_off(p)} sc1")
    a.label("L_lump_ret")
    a(f"s_setpc_b64 s[{sLINK}:{sLINK+1}]")


def epilogue(a, opts):
    a.label("L_epi")
    stamp(a, opts, "done")
    t0, t1, t2 = vT[0:3]
    a(f"""s_lshl_b32 s{sB}, s{sW}, 12
    v_lshl_add_u32 v{t0}, v{vL}, 4, s{sB}
    v_xor_b32 v{t1}, 0x4000, v{t0}
    v_and_b32 v{t2}, 31, v0
    v_mul_u32_u24 v{t2}, 56, v{t2}
    v_bfe_u32 v{vT[3]}, v0, 5, 1
    v_lshl_add_u32 v{t2}, v{vT[3]}, 3, v{t2}
    s_and_b32 s{sA}, s{sW}, 3
    s_lshl_b32 s{sA}, s{sA}, 1
    s_add_u32 s{sA}, s{sA}, s{sKS}
    s_mul_i32 s{sA}, s{sA}, {32 * 56}
    s_waitcnt lgkmcnt(0)
    s_cmp_eq_u32 s{sKS}, 0
    s_cbranch_scc1 L_epi0""")
    for x in (1, 0):
        if x == 0:
            a.label("L_epi0")
        keep, send = O[x], O[1 - x]
        if x == 0:
            a("s_nop 3")
        for p in range(4):
            a(f"ds_write_b128 v{t0}, {vr(send + 4 * p, 4)} offset:{1024 * p}")
        a("s_waitcnt lgkmcnt(0)")
        stamp(a, opts, "sent")
        a("s_barrier")
        for p in (3, 0, 1, 2):
            a(f"ds_read_b128 {vr(S[0] + 4 * p, 4)}, v{t1} offset:{1024 * p}")
        for n, p in enumerate((3, 0, 1, 2)):
            a(f"s_waitcnt lgkmcnt({3 - n})")
            for i in (0, 2):
                a(f"v_pk_add_f32 {vr(S[0] + 4 * p + i, 2)}, {vr(S[0] + 4 * p + i, 2)}, {vr(keep + 4 * p + i, 2)}")
        if x == 1:
            a("s_branch L_epi1")
    a.label("L_epi1")
    l0, l1 = vT[4], vT[3]
    a(f"""v_mov_b32 v{l0}, v{S[0] + 12}
    v_mov_b32 v{l1}, v{S[0] + 12}
    s_nop 1
    v_permlane32_swap_b32 v{l0}, v{l1}
    s_nop 1
    v_rcp_f32 v{l1}, v{l1}
    s_nop 0""")
    flags = {0: "", 1: " sc1", 2: " nt", 3: " sc0 sc1"}[opts.get("stf", 0)]
    wide = opts.get("wide", 1)
    if wide:
        a(f"s_add_u32 s{sB}, s{sB}, {VB[0]}")
        a(f"v_add_u32 v{t2}, s{sB}, v{t2}")
    for g in range(4):
        for i in (0, 2):
            a(f"v_pk_mul_f32 {vr(S[0] + 4 * g + i, 2)}, {vr(S[0] + 4 * g + i, 2)}, {vr(l1, 2)} op_sel_hi:[1,0]")
        a(f"v_cvt_pk_bf16_f32 v{S[1] + 2 * g}, v{S[0] + 4 * g}, v{S[0] + 4 * g + 1}")
        a(f"v_cvt_pk_bf16_f32 v{S[1] + 2 * g + 1}, v{S[0] + 4 * g + 2}, v{S[0] + 4 * g + 3}")
        if g == 3:
            a("s_mov_b32 exec_hi, 0")
        if wide:
            a(f"ds_write_b64 v{t2}, {vr(S[1] + 2 * g, 2)} offset:{16 * g}")
        else:
            a(f"buffer_store_dwordx2 {vr(S[1] + 2 * g, 2)}, v{t2}, s[{sO}:{sO+3}], s{sA} offen offset:{16 * g}{flags}")
    if wide:
        a(f"""s_mov_b32 exec_hi, -1
        v_lshlrev_b32 v{t1}, 4, v{vL}
        ds_read_b128 {vr(S[0], 4)}, v{t0} offset:{VB[0]}
        ds_read_b128 {vr(S[0] + 4, 4)}, v{t0} offset:{VB[0] + 1024}
        s_waitcnt lgkmcnt(1)
        buffer_store_dwordx4 {vr(S[0], 4)}, v{t1}, s[{sO}:{sO+3}], s{sA} offen{flags}
        s_mov_b32 exec_hi, 0xffff
        s_waitcnt lgkmcnt(0)
        buffer_store_dwordx4 {vr(S[0] + 4, 4)}, v{t1}, s[{sO}:{sO+3}], s{sA} offen offset:1024{flags}""")
    if opts.get("stamps"):
        a("s_mov_b64 exec, -1")
        stamp(a, opts, "stored")
        a("s_waitcnt vmcnt(0)")
        stamp(a, opts, "end")
        dbg = opts["stamps"] == 2
        a(f"""s_memrealtime s[76:77]
        s_load_dwordx2 s[4:5], s[0:1], {40 if dbg else 48}
        s_waitcnt lgkmcnt(0)
        s_mov_b32 s6, {64 if dbg else 0x2000000}
        s_mov_b32 s7, 0x20000
        s_lshl_b32 s8, s2, 3
        s_add_u32 s8, s8, s{sW}""")
        if dbg:
            a("""s_cmp_eq_u32 s8, 2047
            s_cselect_b32 s9, 1, 2
            s_cmp_eq_u32 s8, 0
            s_cselect_b32 s8, 0, s9""")
        a("s_lshl_b32 s8, s8, 5")
        if not dbg:
            a("s_add_u32 s8, s8, 0x1000000")
        a("""v_mov_b32 v0, 0
        v_mov_b32 v1, s74
        buffer_store_dword v1, v0, s[4:7], s8 offen""")
        for n in range(1, 7):
            if opts["slots"][n] == "mode":
                a(f"s_mov_b32 s9, s{sP}")
            else:
                a(f"s_sub_u32 s9, s{sTS + 2 * n}, s{sTS}")
            a("v_mov_b32 v1, s9")
            a(f"buffer_store_dword v1, v0, s[4:7], s8 offen offset:{4 * n}")
        a("s_sub_u32 s9, s76, s74")
        a("v_mov_b32 v1, s9")
        a("buffer_store_dword v1, v0, s[4:7], s8 offen offset:28")
    if opts.get("hold"):
        if opts.get("span"):
            a("""s_waitcnt lgkmcnt(0)
            s_sub_u32 s8, s60, s62
            s_lshl_b32 s8, s8, 2
            s_add_u32 s74, s74, s8""")
        if opts.get("holdk"):
            a(f"""s_waitcnt lgkmcnt(0)
            s_sub_u32 s8, s60, s74
            s_lshl_b32 s8, s8, {0 if opts["holdk"] == 2 else 2}
            s_add_u32 s74, s74, s8""")
        a.label("L_hold")
        a(f"""s_sleep 4
        s_memrealtime s[76:77]
        s_waitcnt lgkmcnt(0)
        s_sub_u32 s9, s76, s74
        s_cmp_lt_i32 s9, {opts["hold"]}
        s_cbranch_scc1 L_hold""")
    a.label("L_end")
    a("s_endpgm")


def slow_path(a):
    x0 = vT[2]
    a.label("L_slow")
    a(f"""v_mov_b32 v{MXS[0]}, 0xff800000
    v_mov_b32 v{MXS[1]}, 0xff800000
    s_mov_b32 s{sP}, 0""")
    a.label("L_slow_pass")
    a(f"s_mov_b32 s{sVOFF}, 0")
    a.label("L_slow_chunk")
    a("s_waitcnt vmcnt(0) lgkmcnt(0)")
    a("s_barrier")
    dma4(a, sM0K, vVG, sK, f"s{sVOFF}")
    dma4(a, sM0V, vVG, sV, f"s{sVOFF}")
    a("s_waitcnt vmcnt(0)")
    read_rows(a, R, vRR)
    a("s_waitcnt lgkmcnt(0)")
    normalise(a, R)
    write_frags(a, R, vKW)
    a("s_waitcnt lgkmcnt(0)")
    a("s_barrier")
    for j in range(8):
        a(f"ds_read_b128 {vr(KF[0], 4)}, v{vAK} offset:{j * 2048}")
        a(f"ds_read_b128 {vr(KF[0] + 4, 4)}, v{vAK} offset:{j * 2048 + 1024}")
        for which in range(2):
            for part in range(2):
                base = (V1, V2)[which][0] + 2 * part
                a(f"ds_read_b64_tr_b16 {vr(base, 2)}, v{vAV} offset:{j * 1792 + 896 * which + 224 * part}")
        a("s_waitcnt lgkmcnt(0)")
        a(f"s_call_b64 s[{sLINK}:{sLINK+1}], L_slow_tile")
    a(f"""s_add_u32 s{sVOFF}, s{sVOFF}, {CHB}
    s_cmp_lt_u32 s{sVOFF}, {HEADB}
    s_cbranch_scc1 L_slow_chunk
    s_cmp_eq_u32 s{sP}, 1
    s_cbranch_scc1 L_slow_done""")
    for x in range(2):
        a(f"""v_mov_b32 v{x0}, v{MXS[x]}
        s_nop 1
        v_permlane32_swap_b32 v{x0}, v{MXS[x]}
        s_nop 1
        v_max_f32 v{MXS[x]}, v{x0}, v{MXS[x]}""")
    a(f"""s_barrier
    v_lshlrev_b32 v{x0}, 3, v0
    ds_write_b64 v{x0}, {vr(MXS[0], 2)}
    s_waitcnt lgkmcnt(0)
    s_barrier
    v_xor_b32 v{x0}, 2048, v{x0}
    ds_read_b64 {vr(S[0], 2)}, v{x0}
    s_waitcnt lgkmcnt(0)
    v_max_f32 v{MXS[0]}, v{MXS[0]}, v{S[0]}
    v_max_f32 v{MXS[1]}, v{MXS[1]}, v{S[0] + 1}
    s_mov_b32 s{sP}, 1
    s_branch L_slow_pass""")
    a.label("L_slow_done")
    a("s_barrier")
    a("s_nop 7")
    a("s_branch L_epi")
    a.label("L_slow_tile")
    for x in range(2):
        a(qk(x, 0, 0)); a(qk(x, 1, 0))
    a("s_nop 15")
    for x in range(2):
        for i in range(16):
            a(f"v_mul_f32 v{S[x] + i}, s{sT}, v{S[x] + i}")
    a(f"s_cmp_eq_u32 s{sP}, 1")
    a("s_cbranch_scc1 L_slow_exp")
    for x in range(2):
        for i in range(16):
            a(f"v_max_f32 v{MXS[x]}, v{MXS[x]}, v{S[x] + i}")
    a(f"s_setpc_b64 s[{sLINK}:{sLINK+1}]")
    a.label("L_slow_exp")
    for x in range(2):
        for i in range(16):
            a(f"v_sub_f32 v{S[x] + i}, v{S[x] + i}, v{MXS[x]}")
            a(f"v_mul_f32 v{S[x] + i}, {hex(LOG2E)}, v{S[x] + i}")
            a(f"v_exp_f32 v{S[x] + i}, v{S[x] + i}")
    a("s_nop 1")
    for x in range(2):
        a(pv(x, 0, 0)); a(pv(x, 1, 0))
    a(f"s_setpc_b64 s[{sLINK}:{sLINK+1}]")


SLOTS = {0: ["start", "setup", "prebar", "loop", "mode", "done", "end"],
         1: ["start", "karg", "issued", "setup", "kdata", "prebar", "end"],
         2: ["start", "loop", "done", "sent", "stored", "mode", "end"],
         3: ["start", "kdata", "mid", "qdata", "lump2", "prebar", "end"],
         4: ["start", "loop", "e1", "h1", "e3", "h3", "end"],
         5: ["start", "e4", "h4", "e5", "h5", "e6", "end"],
         6: ["start", "e0", "e2", "e4", "e5", "e6", "e7"],
         7: ["start", "loop", "e0", "h0", "e4", "h4", "e6"],
         8: ["start", "e5", "e6", "h6", "e7", "done", "end"],
         9: ["start", "e1", "h1", "e2", "h2", "e3", "h3"]}


def build(opts):
    opts["slots"] = SLOTS[opts.get("pro", 0)]
    a = Asm()
    name = "standalone__qk_norm__prompt_kernel"
    a.raw(HEADER + f"; @launch grid=(256,1,1) block=(512,1,1) lds={LDS_BYTES}")
    a.raw('.amdgcn_target "amdgcn-amd-amdhsa--gfx950"\n.text')
    if opts.get("align", 0):
        a.raw(".p2align 12\n.fill 832, 4, 0xbf800000")
    a.raw(f".globl {name}\n.p2align 8\n.type {name},@function\n{name}:")
    prologue(a, opts)
    main_loop(a, opts)
    epilogue(a, opts)
    side_blocks(a, opts)
    slow_path(a)
    txt = a.text()
    if opts.get("stamps"):
        txt = txt.replace(f"    s_mov_b32 s{sMODE}, 0\n", f"    s_mov_b32 s{sMODE}, 0\n    s_mov_b32 s{sP}, 0\n")
        txt = txt.replace(f"    s_mov_b32 s{sRAW}, 1\n", f"    s_mov_b32 s{sRAW}, 1\n    s_add_u32 s{sP}, s{sP}, 1\n")
    txt += f""".section .rodata,"a"
.p2align 6
.amdhsa_kernel {name}
  .amdhsa_next_free_vgpr {NVGPR}
  .amdhsa_next_free_sgpr {NSGPR}
  .amdhsa_accum_offset {NVGPR}
  .amdhsa_group_segment_fixed_size 0
  .amdhsa_kernarg_size 56
  .amdhsa_user_sgpr_count 2
  .amdhsa_user_sgpr_kernarg_segment_ptr 1
  .amdhsa_system_sgpr_workgroup_id_x 1
  .amdhsa_float_denorm_mode_32 3
.end_amdhsa_kernel
"""
    return txt


if __name__ == "__main__":
    opts = {}
    out = "standalone__qk_norm__prompt.s"
    for arg in sys.argv[1:]:
        k, _, v = arg.partition("=")
        if k == "out":
            out = v
        else:
            opts[k] = int(v)
    open(out, "w").write(build(opts))
```

```python
import sys, gen
def make(out, grid, block, lds, vgpr, ticks):
    txt = gen.build({})
    name = "standalone__qk_norm__prompt_kernel"
    old = [l for l in txt.split("\n") if "@launch" in l][0]
    txt = txt.replace(old, f"; @launch kernel=pre_kernel grid=({grid},1,1) block=({block},1,1) lds={lds}\n; @launch kernel={name} grid=(256,1,1) block=(512,1,1) lds={gen.LDS_BYTES}")
    pre = f""".globl pre_kernel
.p2align 8
.type pre_kernel,@function
pre_kernel:
    s_cmp_ge_u32 s2, {grid}
    s_cbranch_scc1 L_pre_end
    s_memrealtime s[4:5]
L_pre:
    s_sleep 4
    s_memrealtime s[6:7]
    s_waitcnt lgkmcnt(0)
    s_sub_u32 s8, s6, s4
    s_cmp_lt_u32 s8, {ticks}
    s_cbranch_scc1 L_pre
L_pre_end:
    s_endpgm
"""
    txt = txt.replace(".text\n", ".text\n" + pre, 1)
    txt += f""".p2align 6
.amdhsa_kernel pre_kernel
  .amdhsa_next_free_vgpr {vgpr}
  .amdhsa_next_free_sgpr 16
  .amdhsa_accum_offset {vgpr}
  .amdhsa_group_segment_fixed_size 0
  .amdhsa_kernarg_size 56
  .amdhsa_user_sgpr_count 2
  .amdhsa_user_sgpr_kernarg_segment_ptr 1
  .amdhsa_system_sgpr_workgroup_id_x 1
.end_amdhsa_kernel
"""
    open(out, "w").write(txt)
make("pre_small.s", 1, 64, 0, 8, 2000)
make("pre_big.s", 256, 512, gen.LDS_BYTES, 192, 2000)
make("pre_zero.s", 1, 64, 0, 8, 1)
```

```python
import sys

HEADER = """; Kernarg layout for this problem (56 bytes, ptrs only, base s[0:1]):
;   offset   0: d_in[0] q  shape=(1, 16, 4096, 28) dtype=bfloat16 strides=(3670016, 229376, 56, 2) contiguous=True
;   offset   8: d_in[1] k  shape=(1, 16, 4096, 28) dtype=bfloat16 strides=(3670016, 229376, 56, 2) contiguous=True
;   offset  16: d_in[2] v  shape=(1, 16, 4096, 28) dtype=bfloat16 strides=(3670016, 229376, 56, 2) contiguous=True
;   offset  32: d_out     shape=(1, 16, 4096, 28) dtype=bfloat16 (2 bytes/elem)
"""

HEADB = 229376
CHB = 28672
WSH = 262144
PAR = 0x10000
KB = [0, PAR]
VB = [32768, PAR + 32768]
ONES = 2 * PAR
QB = ONES + 14336
FLAG = QB + 16384
LDS_BYTES = FLAG + 256
T_LIMIT = 0x41800000
K_PAD = (0x3f803f80, 0x00003f80)
Q_PAD = {0: (0xc2420000, 0), 256: (0xc242c380, 0x4380), 1536: (0xc242c4c0, 0x44c0), 3072: (0xc242c540, 0x4540),
         6144: (0xc242c5c0, 0x45c0)}
O_MIN = 0x0c800000
LOG2E = 0x3fb8aa3b
EPS = 0x358637bd

sK, sV, sO, sX, sG = 16, 20, 24, 28, 32
sH, sC, sW, sT, sI, sVOFF, sM0V, sKS = 36, 37, 38, 39, 40, 41, 42, 43
sA, sB, sD = 44, 45, 46
sPAR, sM0K, sKOFF, sRAW, sMODE, sPUB, sSLOW = 47, 48, 49, 50, 51, 52, 53
sWS = 54
sP = 56
sFORCE = 57
sLINK = 58
sTS = 60
NSGPR = 80
vL, vKS, vVG, vKW, vAK, vAV, vDV, vIDX = 1, 2, 3, 4, 5, 6, 7, 8
vT = [9, 10, 11, 12, 13, 14, 15]
RQ = 16
QF = [[16, 20], [24, 28]]
O = [32, 48]
S = [64, 80]
KF = [96, 104]
V1 = [112, 116]
V2 = [120, 124]
R = 128
D = [144, 160]
A1, A2 = 176, 180
MX = [184, 185]
vRR, vPOLL = 186, 187
MXS = [188, 189]
NVGPR = 192


def first_pub(opts):
    return 2


def all_ready(opts):
    return sum(2 << (2 * n) for n in range(first_pub(opts) // 2, 8))


class Asm:
    def __init__(self):
        self.l = []
    def __call__(self, s):
        for x in s.split("\n"):
            self.l.append("    " + x.strip())
    def label(self, n):
        self.l.append(n + ":")
    def raw(self, s):
        self.l.append(s)
    def text(self):
        return "\n".join(self.l) + "\n"


def vr(a, n):
    return f"v[{a}:{a + n - 1}]"


def dma4(a, m0, vaddr, srd, soff, flags="", exact=False):
    a(f"s_mov_b32 m0, s{m0}")
    a("s_nop 0")
    for p in range(4):
        if exact and p == 3:
            a("s_mov_b32 exec_hi, 0")
        a(f"buffer_load_dwordx4 v{vaddr}, s[{srd}:{srd+3}], {soff} offen offset:{1024 * p}{flags} lds")
    if exact:
        a("s_mov_b32 exec_hi, -1")


def read_rows(a, r, vaddr):
    for i in range(3):
        a(f"ds_read2_b64 {vr(r + 4 * i, 4)}, v{vaddr} offset0:{2 * i} offset1:{2 * i + 1}")
    a(f"ds_read_b64 {vr(r + 12, 2)}, v{vaddr} offset:48")


def normalise(a, r, pad, scale=None, mid=None, mid2=None):
    nrm = vT[1]
    acc = MX[0]
    a(f"v_mfma_f32_32x32x16_bf16 {vr(D[0], 16)}, {vr(A1, 4)}, {vr(r, 4)}, 0")
    a(f"v_mfma_f32_32x32x16_bf16 {vr(D[0], 16)}, {vr(A2, 4)}, {vr(r + 4, 4)}, {vr(D[0], 16)}")
    a(f"v_mfma_f32_32x32x16_bf16 {vr(D[1], 16)}, {vr(A1, 4)}, {vr(r + 8, 4)}, 0")
    a(f"v_mfma_f32_32x32x16_bf16 {vr(D[1], 16)}, {vr(A2, 4)}, {vr(r + 12, 4)}, {vr(D[1], 16)}")
    if mid:
        mid(a)
    a(f"v_mov_b32 v{r + 7}, {pad}")
    a("s_nop 2" if mid else "s_nop 8")
    for i in range(14):
        d = vr(D[0] + 2 * i, 2)
        if i == 0:
            a(f"v_pk_mul_f32 {vr(acc, 2)}, {d}, {d}")
        else:
            a(f"v_pk_fma_f32 {vr(acc, 2)}, {d}, {d}, {vr(acc, 2)}")
    a(f"v_add_f32 v{nrm}, v{acc}, v{acc + 1}")
    a(f"v_sqrt_f32 v{nrm}, v{nrm}")
    a("s_nop 0")
    a(f"v_add_f32 v{nrm}, {hex(EPS)}, v{nrm}")
    a(f"v_rcp_f32 v{nrm}, v{nrm}")
    a("s_nop 0")
    if scale is not None:
        a(f"v_mul_f32 v{nrm}, v{scale}, v{nrm}")
    if mid2:
        mid2(a)
    for i in range(14):
        d = D[0] + 2 * i
        a(f"v_pk_mul_f32 {vr(d, 2)}, {vr(d, 2)}, {vr(nrm, 2)} op_sel_hi:[1,0]")
        if i >= 1:
            a(f"v_cvt_pk_bf16_f32 v{r + i - 1 + (i > 7)}, v{d - 2}, v{d - 1}")
    a(f"v_cvt_pk_bf16_f32 v{r + 14}, v{D[0] + 26}, v{D[0] + 27}")


def piece_off(p):
    return (p >> 1) * 1024 + (p & 1) * 512


def write_frags(a, r, vaddr):
    for p in range(4):
        a(f"ds_write_b128 v{vaddr}, {vr(r + 4 * p, 4)} offset:{piece_off(p)}")


def rdK(f, tile):
    b = tile & 1
    return f"ds_read_b128 {vr(KF[b] + 4 * f, 4)}, v{vAK} offset:{(tile % 8) * 2048 + 1024 * f}"


def rdV(which, part, tile):
    b = tile & 1
    base = (V1, V2)[which][b] + 2 * part
    return f"ds_read_b64_tr_b16 {vr(base, 2)}, v{vAV} offset:{(tile % 8) * 1792 + 896 * which + 224 * part}"


def qk(x, f, tile):
    k = KF[tile & 1] + 4 * f
    c = "0" if f == 0 else vr(S[x], 16)
    return f"v_mfma_f32_32x32x16_bf16 {vr(S[x], 16)}, {vr(k, 4)}, {vr(QF[x][f], 4)}, {c}"


def pv(x, which, tile):
    v = (V1, V2)[which][tile & 1]
    return f"v_smfmac_f32_32x32x32_bf16 {vr(O[x], 16)}, {vr(v, 4)}, {vr(S[x] + 8 * which, 8)}, v{vIDX}"


def half(a, x, j, pre=None, slots=None):
    e = [f"v_exp_f32 v{S[x] + i}, v{S[x] + i}" for i in range(16)]
    if x == 0:
        m = [pv(1, 1, j - 1), qk(1, 0, j), qk(1, 1, j), pv(0, 0, j)]
        r = [rdV(0, 1, j + 1), rdV(1, 0, j + 1), rdV(1, 1, j + 1), None]
    else:
        m = [pv(0, 1, j), qk(0, 0, j + 1), qk(0, 1, j + 1), pv(1, 0, j)]
        r = [rdK(0, j + 2), rdK(1, j + 2), None, rdV(0, 0, j + 2)]
    cuts = [2, 6, 10, 14]
    pos = 0
    for g in range(4):
        for i in range(pos, cuts[g]):
            a(e[i])
        pos = cuts[g]
        if g == 0 and pre:
            pre(a)
        a(m[g])
        if r[g]:
            a(r[g])
        for ins in (slots or {}).get(g, []):
            a(ins)
    for i in range(pos, 16):
        a(e[i])


HOLD_POINTS = [None, "loop", "done", "karg", "issued", "kdata", "lump2", "prebar", "setup", "qdata"]


def stamp(a, opts, name):
    if opts.get("holdk") and HOLD_POINTS[opts["holdk"]] == name:
        a("s_memrealtime s[60:61]")
    if opts.get("stamps") and name in opts["slots"]:
        n = opts["slots"].index(name)
        a(f"s_memtime s[{sTS + 2 * n}:{sTS + 2 * n + 1}]")


def stamp_it(a, opts, name, kind):
    if opts.get("span") and name in (f"e{opts['span']}", f"h{opts['span']}") and kind == "hook":
        a(f"s_cmp_eq_u32 s{sI}, 1")
        a(f"s_cbranch_scc0 L_sp_{name}")
        a("s_memrealtime s[62:63]" if name[0] == "e" else "s_memrealtime s[60:61]")
        a.label(f"L_sp_{name}")
    if opts.get("stamps") and name in opts["slots"]:
        a(f"s_cmp_eq_u32 s{sI}, {opts.get('it', 0)}")
        a(f"s_cbranch_scc0 L_st_{name}_{kind}")
        stamp(a, opts, name)
        a.label(f"L_st_{name}_{kind}")


def prologue(a, opts):
    t0, t1, t2, t3, t4 = vT[2:7]
    z = V2[1]
    m4 = opts.get("m4", 1)
    touch = opts.get("touch", 1)
    a("s_cmp_ge_u32 s2, 256")
    a("s_cbranch_scc1 L_end")
    a(f"s_mov_b32 s{sFORCE}, 0")
    a.label("L_start")
    stamp(a, opts, "start")
    if opts.get("stamps") or opts.get("hold"):
        a("s_memrealtime s[74:75]")
    if opts.get("hold"):
        a("s_memrealtime s[60:61]")
    a("s_load_dwordx8 s[4:11], s[0:1], 0")
    a("s_load_dwordx4 s[12:15], s[0:1], 32")
    a(f"s_load_dwordx2 s[{sWS}:{sWS+1}], s[0:1], 48")
    a(f"""v_lshrrev_b32 v{t0}, 6, v0
    v_and_b32 v{vL}, 63, v0
    s_and_b32 s{sA}, s2, 7
    v_readfirstlane_b32 s{sW}, v{t0}
    s_lshl_b32 s{sA}, s{sA}, 1
    s_bfe_u32 s{sB}, s2, 0x10003
    s_add_u32 s{sH}, s{sA}, s{sB}
    s_lshr_b32 s{sC}, s2, 4""")
    if opts.get("pf", 1):
        a(f"""s_cmp_eq_u32 s{sW}, 7
        s_cbranch_scc0 L_nopf
        s_getpc_b64 s[{sG}:{sG+1}]
        s_mov_b32 s{sG+2}, L_slow-standalone__qk_norm__prompt_kernel
        s_mov_b32 s{sG+3}, 0x20000
        v_lshlrev_b32 v{t0}, 7, v{vL}
        buffer_load_dword v{vPOLL}, v{t0}, s[{sG}:{sG+3}], 0 offen
        s_movk_i32 s{sA}, 0x2000
        buffer_load_dword v{vPOLL}, v{t0}, s[{sG}:{sG+3}], s{sA} offen""")
        a.label("L_nopf")
    a(f"""s_mul_i32 s{sA}, s{sH}, {HEADB}
    s_mul_i32 s{sD}, s{sC}, 14336
    s_add_u32 s{sB}, s{sD}, s{sA}
    s_lshr_b32 s{sKS}, s{sW}, 2
    s_mul_i32 s{sM0V}, s{sW}, 3584
    v_lshlrev_b32 v{vAK}, 4, v{vL}
    v_add_u32 v{vVG}, s{sM0V}, v{vAK}
    s_add_u32 s{sM0V}, s{sM0V}, {VB[0]}
    s_lshl_b32 s{sM0K}, s{sW}, 12
    s_mov_b32 s{sK+2}, {HEADB}
    s_mov_b32 s{sK+3}, 0x20000
    s_mov_b32 s{sX+2}, 14336
    s_mov_b32 s{sX+3}, 0x20000
    s_add_u32 s{sMODE}, s{sM0K}, {QB}
    s_lshr_b32 s{sD}, s{sH}, 1
    s_lshl_b32 s{sD}, s{sD}, 2""")

    def setup_a(a):
        a(f"""v_mov_b32 v{R+15}, {hex(K_PAD[1])}
        s_mov_b32 vcc_lo, 0xaaaaaaaa
        s_mov_b32 vcc_hi, 0xaaaaaaaa
        v_cndmask_b32 v{t1}, v{R+15}, 1.0, vcc""")
        for p in range(8):
            lo = 3 << (8 * (p >> 1) + 2 * (p & 1))
            a(f"s_mov_b32 vcc_lo, {hex(lo)}")
            a(f"s_mov_b32 vcc_hi, {hex(lo << 4)}")
            a(f"v_cndmask_b32 v{A1 + p}, 0, v{t1}, vcc")
        a(f"""v_mov_b32 v{R+14}, 0
        v_lshrrev_b32 v{t0}, 5, v0
        v_mul_u32_u24 v{t0}, 1536, v{t0}
        v_lshl_add_u32 v{vKW}, v0, 4, v{t0}
        v_mad_u32_u24 v{vRR}, v{vL}, 56, s{sM0K}""")

    if opts.get("prek", 1) == 1:
        setup_a(a)
    a("s_waitcnt lgkmcnt(0)")
    stamp(a, opts, "karg")
    a(f"""s_add_u32 s{sK}, s6, s{sA}
    s_addc_u32 s{sK+1}, s7, 0""")
    dma4(a, sM0K, vVG, sK, 0, exact=m4)
    if opts.get("prek", 1) == 2:
        setup_a(a)
    a(f"""s_cmp_eq_u32 s{sKS}, 0
    s_cbranch_scc0 L_noq
    s_add_u32 s{sX}, s4, s{sB}
    s_addc_u32 s{sX+1}, s5, 0""")
    dma4(a, sMODE, vVG, sX, 0, exact=m4)
    a.label("L_noq")
    a(f"""s_add_u32 s{sV}, s8, s{sA}
    s_addc_u32 s{sV+1}, s9, 0
    s_mov_b32 s{sV+2}, {HEADB}
    s_mov_b32 s{sV+3}, 0x20000""")
    if touch:
        a(f"""s_cmp_eq_u32 s{sW}, 4
        s_cbranch_scc0 L_notouch
        s_mul_i32 s{sP}, s{sC}, 1792
        v_lshlrev_b32 v{t0}, 7, v{vL}
        s_mov_b64 exec, 0x3fff
        buffer_load_dword v{vPOLL}, v{t0}, s[{sV}:{sV+3}], s{sP} offen
        s_mov_b64 exec, -1""")
        a.label("L_notouch")
    a(f"s_load_dword s{sT}, s[10:11], s{sD}")
    stamp(a, opts, "issued")
    if not opts.get("prek", 1):
        setup_a(a)
    a(f"""s_add_u32 s{sO}, s12, s{sB}
    s_addc_u32 s{sO+1}, s13, 0
    s_mov_b32 s{sO+2}, 14336
    s_mov_b32 s{sO+3}, 0x20000
    s_mov_b32 s{sG}, s14
    s_mov_b32 s{sG+1}, s15
    s_mov_b32 s{sG+2}, 256
    s_mov_b32 s{sG+3}, 0x20000
    s_mul_i32 s{sA}, s{sH}, {WSH}
    s_add_u32 s{sX}, s{sWS}, s{sA}
    s_addc_u32 s{sX+1}, s{sWS+1}, 0
    s_mov_b32 s{sX+2}, {WSH}
    v_mov_b64 {vr(z, 2)}, 0
    v_mov_b64 {vr(z + 2, 2)}, 0
    s_and_b32 s{sPUB}, s{sC}, 1
    s_cmp_eq_u32 s{sPUB}, s{sKS}
    s_cselect_b32 s{sPUB}, 1, 0
    s_cmp_ge_u32 s{sC}, {first_pub(opts)}
    s_cselect_b32 s{sPUB}, s{sPUB}, 0
    v_mfma_f32_32x32x16_bf16 {vr(O[0], 16)}, {vr(z, 4)}, {vr(z, 4)}, 0
    s_lshr_b32 s{sKOFF}, s{sC}, 1
    s_max_u32 s{sKOFF}, s{sKOFF}, 1
    s_mul_i32 s{sVOFF}, s{sKOFF}, {CHB}
    s_lshl_b32 s{sKOFF}, s{sKOFF}, 15
    s_lshl_b32 s{sA}, s{sKS}, 14
    v_add_u32 v{vAK}, s{sA}, v{vAK}
    s_mul_i32 s{sA}, s{sKS}, {8 * 1792}
    s_add_u32 s{sA}, s{sA}, {VB[0]}
    v_and_b32 v{t0}, 15, v0
    v_bfe_u32 v{t1}, v0, 2, 2
    v_mad_u32_u24 v{t0}, v{t1}, 3, v{t0}
    v_lshrrev_b32 v{t1}, 4, v{vL}
    v_lshl_add_u32 v{t0}, v{t1}, 2, v{t0}
    v_lshrrev_b32 v{t1}, 5, v{vL}
    v_mad_u32_u24 v{t0}, v{t1}, 48, v{t0}
    v_mfma_f32_32x32x16_bf16 {vr(O[1], 16)}, {vr(z, 4)}, {vr(z, 4)}, 0
    v_lshl_add_u32 v{vAV}, v{t0}, 3, s{sA}
    v_mov_b32 v{vDV}, {PAR}
    v_lshlrev_b32 v{t1}, 6, v{t1}
    v_sub_u32 v{t1}, {ONES + 224}, v{t1}
    s_mov_b32 vcc_lo, 0x88880000
    s_mov_b32 vcc_hi, 0x88880000
    v_cndmask_b32 v{vAV}, v{vAV}, v{t1}, vcc
    v_cndmask_b32 v{vDV}, v{vDV}, v{R+14}, vcc
    v_mov_b32 v{vIDX}, 0xdddddddd
    v_mfma_f32_32x32x16_bf16 {vr(S[1], 16)}, {vr(z, 4)}, {vr(z, 4)}, 0
    s_cmp_eq_u32 s{sKS}, 0
    s_cbranch_scc1 L_two""")

    def temperature(a):
        a(f"""s_bitcmp1_b32 s{sH}, 0
        s_cselect_b32 s{sA}, 0, 16
        s_lshl_b32 s{sT}, s{sT}, s{sA}
        s_and_b32 s{sT}, s{sT}, 0xffff0000
        s_and_b32 s{sA}, s{sT}, 0x7fffffff
        s_cmp_gt_u32 s{sA}, {hex(T_LIMIT)}
        s_cselect_b32 s{sSLOW}, 1, s{sFORCE}""")

    a(f"""v_subrev_u32 v{t2}, 14336, v{vVG}
    s_sub_u32 s{sMODE}, s{sM0V}, 14336
    s_cmp_eq_u32 s{sW}, 6
    s_cbranch_scc0 L_noones
    v_lshrrev_b32 v{t0}, 3, v{vL}
    v_mul_u32_u24 v{t0}, 1792, v{t0}
    v_bfe_u32 v{t1}, v0, 2, 1
    v_mul_u32_u24 v{t1}, 896, v{t1}
    v_add_u32 v{t0}, v{t0}, v{t1}
    v_bfe_u32 v{t1}, v0, 1, 1
    v_mul_u32_u24 v{t1}, 224, v{t1}
    v_add_u32 v{t0}, v{t0}, v{t1}
    v_and_b32 v{t1}, 1, v0
    v_lshl_add_u32 v{t0}, v{t1}, 6, v{t0}
    v_add_u32 v{t0}, {ONES + 160}, v{t0}
    v_mov_b32 v{t1}, {FLAG}
    v_mov_b32 v{D[0]}, 0x3f80
    v_mov_b32 v{D[0] + 1}, 0
    ds_write_b64 v{t0}, {vr(D[0], 2)}
    ds_write_b64 v{t1}, {vr(z, 2)}""")
    a.label("L_noones")
    stamp(a, opts, "setup")
    vearly = opts.get("vearly", 0)
    if vearly:
        dma4(a, sMODE, t2, sV, 0, exact=m4)
    if vearly == 2:
        dma4(a, sM0V, vVG, sV, 0, exact=m4)
    if touch:
        a(f"""s_waitcnt vmcnt({4 * vearly + 1})
        s_cmp_eq_u32 s{sW}, 4
        s_cbranch_scc1 L_kready""")
    a(f"s_waitcnt vmcnt({4 * vearly})")
    a.label("L_kready")
    stamp(a, opts, "kdata")
    read_rows(a, R, vRR)

    def load_v(a):
        if not vearly:
            dma4(a, sMODE, t2, sV, 0, exact=m4)
        if vearly < 2:
            dma4(a, sM0V, vVG, sV, 0, exact=m4)
    vpos = opts.get("vpos", 0)
    if vpos == 0:
        load_v(a)
    a("s_waitcnt lgkmcnt(0)")
    temperature(a)
    normalise(a, R, hex(K_PAD[0]), mid=load_v if vpos == 1 and vearly < 2 else None)
    write_frags(a, R, vKW)
    a("s_waitcnt vmcnt(0)")
    a("s_branch L_join")
    a.label("L_two")
    a(f"""v_mov_b32 v{RQ+14}, 0
    v_add_u32 v{t2}, {QB}, v{vRR}
    v_add_u32 v{t3}, {QB}, v{vKW}""")
    stamp(a, opts, "setup")
    a("s_waitcnt vmcnt(4)")
    stamp(a, opts, "kdata")
    read_rows(a, R, vRR)
    a("s_waitcnt lgkmcnt(0)")

    def scale_setup(a):
        temperature(a)
        qa, qb = Q_PAD[opts.get("M", 1536)]
        a(f"""s_cmp_eq_u32 s{sSLOW}, 1
        s_cselect_b32 s{sD}, 0, {hex(qa)}
        s_cselect_b32 s{sA}, 0, {hex(qb)}
        s_cselect_b64 vcc, -1, 0
        v_mov_b32 v{t4}, {hex(LOG2E)}
        v_mul_f32 v{t4}, s{sT}, v{t4}
        v_mov_b32 v{RQ+15}, s{sA}
        v_cndmask_b32 v{t4}, v{t4}, 1.0, vcc""")

    def second_rows(a):
        stamp(a, opts, "mid")
        a("s_waitcnt vmcnt(0)")
        stamp(a, opts, "qdata")
        read_rows(a, RQ, t2)
    if opts.get("qlate", 1):
        normalise(a, R, hex(K_PAD[0]), mid=scale_setup)
        write_frags(a, R, vKW)
        second_rows(a)
        a("s_waitcnt lgkmcnt(0)")
    else:
        normalise(a, R, hex(K_PAD[0]), mid=scale_setup, mid2=second_rows)
        write_frags(a, R, vKW)
        a("s_waitcnt lgkmcnt(4)")
    normalise(a, RQ, f"s{sD}", scale=t4)
    write_frags(a, RQ, t3)
    a.label("L_join")
    stamp(a, opts, "lump2")
    a(f"s_mov_b32 s{sPAR}, {PAR}")
    a(f"""v_lshl_add_u32 v{vKS}, v{vL}, 4, s{sM0K}
    s_and_b32 s{sA}, s{sW}, 3
    s_lshl_b32 s{sA}, s{sA}, 12
    s_add_u32 s{sA}, s{sA}, {QB}
    v_lshl_add_u32 v{t0}, v{vL}, 4, s{sA}
    s_mov_b32 s{sMODE}, 0
    s_mov_b32 s{sRAW}, 0
    s_mov_b32 s{sI}, 0
    s_waitcnt lgkmcnt(0)""")
    stamp(a, opts, "prebar")
    a("s_barrier")
    a(rdK(0, 0))
    a(f"ds_read_b128 {vr(QF[0][0], 4)}, v{t0}")
    a(rdK(1, 0))
    a(f"ds_read_b128 {vr(QF[0][1], 4)}, v{t0} offset:1024")
    a(f"ds_read_b128 {vr(QF[1][0], 4)}, v{t0} offset:2048")
    a(f"ds_read_b128 {vr(QF[1][1], 4)}, v{t0} offset:3072")
    a(f"s_cmp_eq_u32 s{sSLOW}, 1")
    a("s_cbranch_scc1 L_slow")
    a(rdV(0, 0, 0)); a(rdV(0, 1, 0)); a(rdV(1, 0, 0)); a(rdV(1, 1, 0))
    a("s_waitcnt lgkmcnt(6)")
    a(qk(0, 0, 0)); a(qk(0, 1, 0))
    a(rdK(0, 1)); a(rdK(1, 1)); a(rdV(0, 0, 1))
    a("s_nop 7")
    a("s_waitcnt lgkmcnt(3)")
    stamp(a, opts, "loop")


PRIO_POINTS = [[(1, 7), (1, 1), (1, 3)], [(1, 1), (1, 4), (1, 5)], [(1, 2), (1, 4), (1, 5)], [(1, 3), (0, 5), (1, 5)],
               [(1, 0), (1, 2), (1, 4)], [(1, 1), (1, 3), (0, 5)], [(1, 4), (1, 5), (0, 6)]]


def dma1(p, vaddr, srd, soff, flags=""):
    return f"buffer_load_dwordx4 v{vaddr}, s[{srd}:{srd+3}], s{soff} offen offset:{1024 * p}{flags} lds"


def iteration(a, opts, kind):
    poll_at = opts.get("poll", 2)
    kdma_at = opts.get("kdma", 4)
    lump0_at = opts.get("lump0", 4)
    lump_at = opts.get("lump", 5)
    t0, t1 = vT[2], vT[3]
    sl = {(x, j): {} for x in range(2) for j in range(8)}

    def put(x, j, g, ins):
        sl[(x, j)].setdefault(g, []).append(ins)

    free = [(0, 3), (1, 2)]
    groups = {"first": [("K", 0), ("V", 2)], "hook": [("V", 0)], "lean": [("V", 0), ("G", 2)]}[kind]
    for what, j0 in groups:
        put(0, j0, 0, f"s_xor_b32 m0, s{sM0V if what == 'V' else sM0K}, s{sPAR}")
        for p in range(4):
            x, g = free[p & 1]
            ins = {"K": dma1(p, vVG, sK, sVOFF), "V": dma1(p, vVG, sV, sVOFF), "G": dma1(p, vKS, sX, sKOFF, " sc1")}[what]
            put(x, j0 + (p >> 1), g, ins)
    for j in range(8):
        if j != 6:
            put(0, j, 3, "s_waitcnt lgkmcnt(2)")
    for lvl, (x, j) in zip((2, 1, 0), PRIO_POINTS[opts.get("pp", 6)]):
        put(x, j, 3, f"s_setprio {lvl}")
    put(0, 7, 3, f"s_add_u32 s{sKOFF}, s{sKOFF}, 32768")
    put(1, 6, 2, f"s_add_u32 s{sVOFF}, s{sVOFF}, {CHB}")
    put(0, 6, 3, f"s_xor_b32 s{sPAR}, s{sPAR}, {PAR}")
    put(1, 7, 0, f"s_cmp_eq_u32 s{sKOFF}, {8 * 32768}")
    put(1, 7, 2, f"s_cselect_b32 s{sKOFF}, 32768, s{sKOFF}")
    put(1, 7, 1, f"s_cselect_b32 s{sVOFF}, {CHB}, s{sVOFF}")

    def sync(a):
        a("s_waitcnt vmcnt(0) lgkmcnt(0)")
        a("s_barrier")
        a("s_setprio 3")
        a(f"v_xor_b32 v{vAK}, {PAR}, v{vAK}")
        a(f"v_xor_b32 v{vAV}, v{vDV}, v{vAV}")

    for j in range(8):
        half(a, 0, j, slots=sl[(0, j)])
        half(a, 1, j, pre=sync if j == 6 else None, slots=sl[(1, j)])
        stamp_it(a, opts, f"e{j}", kind)
        if kind == "first":
            if j == lump0_at:
                a("s_waitcnt vmcnt(4)")
                a(f"s_call_b64 s[{sLINK}:{sLINK+1}], L_lump")
            if j == 6:
                a(f"""s_and_b32 s{sA}, s{sW}, 3
                s_cselect_b32 s{sA}, 0, s{sPUB}
                s_cmp_eq_u32 s{sA}, 2
                s_cbranch_scc1 L_signal""")
                a.label("L_signalled")
        if kind == "hook":
            if j == poll_at:
                a(f"s_cmp_eq_u32 s{sW}, 0")
                a("s_cbranch_scc1 L_poll")
                a.label("L_polled")
            if j == poll_at + 1:
                a(f"s_cmp_eq_u32 s{sW}, 0")
                a("s_cbranch_scc1 L_relay")
                a.label("L_relayed")
            if j == kdma_at:
                a(f"""v_mov_b32 v{t0}, {FLAG}
                ds_read_b32 v{t0}, v{t0}
                s_xor_b32 m0, s{sM0K}, s{sPAR}
                s_lshr_b32 s{sB}, s{sKOFF}, 14
                s_add_u32 s{sB}, s{sB}, 1
                s_waitcnt lgkmcnt(0)
                v_readfirstlane_b32 s{sA}, v{t0}
                s_cmp_eq_u32 s{sA}, {hex(0x7fffffff if opts.get("x_self") else all_ready(opts))}
                s_cselect_b32 s{sMODE}, 1, 0
                s_bitcmp1_b32 s{sA}, {0 if opts.get("x_self") else "s%d" % sB}
                s_cbranch_scc0 L_raw""")
                for p in range(4):
                    a(dma1(p, vKS, sX, sKOFF, " sc1"))
                a.label("L_kdone")
            if j == lump_at:
                a(f"s_cmp_eq_u32 s{sRAW}, 1")
                a("s_cbranch_scc0 L_lumped")
                a("s_waitcnt vmcnt(0)")
                a(f"s_call_b64 s[{sLINK}:{sLINK+1}], L_lump")
                a.label("L_lumped")
        stamp_it(a, opts, f"h{j}", kind)
    if opts.get("clk"):
        clock_sample(a, f"s{sI}")


def clock_sample(a, slot):
    a(f"""s_memtime s[60:61]
    s_memrealtime s[62:63]
    s_lshl_b32 s64, s2, 3
    s_add_u32 s64, s64, s{sW}
    s_lshl_b32 s64, s64, 7
    s_lshl_b32 s65, {slot}, 3
    s_add_u32 s64, s64, s65
    s_add_u32 s64, s64, 0x1000000
    s_mov_b32 s68, s{sWS}
    s_mov_b32 s69, s{sWS+1}
    s_mov_b32 s70, 0x2000000
    s_mov_b32 s71, 0x20000
    s_waitcnt lgkmcnt(0)
    v_mov_b32 v190, s60
    v_mov_b32 v191, s62
    v_mov_b32 v189, 0
    buffer_store_dwordx2 v[190:191], v189, s[68:71], s64 offen""")


def main_loop(a, opts):
    if opts.get("clk"):
        clock_sample(a, "8")
        a("""s_getreg_b32 s60, hwreg(HW_REG_XCC_ID)
        s_add_u32 s64, s64, 8
        v_mov_b32 v190, s60
        buffer_store_dwordx2 v[190:191], v189, s[68:71], s64 offen""")
    a("s_setprio 2" if opts.get("pp", 6) == 0 else "s_setprio 3")
    iteration(a, opts, "first")
    a(f"s_mov_b32 s{sI}, 1")
    a.label("L_hook")
    iteration(a, opts, "hook")
    a(f"""s_add_u32 s{sI}, s{sI}, 1
    s_cmp_eq_u32 s{sI}, 8
    s_cbranch_scc1 L_tail
    s_cmp_eq_u32 s{sMODE}, 0
    s_cbranch_scc1 L_hook""")
    a.raw(".p2align 6")
    a.label("L_lean")
    iteration(a, opts, "lean")
    a(f"""s_add_u32 s{sI}, s{sI}, 1
    s_cmp_lt_u32 s{sI}, 8
    s_cbranch_scc1 L_lean""")
    a.label("L_tail")
    a("s_nop 0")
    a(pv(1, 1, 7))


def side_blocks(a, opts):
    t0, t1 = vT[2], vT[3]
    a.label("L_poll")
    a(f"""s_lshl_b32 s{sA}, s{sH}, 4
    v_mov_b32 v{t0}, 0
    buffer_load_dword v{vPOLL}, v{t0}, s[{sG}:{sG+3}], s{sA} offen sc1
    s_branch L_polled""")
    a.label("L_relay")
    a(f"""v_mov_b32 v{t0}, {FLAG}
    s_waitcnt vmcnt(0)
    ds_write_b32 v{t0}, v{vPOLL}
    s_branch L_relayed""")
    a.label("L_signal")
    a(f"""s_and_b32 s{sA}, s{sC}, 14
    s_lshl_b32 s{sA}, 1, s{sA}
    v_mov_b32 v{t1}, s{sA}
    v_mov_b32 v{t0}, 0
    s_lshl_b32 s{sA}, s{sH}, 4
    s_mov_b64 exec, 1
    buffer_atomic_add v{t1}, v{t0}, s[{sG}:{sG+3}], s{sA} offen sc1
    s_mov_b64 exec, -1
    s_branch L_signalled""")
    a.label("L_raw")
    a(f"s_mov_b32 s{sRAW}, 1")
    for p in range(4):
        a(dma1(p, vVG, sK, sVOFF))
    a("s_branch L_kdone")
    a.label("L_lump")
    a(f"""s_mov_b32 s{sRAW}, 0
    v_add_u32 v{t0}, s{sPAR}, v{vRR}
    v_add_u32 v{t1}, s{sPAR}, v{vKW}""")
    read_rows(a, R, t0)
    a("s_waitcnt lgkmcnt(0)")
    normalise(a, R, hex(K_PAD[0]))
    write_frags(a, R, t1)
    a(f"""s_cmp_eq_u32 s{sPUB}, 1
    s_cbranch_scc0 L_lump_ret
    s_mov_b32 s{sPUB}, 2""")
    for p in range(4):
        a(f"buffer_store_dwordx4 {vr(R + 4 * p, 4)}, v{vKW}, s[{sX}:{sX+3}], s{sKOFF} offen offset:{piece_off(p)} sc1")
    a.label("L_lump_ret")
    a(f"s_setpc_b64 s[{sLINK}:{sLINK+1}]")


def finish_tile(a, src, dst, l1, l0):
    a(f"""v_mov_b32 v{l0}, v{src + 12}
    v_mov_b32 v{l1}, v{src + 12}
    s_nop 1
    v_permlane32_swap_b32 v{l0}, v{l1}
    s_nop 1
    v_rcp_f32 v{l1}, v{l1}
    s_nop 0""")
    for i in range(8):
        a(f"v_pk_mul_f32 {vr(dst + 2 * i, 2)}, {vr(src + 2 * i, 2)}, {vr(l1, 2)} op_sel_hi:[1,0]")
        if i >= 1:
            a(f"v_cvt_pk_bf16_f32 v{dst + i - 1}, v{dst + 2 * i - 2}, v{dst + 2 * i - 1}")
    a(f"v_cvt_pk_bf16_f32 v{dst + 7}, v{dst + 14}, v{dst + 15}")


def epilogue(a, opts):
    asym = opts.get("asym", 0)
    a.label("L_epi")
    stamp(a, opts, "done")
    t0, t1, t2 = vT[0:3]
    l0, l1 = vT[4], vT[3]
    a(f"""s_lshl_b32 s{sB}, s{sW}, {13 if asym else 12}
    s_and_b32 s{sB}, s{sB}, 0x7fff
    v_lshl_add_u32 v{t0}, v{vL}, 4, s{sB}
    v_xor_b32 v{t1}, 0x4000, v{t0}
    v_and_b32 v{t2}, 31, v0
    v_mul_u32_u24 v{t2}, 56, v{t2}
    v_bfe_u32 v{vT[3]}, v0, 5, 1
    v_lshl_add_u32 v{t2}, v{vT[3]}, 3, v{t2}
    s_add_u32 s{sB}, s{sB}, {VB[0]}
    v_add_u32 v{t2}, s{sB}, v{t2}
    s_and_b32 s{sA}, s{sW}, 3
    s_lshl_b32 s{sA}, s{sA}, 1""")
    if not asym:
        a(f"s_add_u32 s{sA}, s{sA}, s{sKS}")
    a(f"""s_mul_i32 s{sA}, s{sA}, {32 * 56}
    s_waitcnt lgkmcnt(0)
    s_cmp_eq_u32 s{sKS}, 0
    s_cbranch_scc1 L_epi0""")
    tiles = []
    if asym:
        a("s_barrier")
        for x in range(2):
            for p in (3, 0, 1, 2):
                a(f"ds_read_b128 {vr(S[x] + 4 * p, 4)}, v{t0} offset:{4096 * x + 1024 * p}")
        for x in range(2):
            for n, p in enumerate((3, 0, 1, 2)):
                a(f"s_waitcnt lgkmcnt({7 - 4 * x - n})")
                for i in (0, 2):
                    a(f"v_pk_add_f32 {vr(S[x] + 4 * p + i, 2)}, {vr(S[x] + 4 * p + i, 2)}, {vr(O[x] + 4 * p + i, 2)}")
            finish_tile(a, S[x], D[x], l1, l0)
        tiles = [0, 1]
        own = O
    else:
        for x in (1, 0):
            if x == 0:
                a.label("L_epi0")
                a("s_nop 3")
            keep, send = O[x], O[1 - x]
            for p in range(4):
                a(f"ds_write_b128 v{t0}, {vr(send + 4 * p, 4)} offset:{1024 * p}")
            a("s_waitcnt lgkmcnt(0)")
            stamp(a, opts, "sent")
            a("s_barrier")
            for p in (3, 0, 1, 2):
                a(f"ds_read_b128 {vr(S[1] + 4 * p, 4)}, v{t1} offset:{1024 * p}")
            for n, p in enumerate((3, 0, 1, 2)):
                a(f"s_waitcnt lgkmcnt({3 - n})")
                for i in (0, 2):
                    a(f"v_pk_add_f32 {vr(S[0] + 4 * p + i, 2)}, {vr(S[1] + 4 * p + i, 2)}, {vr(keep + 4 * p + i, 2)}")
            if x == 1:
                a("s_branch L_epi1")
        a.label("L_epi1")
        finish_tile(a, S[0], D[0], l1, l0)
        tiles = [0]
        own = [S[1]]
    for x in tiles:
        for g in range(3):
            a(f"ds_write_b64 v{t2}, {vr(D[x] + 2 * g, 2)} offset:{1792 * x + 16 * g}")
    a("s_mov_b32 exec_hi, 0")
    for x in tiles:
        a(f"ds_write_b64 v{t2}, {vr(D[x] + 6, 2)} offset:{1792 * x + 48}")
    a("s_mov_b32 exec_hi, -1")
    a(f"v_lshlrev_b32 v{t1}, 4, v{vL}")
    n = 2 * len(tiles)
    for p in range(n):
        a(f"ds_read_b128 {vr(KF[0] + 4 * p, 4)}, v{t0} offset:{VB[0] + 1024 * p}")
    for p in range(n):
        if p == n - 1:
            a("s_mov_b32 exec_hi, 0" if asym else "s_mov_b32 exec_hi, 0xffff")
        a(f"s_waitcnt lgkmcnt({n - 1 - p})")
        a(f"buffer_store_dwordx4 {vr(KF[0] + 4 * p, 4)}, v{t1}, s[{sO}:{sO+3}], s{sA} offen offset:{1024 * p}")
    a("s_mov_b32 exec_hi, -1")
    for x in tiles:
        for i in range(16):
            a(f"v_max_f32 v{S[x] + i}, abs(v{S[x] + i}), abs(v{own[x] + i})")
    vals = [S[x] + i for x in tiles for i in range(13)]
    a(f"v_min3_f32 v{l0}, v{vals[0]}, v{vals[1]}, v{vals[2]}")
    rest = vals[3:]
    while rest:
        b, c = rest[0], rest[1] if len(rest) > 1 else rest[0]
        a(f"v_min3_f32 v{l0}, v{l0}, v{b}, v{c}")
        rest = rest[2:]
    a("s_mov_b32 exec_hi, 0")
    for x in tiles:
        a(f"v_min3_f32 v{l0}, v{l0}, v{S[x] + 13}, v{S[x] + 14}")
        a(f"v_min_f32 v{l0}, v{S[x] + 15}, v{l0}")
    a(f"""s_mov_b32 exec_hi, -1
    v_cmp_gt_f32 vcc, {hex(O_MIN)}, v{l0}
    v_mov_b32 v{t0}, {FLAG + 4}
    v_mov_b32 v{t1}, 1
    s_cbranch_vccz L_final
    ds_write_b32 v{t0}, v{t1}
    s_waitcnt lgkmcnt(0)""")
    if asym:
        a("s_branch L_final")
        a.label("L_epi0")
        a("s_nop 3")
        for x in range(2):
            for p in range(4):
                a(f"ds_write_b128 v{t0}, {vr(O[x] + 4 * p, 4)} offset:{4096 * x + 1024 * p}")
        a(f"v_mov_b32 v{t0}, {FLAG + 4}")
        a("s_waitcnt lgkmcnt(0)")
        stamp(a, opts, "sent")
        a("s_barrier")
    a.label("L_final")
    a(f"""s_barrier
    ds_read_b32 v{t0}, v{t0}
    s_waitcnt lgkmcnt(0)
    v_readfirstlane_b32 s{sA}, v{t0}
    s_cmp_gt_u32 s{sA}, s{sSLOW}
    s_cbranch_scc1 L_redo""")
    if opts.get("stamps"):
        a("s_mov_b64 exec, -1")
        stamp(a, opts, "stored")
        a("s_waitcnt vmcnt(0)")
        stamp(a, opts, "end")
        dbg = opts["stamps"] == 2
        a(f"""s_memrealtime s[76:77]
        s_load_dwordx2 s[4:5], s[0:1], {40 if dbg else 48}
        s_waitcnt lgkmcnt(0)
        s_mov_b32 s6, {64 if dbg else 0x2000000}
        s_mov_b32 s7, 0x20000
        s_lshl_b32 s8, s2, 3
        s_add_u32 s8, s8, s{sW}""")
        if dbg:
            a("""s_cmp_eq_u32 s8, 2047
            s_cselect_b32 s9, 1, 2
            s_cmp_eq_u32 s8, 0
            s_cselect_b32 s8, 0, s9""")
        a("s_lshl_b32 s8, s8, 5")
        if not dbg:
            a("s_add_u32 s8, s8, 0x1000000")
        a("""v_mov_b32 v0, 0
        v_mov_b32 v1, s74
        buffer_store_dword v1, v0, s[4:7], s8 offen""")
        for n in range(1, 7):
            if opts["slots"][n] == "mode":
                a(f"s_mov_b32 s9, s{sP}")
            else:
                a(f"s_sub_u32 s9, s{sTS + 2 * n}, s{sTS}")
            a("v_mov_b32 v1, s9")
            a(f"buffer_store_dword v1, v0, s[4:7], s8 offen offset:{4 * n}")
        a("s_sub_u32 s9, s76, s74")
        a("v_mov_b32 v1, s9")
        a("buffer_store_dword v1, v0, s[4:7], s8 offen offset:28")
    if opts.get("hold"):
        if opts.get("span"):
            a("""s_waitcnt lgkmcnt(0)
            s_sub_u32 s8, s60, s62
            s_lshl_b32 s8, s8, 2
            s_add_u32 s74, s74, s8""")
        if opts.get("holdk"):
            a(f"""s_waitcnt lgkmcnt(0)
            s_sub_u32 s8, s60, s74
            s_lshl_b32 s8, s8, {0 if opts["holdk"] == 2 else 2}
            s_add_u32 s74, s74, s8""")
        a.label("L_hold")
        a(f"""s_sleep 4
        s_memrealtime s[76:77]
        s_waitcnt lgkmcnt(0)
        s_sub_u32 s9, s76, s74
        s_cmp_lt_i32 s9, {opts["hold"]}
        s_cbranch_scc1 L_hold""")
    a.label("L_end")
    a("s_endpgm")


def slow_path(a):
    x0 = vT[2]
    a.label("L_redo")
    a(f"""s_mov_b32 s{sFORCE}, 1
    s_waitcnt vmcnt(0)
    s_barrier
    s_branch L_start""")
    a.label("L_slow")
    a(f"""v_mov_b32 v{MXS[0]}, 0xff800000
    v_mov_b32 v{MXS[1]}, 0xff800000
    s_mov_b32 s{sP}, 0""")
    a.label("L_slow_pass")
    a(f"s_mov_b32 s{sVOFF}, 0")
    a.label("L_slow_chunk")
    a("s_waitcnt vmcnt(0) lgkmcnt(0)")
    a("s_barrier")
    dma4(a, sM0K, vVG, sK, f"s{sVOFF}")
    dma4(a, sM0V, vVG, sV, f"s{sVOFF}")
    a("s_waitcnt vmcnt(0)")
    read_rows(a, R, vRR)
    a("s_waitcnt lgkmcnt(0)")
    normalise(a, R, hex(K_PAD[0]))
    write_frags(a, R, vKW)
    a("s_waitcnt lgkmcnt(0)")
    a("s_barrier")
    for j in range(8):
        a(f"ds_read_b128 {vr(KF[0], 4)}, v{vAK} offset:{j * 2048}")
        a(f"ds_read_b128 {vr(KF[0] + 4, 4)}, v{vAK} offset:{j * 2048 + 1024}")
        for which in range(2):
            for part in range(2):
                base = (V1, V2)[which][0] + 2 * part
                a(f"ds_read_b64_tr_b16 {vr(base, 2)}, v{vAV} offset:{j * 1792 + 896 * which + 224 * part}")
        a("s_waitcnt lgkmcnt(0)")
        a(f"s_call_b64 s[{sLINK}:{sLINK+1}], L_slow_tile")
    a(f"""s_add_u32 s{sVOFF}, s{sVOFF}, {CHB}
    s_cmp_lt_u32 s{sVOFF}, {HEADB}
    s_cbranch_scc1 L_slow_chunk
    s_cmp_eq_u32 s{sP}, 1
    s_cbranch_scc1 L_slow_done""")
    for x in range(2):
        a(f"""v_mov_b32 v{x0}, v{MXS[x]}
        s_nop 1
        v_permlane32_swap_b32 v{x0}, v{MXS[x]}
        s_nop 1
        v_max_f32 v{MXS[x]}, v{x0}, v{MXS[x]}""")
    a(f"""s_barrier
    v_lshlrev_b32 v{x0}, 3, v0
    ds_write_b64 v{x0}, {vr(MXS[0], 2)}
    s_waitcnt lgkmcnt(0)
    s_barrier
    v_xor_b32 v{x0}, 2048, v{x0}
    ds_read_b64 {vr(S[0], 2)}, v{x0}
    s_waitcnt lgkmcnt(0)
    v_max_f32 v{MXS[0]}, v{MXS[0]}, v{S[0]}
    v_max_f32 v{MXS[1]}, v{MXS[1]}, v{S[0] + 1}
    s_mov_b32 s{sP}, 1
    s_branch L_slow_pass""")
    a.label("L_slow_done")
    a("s_barrier")
    a("s_nop 7")
    a("s_branch L_epi")
    a.label("L_slow_tile")
    for x in range(2):
        a(qk(x, 0, 0)); a(qk(x, 1, 0))
    a("s_nop 15")
    for x in range(2):
        for i in range(16):
            a(f"v_mul_f32 v{S[x] + i}, s{sT}, v{S[x] + i}")
    a(f"s_cmp_eq_u32 s{sP}, 1")
    a("s_cbranch_scc1 L_slow_exp")
    for x in range(2):
        for i in range(16):
            a(f"v_max_f32 v{MXS[x]}, v{MXS[x]}, v{S[x] + i}")
    a(f"s_setpc_b64 s[{sLINK}:{sLINK+1}]")
    a.label("L_slow_exp")
    for x in range(2):
        for i in range(16):
            a(f"v_sub_f32 v{S[x] + i}, v{S[x] + i}, v{MXS[x]}")
            a(f"v_mul_f32 v{S[x] + i}, {hex(LOG2E)}, v{S[x] + i}")
            a(f"v_exp_f32 v{S[x] + i}, v{S[x] + i}")
    a("s_nop 1")
    for x in range(2):
        a(pv(x, 0, 0)); a(pv(x, 1, 0))
    a(f"s_setpc_b64 s[{sLINK}:{sLINK+1}]")


SLOTS = {0: ["start", "setup", "prebar", "loop", "mode", "done", "end"],
         1: ["start", "karg", "issued", "setup", "kdata", "prebar", "end"],
         2: ["start", "loop", "done", "sent", "stored", "mode", "end"],
         3: ["start", "kdata", "mid", "qdata", "lump2", "prebar", "end"],
         4: ["start", "loop", "e1", "h1", "e3", "h3", "end"],
         5: ["start", "e4", "h4", "e5", "h5", "e6", "end"],
         6: ["start", "e0", "e2", "e4", "e5", "e6", "e7"],
         7: ["start", "loop", "e0", "h0", "e4", "h4", "e6"],
         8: ["start", "e5", "e6", "h6", "e7", "done", "end"],
         9: ["start", "e1", "h1", "e2", "h2", "e3", "h3"]}


def build(opts):
    opts["slots"] = SLOTS[opts.get("pro", 0)]
    a = Asm()
    name = "standalone__qk_norm__prompt_kernel"
    a.raw(HEADER + f"; @launch grid=(256,1,1) block=(512,1,1) lds={LDS_BYTES}")
    a.raw('.amdgcn_target "amdgcn-amd-amdhsa--gfx950"\n.text')
    if opts.get("align", 0):
        a.raw(".p2align 12\n.fill 832, 4, 0xbf800000")
    a.raw(f".globl {name}\n.p2align 8\n.type {name},@function\n{name}:")
    prologue(a, opts)
    main_loop(a, opts)
    epilogue(a, opts)
    side_blocks(a, opts)
    slow_path(a)
    txt = a.text()
    if opts.get("stamps"):
        txt = txt.replace(f"    s_mov_b32 s{sMODE}, 0\n", f"    s_mov_b32 s{sMODE}, 0\n    s_mov_b32 s{sP}, 0\n")
        txt = txt.replace(f"    s_mov_b32 s{sRAW}, 1\n", f"    s_mov_b32 s{sRAW}, 1\n    s_add_u32 s{sP}, s{sP}, 1\n")
    txt += f""".section .rodata,"a"
.p2align 6
.amdhsa_kernel {name}
  .amdhsa_next_free_vgpr {NVGPR}
  .amdhsa_next_free_sgpr {NSGPR}
  .amdhsa_accum_offset {NVGPR}
  .amdhsa_group_segment_fixed_size 0
  .amdhsa_kernarg_size 56
  .amdhsa_user_sgpr_count 2
  .amdhsa_user_sgpr_kernarg_segment_ptr 1
  .amdhsa_system_sgpr_workgroup_id_x 1
  .amdhsa_float_denorm_mode_32 3
.end_amdhsa_kernel
"""
    return txt


if __name__ == "__main__":
    opts = {}
    out = "standalone__qk_norm__prompt.s"
    for arg in sys.argv[1:]:
        k, _, v = arg.partition("=")
        if k == "out":
            out = v
        else:
            opts[k] = int(v)
    open(out, "w").write(build(opts))
```

```python
import sys

HEADER = """; Kernarg layout for this problem (56 bytes, ptrs only, base s[0:1]):
;   offset   0: d_in[0] q  shape=(1, 16, 4096, 28) dtype=bfloat16 strides=(3670016, 229376, 56, 2) contiguous=True
;   offset   8: d_in[1] k  shape=(1, 16, 4096, 28) dtype=bfloat16 strides=(3670016, 229376, 56, 2) contiguous=True
;   offset  16: d_in[2] v  shape=(1, 16, 4096, 28) dtype=bfloat16 strides=(3670016, 229376, 56, 2) contiguous=True
;   offset  32: d_out     shape=(1, 16, 4096, 28) dtype=bfloat16 (2 bytes/elem)
"""

HEADB = 229376
CHB = 28672
WSH = 262144
PAR = 0x10000
KB = [0, PAR]
VB = [32768, PAR + 32768]
ONES = 2 * PAR
QB = ONES + 14336
FLAG = QB + 16384
LDS_BYTES = FLAG + 256
T_LIMIT = 0x41800000
K_PAD = (0x3f803f80, 0x00003f80)
Q_PAD = {0: (0xc2420000, 0), 256: (0xc242c380, 0x4380), 1536: (0xc242c4c0, 0x44c0), 3072: (0xc242c540, 0x4540),
         6144: (0xc242c5c0, 0x45c0)}
O_MIN = 0x0c800000
LOG2E = 0x3fb8aa3b
EPS = 0x358637bd

sK, sV, sO, sX, sG = 16, 20, 24, 28, 32
sH, sC, sW, sT, sI, sVOFF, sM0V, sKS = 36, 37, 38, 39, 40, 41, 42, 43
sA, sB, sD = 44, 45, 46
sPAR, sM0K, sKOFF, sRAW, sMODE, sPUB, sSLOW = 47, 48, 49, 50, 51, 52, 53
sWS = 54
sP = 56
sFORCE = 57
sLINK = 58
sTS = 60
NSGPR = 80
vL, vKS, vVG, vKW, vAK, vAV, vDV, vIDX = 1, 2, 3, 4, 5, 6, 7, 8
vT = [9, 10, 11, 12, 13, 14, 15]
RQ = 16
QF = [[16, 20], [24, 28]]
O = [32, 48]
S = [64, 80]
KF = [96, 104]
V1 = [112, 116]
V2 = [120, 124]
R = 128
D = [144, 160]
A1, A2 = 176, 180
MX = [184, 185]
vRR, vPOLL = 186, 187
MXS = [188, 189]
SS = [S, [192, 208]]
NVGPR = 224


def first_pub(opts):
    return 2


def all_ready(opts):
    return sum(2 << (2 * n) for n in range(first_pub(opts) // 2, 8))


class Asm:
    def __init__(self):
        self.l = []
    def __call__(self, s):
        for x in s.split("\n"):
            self.l.append("    " + x.strip())
    def label(self, n):
        self.l.append(n + ":")
    def raw(self, s):
        self.l.append(s)
    def text(self):
        return "\n".join(self.l) + "\n"


def vr(a, n):
    return f"v[{a}:{a + n - 1}]"


def dma4(a, m0, vaddr, srd, soff, flags="", exact=False):
    a(f"s_mov_b32 m0, s{m0}")
    a("s_nop 0")
    for p in range(4):
        if exact and p == 3:
            a("s_mov_b32 exec_hi, 0")
        a(f"buffer_load_dwordx4 v{vaddr}, s[{srd}:{srd+3}], {soff} offen offset:{1024 * p}{flags} lds")
    if exact:
        a("s_mov_b32 exec_hi, -1")


def read_rows(a, r, vaddr):
    for i in range(3):
        a(f"ds_read2_b64 {vr(r + 4 * i, 4)}, v{vaddr} offset0:{2 * i} offset1:{2 * i + 1}")
    a(f"ds_read_b64 {vr(r + 12, 2)}, v{vaddr} offset:48")


def normalise(a, r, pad, dst, scale=None, mid=None, mid2=None, st=lambda n: None):
    nrm = vT[1]
    acc = MX[0]
    a(f"v_mfma_f32_32x32x16_bf16 {vr(D[0], 16)}, {vr(A1, 4)}, {vr(r, 4)}, 0")
    a(f"v_mfma_f32_32x32x16_bf16 {vr(D[0], 16)}, {vr(A2, 4)}, {vr(r + 4, 4)}, {vr(D[0], 16)}")
    a(f"v_mfma_f32_32x32x16_bf16 {vr(D[1], 16)}, {vr(A1, 4)}, {vr(r + 8, 4)}, 0")
    a(f"v_mfma_f32_32x32x16_bf16 {vr(D[1], 16)}, {vr(A2, 4)}, {vr(r + 12, 4)}, {vr(D[1], 16)}")
    if mid:
        mid(a)
    a(f"v_mov_b32 v{r + 7}, {pad}")
    a("s_nop 2" if mid else "s_nop 8")
    st("n1")
    for i in range(14):
        d = vr(D[0] + 2 * i, 2)
        if i == 0:
            a(f"v_pk_mul_f32 {vr(acc, 2)}, {d}, {d}")
        else:
            a(f"v_pk_fma_f32 {vr(acc, 2)}, {d}, {d}, {vr(acc, 2)}")
    a(f"v_add_f32 v{nrm}, v{acc}, v{acc + 1}")
    st("n2")
    a(f"v_sqrt_f32 v{nrm}, v{nrm}")
    a("s_nop 0")
    a(f"v_add_f32 v{nrm}, {hex(EPS)}, v{nrm}")
    a(f"v_rcp_f32 v{nrm}, v{nrm}")
    a("s_nop 0")
    if scale is not None:
        a(f"v_mul_f32 v{nrm}, v{scale}, v{nrm}")
    st("n3")
    if mid2:
        mid2(a)
    for i in range(14):
        d = D[0] + 2 * i
        a(f"v_pk_mul_f32 {vr(d, 2)}, {vr(d, 2)}, {vr(nrm, 2)} op_sel_hi:[1,0]")
        if i in (5, 8, 12):
            write_frag(a, r, dst, (5, 8, 12).index(i))
        if i >= 1:
            a(f"v_cvt_pk_bf16_f32 v{r + i - 1 + (i > 7)}, v{d - 2}, v{d - 1}")
    a(f"v_cvt_pk_bf16_f32 v{r + 14}, v{D[0] + 26}, v{D[0] + 27}")
    write_frag(a, r, dst, 3)


def piece_off(p):
    return (p >> 1) * 1024 + (p & 1) * 512


def write_frag(a, r, vaddr, p):
    a(f"ds_write_b128 v{vaddr}, {vr(r + 4 * p, 4)} offset:{piece_off(p)}")


def rdK(f, tile):
    return f"ds_read_b128 {vr(KF[0] + 4 * f, 4)}, v{vAK} offset:{(tile % 8) * 2048 + 1024 * f}"


def rdV(which, part, tile):
    b = tile & 1
    base = (V1, V2)[which][b] + 2 * part
    return f"ds_read_b64_tr_b16 {vr(base, 2)}, v{vAV} offset:{(tile % 8) * 1792 + 896 * which + 224 * part}"


def qk(x, f, tile):
    s = SS[tile & 1][x]
    c = "0" if f == 0 else vr(s, 16)
    return f"v_mfma_f32_32x32x16_bf16 {vr(s, 16)}, {vr(KF[0] + 4 * f, 4)}, {vr(QF[x][f], 4)}, {c}"


def pv(x, which, tile):
    v = (V1, V2)[which][tile & 1]
    return f"v_smfmac_f32_32x32x32_bf16 {vr(O[x], 16)}, {vr(v, 4)}, {vr(SS[tile & 1][x] + 8 * which, 8)}, v{vIDX}"


def step(a, j, slots, sync=None):
    e = [f"v_exp_f32 v{SS[j & 1][x] + 8 * h + i}, v{SS[j & 1][x] + 8 * h + i}" for h in range(2) for x in range(2) for i in range(8)]
    m = [pv(0, 1, j - 1), pv(1, 1, j - 1), qk(0, 0, j + 1), qk(1, 0, j + 1), qk(0, 1, j + 1), qk(1, 1, j + 1),
         pv(0, 0, j), pv(1, 0, j)]
    r = [rdV(0, 1, j + 1), rdV(1, 0, j + 1), rdV(1, 1, j + 1), rdK(0, j + 2), None, rdK(1, j + 2), None, rdV(0, 0, j + 2)]
    pos = 0
    for g in range(8):
        for i in range(pos, 2 + 4 * g):
            a(e[i])
        pos = 2 + 4 * g
        a(m[g])
        if g == 3 and sync:
            sync(a)
        if r[g]:
            a(r[g])
        for ins in slots.get(g, []):
            a(ins)
    for i in range(pos, 32):
        a(e[i])


HOLD_POINTS = [None, "loop", "done", "karg", "issued", "kdata", "lump2", "prebar", "setup", "qdata"]


def stamp(a, opts, name):
    if opts.get("holdk") and HOLD_POINTS[opts["holdk"]] == name:
        a("s_memrealtime s[60:61]")
    if opts.get("stamps") and name in opts["slots"]:
        n = opts["slots"].index(name)
        a(f"s_memtime s[{sTS + 2 * n}:{sTS + 2 * n + 1}]")


def stamp_it(a, opts, name, kind):
    if opts.get("span") and name in (f"e{opts['span']}", f"h{opts['span']}") and kind == "hook":
        a(f"s_cmp_eq_u32 s{sI}, 1")
        a(f"s_cbranch_scc0 L_sp_{name}")
        a("s_memrealtime s[62:63]" if name[0] == "e" else "s_memrealtime s[60:61]")
        a.label(f"L_sp_{name}")
    if opts.get("stamps") and name in opts["slots"]:
        a(f"s_cmp_eq_u32 s{sI}, {opts.get('it', 0)}")
        a(f"s_cbranch_scc0 L_st_{name}_{kind}")
        stamp(a, opts, name)
        a.label(f"L_st_{name}_{kind}")


def prologue(a, opts):
    t0, t1, t2, t3, t4 = vT[2:7]
    z = V2[1]
    m4 = opts.get("m4", 1)
    touch = opts.get("touch", 1)
    a("s_cmp_ge_u32 s2, 256")
    a("s_cbranch_scc1 L_end")
    a(f"s_mov_b32 s{sFORCE}, 0")
    a.label("L_start")
    stamp(a, opts, "start")
    if opts.get("stamps") or opts.get("hold"):
        a("s_memrealtime s[74:75]")
    if opts.get("hold"):
        a("s_memrealtime s[60:61]")
    a("s_load_dwordx8 s[4:11], s[0:1], 0")
    a("s_load_dwordx4 s[12:15], s[0:1], 32")
    a(f"s_load_dwordx2 s[{sWS}:{sWS+1}], s[0:1], 48")
    a(f"""v_lshrrev_b32 v{t0}, 6, v0
    v_and_b32 v{vL}, 63, v0
    s_and_b32 s{sA}, s2, 7
    v_readfirstlane_b32 s{sW}, v{t0}
    s_lshl_b32 s{sA}, s{sA}, 1
    s_bfe_u32 s{sB}, s2, 0x10003
    s_add_u32 s{sH}, s{sA}, s{sB}
    s_lshr_b32 s{sC}, s2, 4""")
    if opts.get("x_perm"):
        a(f"s_lshr_b32 s{sH}, s2, 4")
        a(f"s_and_b32 s{sC}, s2, 15")
    if opts.get("pf", 1):
        a(f"""s_cmp_eq_u32 s{sW}, 7
        s_cbranch_scc0 L_nopf
        s_getpc_b64 s[{sG}:{sG+1}]
        s_mov_b32 s{sG+2}, L_raw-standalone__qk_norm__prompt_kernel
        s_mov_b32 s{sG+3}, 0x20000
        v_lshlrev_b32 v{t0}, 7, v{vL}
        buffer_load_dword v{vPOLL}, v{t0}, s[{sG}:{sG+3}], 0 offen
        s_movk_i32 s{sA}, 0x2000
        buffer_load_dword v{vPOLL}, v{t0}, s[{sG}:{sG+3}], s{sA} offen""")
        a.label("L_nopf")
    a(f"""s_mul_i32 s{sA}, s{sH}, {HEADB}
    s_mul_i32 s{sD}, s{sC}, 14336
    s_add_u32 s{sB}, s{sD}, s{sA}
    s_lshr_b32 s{sKS}, s{sW}, 2
    s_mul_i32 s{sM0V}, s{sW}, 3584
    v_lshlrev_b32 v{vAK}, 4, v{vL}
    v_add_u32 v{vVG}, s{sM0V}, v{vAK}
    s_add_u32 s{sM0V}, s{sM0V}, {VB[0]}
    s_lshl_b32 s{sM0K}, s{sW}, 12
    s_mov_b32 s{sK+2}, {HEADB}
    s_mov_b32 s{sK+3}, 0x20000
    s_mov_b32 s{sX+2}, 14336
    s_mov_b32 s{sX+3}, 0x20000
    s_add_u32 s{sMODE}, s{sM0K}, {QB}
    s_lshr_b32 s{sD}, s{sH}, 1
    s_lshl_b32 s{sD}, s{sD}, 2""")

    def setup_a(a):
        a(f"""v_mov_b32 v{R+15}, {hex(K_PAD[1])}
        s_mov_b32 vcc_lo, 0xaaaaaaaa
        s_mov_b32 vcc_hi, 0xaaaaaaaa
        v_cndmask_b32 v{t1}, v{R+15}, 1.0, vcc""")
        for p in range(8):
            lo = 3 << (8 * (p >> 1) + 2 * (p & 1))
            a(f"s_mov_b32 vcc_lo, {hex(lo)}")
            a(f"s_mov_b32 vcc_hi, {hex(lo << 4)}")
            a(f"v_cndmask_b32 v{A1 + p}, 0, v{t1}, vcc")
        a(f"""v_mov_b32 v{R+14}, 0
        v_lshrrev_b32 v{t0}, 5, v0
        v_mul_u32_u24 v{t0}, 1536, v{t0}
        v_lshl_add_u32 v{vKW}, v0, 4, v{t0}
        v_mad_u32_u24 v{vRR}, v{vL}, 56, s{sM0K}""")

    if opts.get("prek", 1) == 1:
        setup_a(a)
    a("s_waitcnt lgkmcnt(0)")
    stamp(a, opts, "karg")
    a(f"""s_add_u32 s{sK}, s6, s{sA}
    s_addc_u32 s{sK+1}, s7, 0""")
    dma4(a, sM0K, vVG, sK, 0, exact=m4)
    if opts.get("prek", 1) == 2:
        setup_a(a)
    a(f"""s_cmp_eq_u32 s{sKS}, 0
    s_cbranch_scc0 L_noq
    s_add_u32 s{sX}, s4, s{sB}
    s_addc_u32 s{sX+1}, s5, 0""")
    dma4(a, sMODE, vVG, sX, 0, exact=m4)
    a.label("L_noq")
    a(f"""s_add_u32 s{sV}, s8, s{sA}
    s_addc_u32 s{sV+1}, s9, 0
    s_mov_b32 s{sV+2}, {HEADB}
    s_mov_b32 s{sV+3}, 0x20000""")
    if touch:
        a(f"""s_cmp_eq_u32 s{sW}, 4
        s_cbranch_scc0 L_notouch
        s_mul_i32 s{sP}, s{sC}, 1792
        v_lshlrev_b32 v{t0}, 7, v{vL}
        s_mov_b64 exec, 0x3fff
        buffer_load_dword v{vPOLL}, v{t0}, s[{sV}:{sV+3}], s{sP} offen
        s_mov_b64 exec, -1""")
        a.label("L_notouch")
    a(f"s_load_dword s{sT}, s[10:11], s{sD}")
    stamp(a, opts, "issued")
    if not opts.get("prek", 1):
        setup_a(a)
    a(f"""s_add_u32 s{sO}, s12, s{sB}
    s_addc_u32 s{sO+1}, s13, 0
    s_mov_b32 s{sO+2}, 14336
    s_mov_b32 s{sO+3}, 0x20000
    s_mov_b32 s{sG}, s14
    s_mov_b32 s{sG+1}, s15
    s_mov_b32 s{sG+2}, 256
    s_mov_b32 s{sG+3}, 0x20000
    s_mul_i32 s{sA}, s{sH}, {WSH}
    s_add_u32 s{sX}, s{sWS}, s{sA}
    s_addc_u32 s{sX+1}, s{sWS+1}, 0
    s_mov_b32 s{sX+2}, {WSH}
    v_mov_b64 {vr(z, 2)}, 0
    v_mov_b64 {vr(z + 2, 2)}, 0
    s_and_b32 s{sPUB}, s{sC}, 1
    s_cmp_eq_u32 s{sPUB}, s{sKS}
    s_cselect_b32 s{sPUB}, 1, 0
    s_cmp_ge_u32 s{sC}, {first_pub(opts)}
    s_cselect_b32 s{sPUB}, s{sPUB}, 0
    v_mfma_f32_32x32x16_bf16 {vr(O[0], 16)}, {vr(z, 4)}, {vr(z, 4)}, 0
    s_lshr_b32 s{sKOFF}, s{sC}, 1
    s_max_u32 s{sKOFF}, s{sKOFF}, 1
    s_mul_i32 s{sVOFF}, s{sKOFF}, {CHB}
    s_lshl_b32 s{sKOFF}, s{sKOFF}, 15
    s_lshl_b32 s{sA}, s{sKS}, 14
    v_add_u32 v{vAK}, s{sA}, v{vAK}
    s_mul_i32 s{sA}, s{sKS}, {8 * 1792}
    s_add_u32 s{sA}, s{sA}, {VB[0]}
    v_and_b32 v{t0}, 15, v0
    v_bfe_u32 v{t1}, v0, 2, 2
    v_mad_u32_u24 v{t0}, v{t1}, 3, v{t0}
    v_lshrrev_b32 v{t1}, 4, v{vL}
    v_lshl_add_u32 v{t0}, v{t1}, 2, v{t0}
    v_lshrrev_b32 v{t1}, 5, v{vL}
    v_mad_u32_u24 v{t0}, v{t1}, 48, v{t0}
    v_mfma_f32_32x32x16_bf16 {vr(O[1], 16)}, {vr(z, 4)}, {vr(z, 4)}, 0
    v_lshl_add_u32 v{vAV}, v{t0}, 3, s{sA}
    v_mov_b32 v{vDV}, {PAR}
    v_lshlrev_b32 v{t1}, 6, v{t1}
    v_sub_u32 v{t1}, {ONES + 224}, v{t1}
    s_mov_b32 vcc_lo, 0x88880000
    s_mov_b32 vcc_hi, 0x88880000
    v_cndmask_b32 v{vAV}, v{vAV}, v{t1}, vcc
    v_cndmask_b32 v{vDV}, v{vDV}, v{R+14}, vcc
    v_mov_b32 v{vIDX}, 0xdddddddd
    v_mfma_f32_32x32x16_bf16 {vr(SS[1][0], 16)}, {vr(z, 4)}, {vr(z, 4)}, 0
    v_mfma_f32_32x32x16_bf16 {vr(SS[1][1], 16)}, {vr(z, 4)}, {vr(z, 4)}, 0
    s_cmp_eq_u32 s{sKS}, 0
    s_cbranch_scc1 L_two""")

    def temperature(a):
        a(f"""s_bitcmp1_b32 s{sH}, 0
        s_cselect_b32 s{sA}, 0, 16
        s_lshl_b32 s{sT}, s{sT}, s{sA}
        s_and_b32 s{sT}, s{sT}, 0xffff0000
        s_and_b32 s{sA}, s{sT}, 0x7fffffff
        s_cmp_gt_u32 s{sA}, {hex(T_LIMIT)}
        s_cselect_b32 s{sSLOW}, 1, s{sFORCE}""")

    a(f"""v_subrev_u32 v{t2}, 14336, v{vVG}
    s_sub_u32 s{sMODE}, s{sM0V}, 14336
    s_cmp_eq_u32 s{sW}, 6
    s_cbranch_scc0 L_noones
    v_lshrrev_b32 v{t0}, 3, v{vL}
    v_mul_u32_u24 v{t0}, 1792, v{t0}
    v_bfe_u32 v{t1}, v0, 2, 1
    v_mul_u32_u24 v{t1}, 896, v{t1}
    v_add_u32 v{t0}, v{t0}, v{t1}
    v_bfe_u32 v{t1}, v0, 1, 1
    v_mul_u32_u24 v{t1}, 224, v{t1}
    v_add_u32 v{t0}, v{t0}, v{t1}
    v_and_b32 v{t1}, 1, v0
    v_lshl_add_u32 v{t0}, v{t1}, 6, v{t0}
    v_add_u32 v{t0}, {ONES + 160}, v{t0}
    v_mov_b32 v{t1}, {FLAG}
    v_mov_b32 v{D[0]}, 0x3f80
    v_mov_b32 v{D[0] + 1}, 0
    ds_write_b64 v{t0}, {vr(D[0], 2)}
    ds_write_b64 v{t1}, {vr(z, 2)}""")
    a.label("L_noones")
    stamp(a, opts, "setup")
    vearly = opts.get("vearly", 0)
    if vearly:
        dma4(a, sMODE, t2, sV, 0, exact=m4)
    if vearly == 2:
        dma4(a, sM0V, vVG, sV, 0, exact=m4)
    if touch:
        a(f"""s_waitcnt vmcnt({4 * vearly + 1})
        s_cmp_eq_u32 s{sW}, 4
        s_cbranch_scc1 L_kready""")
    a(f"s_waitcnt vmcnt({4 * vearly})")
    a.label("L_kready")
    stamp(a, opts, "kdata")
    read_rows(a, R, vRR)

    def load_v(a):
        if not vearly:
            dma4(a, sMODE, t2, sV, 0, exact=m4)
        if vearly < 2:
            dma4(a, sM0V, vVG, sV, 0, exact=m4)
    vpos = opts.get("vpos", 0)
    if vpos == 0:
        load_v(a)
    a("s_waitcnt lgkmcnt(0)")
    temperature(a)
    normalise(a, R, hex(K_PAD[0]), vKW, mid=load_v if vpos == 1 and vearly < 2 else None)
    if not opts.get("bar2", 1):
        a("s_waitcnt vmcnt(0)")
    a("s_branch L_join")
    a.label("L_two")
    a(f"""v_mov_b32 v{RQ+14}, 0
    v_add_u32 v{t2}, {QB}, v{vRR}
    v_add_u32 v{t3}, {QB}, v{vKW}""")
    stamp(a, opts, "setup")
    a("s_waitcnt vmcnt(4)")
    stamp(a, opts, "kdata")
    read_rows(a, R, vRR)
    a("s_waitcnt lgkmcnt(0)")

    def scale_setup(a):
        temperature(a)
        qa, qb = Q_PAD[opts.get("M", 1536)]
        a(f"""s_cmp_eq_u32 s{sSLOW}, 1
        s_cselect_b32 s{sD}, 0, {hex(qa)}
        s_cselect_b32 s{sA}, 0, {hex(qb)}
        s_cselect_b64 vcc, -1, 0
        v_mov_b32 v{t4}, {hex(LOG2E)}
        v_mul_f32 v{t4}, s{sT}, v{t4}
        v_mov_b32 v{RQ+15}, s{sA}
        v_cndmask_b32 v{t4}, v{t4}, 1.0, vcc""")

    def second_rows(a):
        stamp(a, opts, "mid")
        a("s_waitcnt vmcnt(0)")
        stamp(a, opts, "qdata")
        read_rows(a, RQ, t2)
    if opts.get("qlate", 1):
        normalise(a, R, hex(K_PAD[0]), vKW, mid=scale_setup)
        second_rows(a)
        a("s_waitcnt lgkmcnt(0)")
    else:
        normalise(a, R, hex(K_PAD[0]), vKW, mid=scale_setup, mid2=second_rows)
        a("s_waitcnt lgkmcnt(4)")
    stamp(a, opts, "n0")
    normalise(a, RQ, f"s{sD}", t3, scale=t4, st=lambda n: stamp(a, opts, n))
    stamp(a, opts, "n5")
    a.label("L_join")
    stamp(a, opts, "lump2")
    a(f"s_mov_b32 s{sPAR}, {PAR}")
    a(f"""v_lshl_add_u32 v{vKS}, v{vL}, 4, s{sM0K}
    s_and_b32 s{sA}, s{sW}, 3
    s_lshl_b32 s{sA}, s{sA}, 12
    s_add_u32 s{sA}, s{sA}, {QB}
    v_lshl_add_u32 v{t0}, v{vL}, 4, s{sA}
    s_mov_b32 s{sMODE}, 0
    s_mov_b32 s{sRAW}, 0
    s_mov_b32 s{sI}, 0
    s_waitcnt lgkmcnt(0)""")
    if opts.get("obias"):
        import struct
        bits = struct.unpack("<I", struct.pack("<f", -1.5 * 2.0 ** (opts["obias"] - 48)))[0]
        for i in range(32):
            a(f"v_mov_b32 v{O[0] + i}, {hex(bits)}")
    stamp(a, opts, "prebar")
    a("s_barrier")
    a(rdK(0, 0))
    a(f"ds_read_b128 {vr(QF[0][0], 4)}, v{t0}")
    a(f"ds_read_b128 {vr(QF[1][0], 4)}, v{t0} offset:2048")
    a(rdK(1, 0))
    a(f"ds_read_b128 {vr(QF[0][1], 4)}, v{t0} offset:1024")
    a(f"ds_read_b128 {vr(QF[1][1], 4)}, v{t0} offset:3072")
    a(f"s_cmp_eq_u32 s{sSLOW}, 1")
    a("s_cbranch_scc1 L_slow")
    if opts.get("bar2", 1):
        a("s_waitcnt lgkmcnt(4)")
        a(qk(0, 0, 0))
        a("s_waitcnt lgkmcnt(1)")
        a(qk(0, 1, 0))
        a("s_waitcnt lgkmcnt(0)")
        a(qk(1, 0, 0))
        a(rdK(0, 1))
        a(qk(1, 1, 0))
        a(rdK(1, 1))
        a("s_waitcnt vmcnt(0)")
        a("s_barrier")
        a(rdV(0, 0, 0)); a(rdV(0, 1, 0)); a(rdV(1, 0, 0)); a(rdV(1, 1, 0))
        a(rdV(0, 0, 1))
    else:
        a(rdV(0, 0, 0)); a(rdV(0, 1, 0)); a(rdV(1, 0, 0)); a(rdV(1, 1, 0))
        a("s_waitcnt lgkmcnt(8)")
        a(qk(0, 0, 0))
        a("s_waitcnt lgkmcnt(5)")
        a(qk(0, 1, 0))
        a("s_waitcnt lgkmcnt(4)")
        a(qk(1, 0, 0))
        a(rdK(0, 1))
        a(qk(1, 1, 0))
        a(rdK(1, 1)); a(rdV(0, 0, 1))
        a("s_nop 6")
    stamp(a, opts, "loop")


PRIO_POINTS = [[(4, 4), (5, 4), (6, 0)], [(4, 0), (5, 0), (5, 7)], [(3, 7), (5, 0), (6, 0)], [(5, 0), (5, 6), (6, 0)],
               [(1, 7), (3, 7), (5, 7)]]


def dma1(p, vaddr, srd, soff, flags=""):
    return f"buffer_load_dwordx4 v{vaddr}, s[{srd}:{srd+3}], s{soff} offen offset:{1024 * p}{flags} lds"


def iteration(a, opts, kind):
    poll_at = opts.get("poll", 2)
    kdma_at = opts.get("kdma", 4)
    lump0_at = opts.get("lump0", 4)
    lump_at = opts.get("lump", 5)
    t0, t1 = vT[2], vT[3]
    sl = {j: {} for j in range(8)}

    def put(j, g, ins):
        sl[j].setdefault(g, []).append(ins)

    groups = {"first": [("K", 0), ("V", 2)], "hook": [("V", 0)], "lean": [("V", 0), ("G", 2)]}[kind]
    for what, j0 in groups:
        put(j0, 0, f"s_xor_b32 m0, s{sM0V if what == 'V' else sM0K}, s{sPAR}")
        for p in range(4):
            ins = {"K": dma1(p, vVG, sK, sVOFF), "V": dma1(p, vVG, sV, sVOFF), "G": dma1(p, vKS, sX, sKOFF, " sc1")}[what]
            put(j0 + (p >> 1), (4, 6)[p & 1], ins)
    for j in range(8):
        put(j, 1, "s_waitcnt lgkmcnt(3)")
    for lvl, (j, g) in zip((2, 1, 0), PRIO_POINTS[opts.get("pp", 1)]):
        put(j, g, f"s_setprio {lvl}")
    put(6, 4, f"s_add_u32 s{sKOFF}, s{sKOFF}, 32768")
    put(6, 6, f"s_add_u32 s{sVOFF}, s{sVOFF}, {CHB}")
    put(6, 6, f"s_xor_b32 s{sPAR}, s{sPAR}, {PAR}")
    put(7, 0, f"s_cmp_eq_u32 s{sKOFF}, {8 * 32768}")
    put(7, 4, f"s_cselect_b32 s{sKOFF}, 32768, s{sKOFF}")
    put(7, 6, f"s_cselect_b32 s{sVOFF}, {CHB}, s{sVOFF}")
    if kind == "lean" and opts.get("nojunk", 1):
        put(5, 4, f"s_cmp_eq_u32 s{sI}, 6")
        put(5, 6, f"s_cselect_b32 s{sA}, 0x40000000, 0")
        put(7, 6, f"s_or_b32 s{sKOFF}, s{sKOFF}, s{sA}")
        put(7, 7, f"s_or_b32 s{sVOFF}, s{sVOFF}, s{sA}")

    def sync(a):
        a("s_waitcnt vmcnt(0) lgkmcnt(0)")
        a("s_barrier")
        a("s_setprio 3")
        a(f"v_xor_b32 v{vAK}, {PAR}, v{vAK}")
        a(f"v_xor_b32 v{vAV}, v{vDV}, v{vAV}")

    for j in range(8):
        step(a, j, sl[j], sync if j == 6 else None)
        stamp_it(a, opts, f"e{j}", kind)
        if kind == "first":
            if j == lump0_at:
                a("s_waitcnt vmcnt(4)")
                lump(a, publish=True)
            if j == 6:
                a(f"""s_and_b32 s{sA}, s{sW}, 3
                s_cselect_b32 s{sA}, 0, s{sPUB}
                s_cmp_eq_u32 s{sA}, 1
                s_cbranch_scc0 L_signalled
                s_and_b32 s{sA}, s{sC}, 14
                s_lshl_b32 s{sA}, 1, s{sA}
                v_mov_b32 v{t1}, s{sA}
                v_mov_b32 v{t0}, 0
                s_lshl_b32 s{sA}, s{sH}, 4
                s_mov_b64 exec, 1
                buffer_atomic_add v{t1}, v{t0}, s[{sG}:{sG+3}], s{sA} offen sc1
                s_mov_b64 exec, -1""")
                a.label("L_signalled")
        if kind == "hook":
            if j == poll_at:
                a(f"""s_cmp_eq_u32 s{sW}, 0
                s_cbranch_scc0 L_polled
                s_lshl_b32 s{sA}, s{sH}, 4
                v_mov_b32 v{t0}, 0
                buffer_load_dword v{vPOLL}, v{t0}, s[{sG}:{sG+3}], s{sA} offen sc1""")
                a.label("L_polled")
            if j == poll_at + 1:
                a(f"""s_cmp_eq_u32 s{sW}, 0
                s_cbranch_scc0 L_relayed
                v_mov_b32 v{t0}, {FLAG}
                s_waitcnt vmcnt(0)
                ds_write_b32 v{t0}, v{vPOLL}""")
                a.label("L_relayed")
            if j == kdma_at:
                a(f"""v_mov_b32 v{t0}, {FLAG}
                ds_read_b32 v{t0}, v{t0}
                s_xor_b32 m0, s{sM0K}, s{sPAR}
                s_lshr_b32 s{sB}, s{sKOFF}, 14
                s_add_u32 s{sB}, s{sB}, 1
                s_waitcnt lgkmcnt(0)
                v_readfirstlane_b32 s{sA}, v{t0}
                s_cmp_eq_u32 s{sA}, {hex(0x7fffffff if opts.get("x_self") else all_ready(opts))}
                s_cselect_b32 s{sMODE}, 1, 0
                s_bitcmp1_b32 s{sA}, {0 if opts.get("x_self") else "s%d" % sB}
                s_cbranch_scc0 L_raw""")
                for p in range(4):
                    a(dma1(p, vKS, sX, sKOFF, " sc1"))
                a.label("L_kdone")
            if j == lump_at:
                a(f"s_cmp_eq_u32 s{sRAW}, 1")
                a("s_cbranch_scc1 L_lump")
                a.label("L_lumped")
        stamp_it(a, opts, f"h{j}", kind)
    if opts.get("clk"):
        clock_sample(a, f"s{sI}")


def clock_sample(a, slot):
    a(f"""s_memtime s[60:61]
    s_memrealtime s[62:63]
    s_lshl_b32 s64, s2, 3
    s_add_u32 s64, s64, s{sW}
    s_lshl_b32 s64, s64, 7
    s_lshl_b32 s65, {slot}, 3
    s_add_u32 s64, s64, s65
    s_add_u32 s64, s64, 0x1000000
    s_mov_b32 s68, s{sWS}
    s_mov_b32 s69, s{sWS+1}
    s_mov_b32 s70, 0x2000000
    s_mov_b32 s71, 0x20000
    s_waitcnt lgkmcnt(0)
    v_mov_b32 v190, s60
    v_mov_b32 v191, s62
    v_mov_b32 v189, 0
    buffer_store_dwordx2 v[190:191], v189, s[68:71], s64 offen""")


def main_loop(a, opts):
    if opts.get("clk"):
        clock_sample(a, "8")
        a("""s_getreg_b32 s60, hwreg(HW_REG_XCC_ID)
        s_add_u32 s64, s64, 8
        v_mov_b32 v190, s60
        buffer_store_dwordx2 v[190:191], v189, s[68:71], s64 offen""")
    a("s_setprio 3")
    iteration(a, opts, "first")
    a(f"s_mov_b32 s{sI}, 1")
    a.label("L_hook")
    iteration(a, opts, "hook")
    a(f"""s_add_u32 s{sI}, s{sI}, 1
    s_cmp_eq_u32 s{sI}, 8
    s_cbranch_scc1 L_tail
    s_cmp_eq_u32 s{sMODE}, 0
    s_cbranch_scc1 L_hook""")
    a.raw(".p2align 6")
    a.label("L_lean")
    iteration(a, opts, "lean")
    a(f"""s_add_u32 s{sI}, s{sI}, 1
    s_cmp_lt_u32 s{sI}, 8
    s_cbranch_scc1 L_lean""")
    a.label("L_tail")
    a(pv(0, 1, 7))
    a(pv(1, 1, 7))


def lump(a, publish):
    t0, t1 = vT[2], vT[3]
    a(f"v_add_u32 v{t0}, s{sPAR}, v{vRR}")
    a(f"v_add_u32 v{t1}, s{sPAR}, v{vKW}")
    read_rows(a, R, t0)
    a("s_waitcnt lgkmcnt(0)")
    normalise(a, R, hex(K_PAD[0]), t1)
    if publish:
        a(f"s_cmp_eq_u32 s{sPUB}, 1")
        a("s_cbranch_scc0 L_published")
        for p in range(4):
            a(f"buffer_store_dwordx4 {vr(R + 4 * p, 4)}, v{vKW}, s[{sX}:{sX+3}], s{sKOFF} offen offset:{piece_off(p)} sc1")
        a.label("L_published")


def side_blocks(a, opts):
    a.label("L_raw")
    a(f"s_mov_b32 s{sRAW}, 1")
    for p in range(4):
        a(dma1(p, vVG, sK, sVOFF))
    a("s_branch L_kdone")
    a.label("L_lump")
    a(f"s_mov_b32 s{sRAW}, 0")
    a("s_waitcnt vmcnt(0)")
    lump(a, publish=False)
    a("s_branch L_lumped")


def finish_tile(a, src, dst, l1, l0):
    a(f"""v_mov_b32 v{l0}, v{src + 12}
    v_mov_b32 v{l1}, v{src + 12}
    s_nop 1
    v_permlane32_swap_b32 v{l0}, v{l1}
    s_nop 1
    v_rcp_f32 v{l1}, v{l1}
    s_nop 0""")
    for i in range(8):
        a(f"v_pk_mul_f32 {vr(dst + 2 * i, 2)}, {vr(src + 2 * i, 2)}, {vr(l1, 2)} op_sel_hi:[1,0]")
        if i >= 1:
            a(f"v_cvt_pk_bf16_f32 v{dst + i - 1}, v{dst + 2 * i - 2}, v{dst + 2 * i - 1}")
    a(f"v_cvt_pk_bf16_f32 v{dst + 7}, v{dst + 14}, v{dst + 15}")


def epilogue(a, opts):
    asym = opts.get("asym", 0)
    a.label("L_epi")
    stamp(a, opts, "done")
    t0, t1, t2 = vT[0:3]
    l0, l1 = vT[4], vT[3]
    a(f"""s_lshl_b32 s{sB}, s{sW}, {13 if asym else 12}
    s_and_b32 s{sB}, s{sB}, 0x7fff
    v_lshl_add_u32 v{t0}, v{vL}, 4, s{sB}
    v_xor_b32 v{t1}, 0x4000, v{t0}
    v_and_b32 v{t2}, 31, v0
    v_mul_u32_u24 v{t2}, 56, v{t2}
    v_bfe_u32 v{vT[3]}, v0, 5, 1
    v_lshl_add_u32 v{t2}, v{vT[3]}, 3, v{t2}
    s_add_u32 s{sB}, s{sB}, {VB[0]}
    v_add_u32 v{t2}, s{sB}, v{t2}
    s_and_b32 s{sA}, s{sW}, 3
    s_lshl_b32 s{sA}, s{sA}, 1""")
    if not asym:
        a(f"s_add_u32 s{sA}, s{sA}, s{sKS}")
    a(f"""s_mul_i32 s{sA}, s{sA}, {32 * 56}
    s_waitcnt lgkmcnt(0)
    s_cmp_eq_u32 s{sKS}, 0
    s_cbranch_scc1 L_epi0""")
    tiles = []
    if asym:
        a("s_barrier")
        for x in range(2):
            for p in (3, 0, 1, 2):
                a(f"ds_read_b128 {vr(S[x] + 4 * p, 4)}, v{t0} offset:{4096 * x + 1024 * p}")
        for x in range(2):
            for n, p in enumerate((3, 0, 1, 2)):
                a(f"s_waitcnt lgkmcnt({7 - 4 * x - n})")
                for i in (0, 2):
                    a(f"v_pk_add_f32 {vr(S[x] + 4 * p + i, 2)}, {vr(S[x] + 4 * p + i, 2)}, {vr(O[x] + 4 * p + i, 2)}")
            finish_tile(a, S[x], D[x], l1, l0)
        tiles = [0, 1]
        own = O
    else:
        for x in (1, 0):
            if x == 0:
                a.label("L_epi0")
                a("s_nop 3")
            keep, send = O[x], O[1 - x]
            for p in range(4):
                a(f"ds_write_b128 v{t0}, {vr(send + 4 * p, 4)} offset:{1024 * p}")
            a("s_waitcnt lgkmcnt(0)")
            stamp(a, opts, "sent")
            a("s_barrier")
            for p in (3, 0, 1, 2):
                a(f"ds_read_b128 {vr(S[1] + 4 * p, 4)}, v{t1} offset:{1024 * p}")

            def add(p):
                for i in (0, 2):
                    a(f"v_pk_add_f32 {vr(S[0] + 4 * p + i, 2)}, {vr(S[1] + 4 * p + i, 2)}, {vr(keep + 4 * p + i, 2)}")
            a("s_waitcnt lgkmcnt(3)")
            add(3)
            a(f"v_mov_b32 v{l0}, v{S[0] + 12}")
            a(f"v_mov_b32 v{l1}, v{S[0] + 12}")
            a("s_waitcnt lgkmcnt(2)")
            add(0)
            a(f"v_permlane32_swap_b32 v{l0}, v{l1}")
            a("s_waitcnt lgkmcnt(1)")
            add(1)
            a(f"v_rcp_f32 v{l1}, v{l1}")
            a("s_waitcnt lgkmcnt(0)")
            add(2)
            if x == 1:
                a("s_branch L_epi1")
        a.label("L_epi1")
        for g in range(4):
            for i in (0, 2):
                a(f"v_pk_mul_f32 {vr(D[0] + 4 * g + i, 2)}, {vr(S[0] + 4 * g + i, 2)}, {vr(l1, 2)} op_sel_hi:[1,0]")
            if g:
                a(f"ds_write_b64 v{t2}, {vr(D[1] + 2 * g - 2, 2)} offset:{16 * g - 16}")
            for i in (0, 1):
                a(f"v_cvt_pk_bf16_f32 v{D[1] + 2 * g + i}, v{D[0] + 4 * g + 2 * i}, v{D[0] + 4 * g + 2 * i + 1}")
        tiles = [0]
        own = [S[1]]
    for x in tiles:
        for g in range(3 if asym else 0):
            a(f"ds_write_b64 v{t2}, {vr(D[x] + 2 * g, 2)} offset:{1792 * x + 16 * g}")
    a("s_mov_b32 exec_hi, 0")
    for x in tiles:
        a(f"ds_write_b64 v{t2}, {vr(D[x if asym else 1] + 6, 2)} offset:{1792 * x + 48}")
    a("s_mov_b32 exec_hi, -1")
    a(f"v_lshlrev_b32 v{t1}, 4, v{vL}")
    n = 2 * len(tiles)
    for p in range(n):
        a(f"ds_read_b128 {vr(KF[0] + 4 * p, 4)}, v{t0} offset:{VB[0] + 1024 * p}")
    for p in range(n):
        if p == n - 1:
            a("s_mov_b32 exec_hi, 0" if asym else "s_mov_b32 exec_hi, 0xffff")
        a(f"s_waitcnt lgkmcnt({n - 1 - p})")
        a(f"buffer_store_dwordx4 {vr(KF[0] + 4 * p, 4)}, v{t1}, s[{sO}:{sO+3}], s{sA} offen offset:{1024 * p}")
    a("s_mov_b32 exec_hi, -1")
    for x in tiles:
        for i in range(16):
            a(f"v_max_f32 v{S[x] + i}, abs(v{S[x] + i}), abs(v{own[x] + i})")
    vals = [S[x] + i for x in tiles for i in range(13)]
    a(f"v_min3_f32 v{l0}, v{vals[0]}, v{vals[1]}, v{vals[2]}")
    rest = vals[3:]
    while rest:
        b, c = rest[0], rest[1] if len(rest) > 1 else rest[0]
        a(f"v_min3_f32 v{l0}, v{l0}, v{b}, v{c}")
        rest = rest[2:]
    a("s_mov_b32 exec_hi, 0")
    for x in tiles:
        a(f"v_min3_f32 v{l0}, v{l0}, v{S[x] + 13}, v{S[x] + 14}")
        a(f"v_min_f32 v{l0}, v{S[x] + 15}, v{l0}")
    a(f"""s_mov_b32 exec_hi, -1
    v_cmp_gt_f32 vcc, {hex(O_MIN)}, v{l0}
    v_mov_b32 v{t0}, {FLAG + 4}
    v_mov_b32 v{t1}, 1
    s_cbranch_vccz L_final
    ds_write_b32 v{t0}, v{t1}
    s_waitcnt lgkmcnt(0)""")
    if asym:
        a("s_branch L_final")
        a.label("L_epi0")
        a("s_nop 3")
        for x in range(2):
            for p in range(4):
                a(f"ds_write_b128 v{t0}, {vr(O[x] + 4 * p, 4)} offset:{4096 * x + 1024 * p}")
        a(f"v_mov_b32 v{t0}, {FLAG + 4}")
        a("s_waitcnt lgkmcnt(0)")
        stamp(a, opts, "sent")
        a("s_barrier")
    a.label("L_final")
    a(f"""s_barrier
    ds_read_b32 v{t0}, v{t0}
    s_waitcnt lgkmcnt(0)
    v_readfirstlane_b32 s{sA}, v{t0}
    s_cmp_gt_u32 s{sA}, s{sSLOW}
    s_cbranch_scc1 L_redo""")
    if opts.get("stamps"):
        a("s_mov_b64 exec, -1")
        stamp(a, opts, "stored")
        a("s_waitcnt vmcnt(0)")
        stamp(a, opts, "end")
        dbg = opts["stamps"] == 2
        a(f"""s_memrealtime s[76:77]
        s_load_dwordx2 s[4:5], s[0:1], {40 if dbg else 48}
        s_waitcnt lgkmcnt(0)
        s_mov_b32 s6, {64 if dbg else 0x2000000}
        s_mov_b32 s7, 0x20000
        s_lshl_b32 s8, s2, 3
        s_add_u32 s8, s8, s{sW}""")
        if dbg:
            a("""s_cmp_eq_u32 s8, 2047
            s_cselect_b32 s9, 1, 2
            s_cmp_eq_u32 s8, 0
            s_cselect_b32 s8, 0, s9""")
        a("s_lshl_b32 s8, s8, 5")
        if not dbg:
            a("s_add_u32 s8, s8, 0x1000000")
        a("""v_mov_b32 v0, 0
        v_mov_b32 v1, s74
        buffer_store_dword v1, v0, s[4:7], s8 offen""")
        for n in range(1, 7):
            if opts["slots"][n] == "mode":
                a(f"s_mov_b32 s9, s{sP}")
            else:
                a(f"s_sub_u32 s9, s{sTS + 2 * n}, s{sTS}")
            a("v_mov_b32 v1, s9")
            a(f"buffer_store_dword v1, v0, s[4:7], s8 offen offset:{4 * n}")
        a("s_sub_u32 s9, s76, s74")
        a("v_mov_b32 v1, s9")
        a("buffer_store_dword v1, v0, s[4:7], s8 offen offset:28")
    if opts.get("hold"):
        if opts.get("span"):
            a("""s_waitcnt lgkmcnt(0)
            s_sub_u32 s8, s60, s62
            s_lshl_b32 s8, s8, 2
            s_add_u32 s74, s74, s8""")
        if opts.get("holdk"):
            a(f"""s_waitcnt lgkmcnt(0)
            s_sub_u32 s8, s60, s74
            s_lshl_b32 s8, s8, {0 if opts["holdk"] == 2 else 2}
            s_add_u32 s74, s74, s8""")
        a.label("L_hold")
        a(f"""s_sleep 4
        s_memrealtime s[76:77]
        s_waitcnt lgkmcnt(0)
        s_sub_u32 s9, s76, s74
        s_cmp_lt_i32 s9, {opts["hold"]}
        s_cbranch_scc1 L_hold""")
    a.label("L_end")
    a("s_endpgm")


def slow_path(a):
    x0 = vT[2]
    a.label("L_redo")
    a(f"""s_mov_b32 s{sFORCE}, 1
    s_waitcnt vmcnt(0)
    s_barrier
    s_branch L_start""")
    a.label("L_slow")
    a(f"""v_mov_b32 v{MXS[0]}, 0xff800000
    v_mov_b32 v{MXS[1]}, 0xff800000
    s_mov_b32 s{sP}, 0""")
    a.label("L_slow_pass")
    a(f"s_mov_b32 s{sVOFF}, 0")
    a.label("L_slow_chunk")
    a("s_waitcnt vmcnt(0) lgkmcnt(0)")
    a("s_barrier")
    dma4(a, sM0K, vVG, sK, f"s{sVOFF}")
    dma4(a, sM0V, vVG, sV, f"s{sVOFF}")
    a("s_waitcnt vmcnt(0)")
    read_rows(a, R, vRR)
    a("s_waitcnt lgkmcnt(0)")
    normalise(a, R, hex(K_PAD[0]), vKW)
    a("s_waitcnt lgkmcnt(0)")
    a("s_barrier")
    for j in range(8):
        a(f"ds_read_b128 {vr(KF[0], 4)}, v{vAK} offset:{j * 2048}")
        a(f"ds_read_b128 {vr(KF[0] + 4, 4)}, v{vAK} offset:{j * 2048 + 1024}")
        for which in range(2):
            for part in range(2):
                base = (V1, V2)[which][0] + 2 * part
                a(f"ds_read_b64_tr_b16 {vr(base, 2)}, v{vAV} offset:{j * 1792 + 896 * which + 224 * part}")
        a("s_waitcnt lgkmcnt(0)")
        a(f"s_call_b64 s[{sLINK}:{sLINK+1}], L_slow_tile")
    a(f"""s_add_u32 s{sVOFF}, s{sVOFF}, {CHB}
    s_cmp_lt_u32 s{sVOFF}, {HEADB}
    s_cbranch_scc1 L_slow_chunk
    s_cmp_eq_u32 s{sP}, 1
    s_cbranch_scc1 L_slow_done""")
    for x in range(2):
        a(f"""v_mov_b32 v{x0}, v{MXS[x]}
        s_nop 1
        v_permlane32_swap_b32 v{x0}, v{MXS[x]}
        s_nop 1
        v_max_f32 v{MXS[x]}, v{x0}, v{MXS[x]}""")
    a(f"""s_barrier
    v_lshlrev_b32 v{x0}, 3, v0
    ds_write_b64 v{x0}, {vr(MXS[0], 2)}
    s_waitcnt lgkmcnt(0)
    s_barrier
    v_xor_b32 v{x0}, 2048, v{x0}
    ds_read_b64 {vr(S[0], 2)}, v{x0}
    s_waitcnt lgkmcnt(0)
    v_max_f32 v{MXS[0]}, v{MXS[0]}, v{S[0]}
    v_max_f32 v{MXS[1]}, v{MXS[1]}, v{S[0] + 1}
    s_mov_b32 s{sP}, 1
    s_branch L_slow_pass""")
    a.label("L_slow_done")
    a("s_barrier")
    a("s_nop 7")
    a("s_branch L_epi")
    a.label("L_slow_tile")
    for x in range(2):
        a(qk(x, 0, 0)); a(qk(x, 1, 0))
    a("s_nop 15")
    for x in range(2):
        for i in range(16):
            a(f"v_mul_f32 v{S[x] + i}, s{sT}, v{S[x] + i}")
    a(f"s_cmp_eq_u32 s{sP}, 1")
    a("s_cbranch_scc1 L_slow_exp")
    for x in range(2):
        for i in range(16):
            a(f"v_max_f32 v{MXS[x]}, v{MXS[x]}, v{S[x] + i}")
    a(f"s_setpc_b64 s[{sLINK}:{sLINK+1}]")
    a.label("L_slow_exp")
    for x in range(2):
        for i in range(16):
            a(f"v_sub_f32 v{S[x] + i}, v{S[x] + i}, v{MXS[x]}")
            a(f"v_mul_f32 v{S[x] + i}, {hex(LOG2E)}, v{S[x] + i}")
            a(f"v_exp_f32 v{S[x] + i}, v{S[x] + i}")
    a("s_nop 1")
    for x in range(2):
        a(pv(x, 0, 0)); a(pv(x, 1, 0))
    a(f"s_setpc_b64 s[{sLINK}:{sLINK+1}]")


SLOTS = {0: ["start", "setup", "prebar", "loop", "mode", "done", "end"],
         1: ["start", "karg", "issued", "setup", "kdata", "prebar", "end"],
         2: ["start", "loop", "done", "sent", "stored", "mode", "end"],
         3: ["start", "kdata", "mid", "qdata", "lump2", "prebar", "end"],
         4: ["start", "loop", "e1", "h1", "e3", "h3", "end"],
         5: ["start", "e4", "h4", "e5", "h5", "e6", "end"],
         6: ["start", "e0", "e2", "e4", "e5", "e6", "e7"],
         7: ["start", "loop", "e0", "h0", "e4", "h4", "e6"],
         8: ["start", "e5", "e6", "h6", "e7", "done", "end"],
         9: ["start", "e1", "h1", "e2", "h2", "e3", "h3"],
         10: ["start", "qdata", "n0", "n1", "n2", "n3", "n4"],
         11: ["start", "n3", "n4", "n5", "prebar", "loop", "end"]}


def build(opts):
    opts["slots"] = SLOTS[opts.get("pro", 0)]
    a = Asm()
    name = "standalone__qk_norm__prompt_kernel"
    a.raw(HEADER + f"; @launch grid=(256,1,1) block=(512,1,1) lds={LDS_BYTES}")
    a.raw('.amdgcn_target "amdgcn-amd-amdhsa--gfx950"\n.text')
    if opts.get("align", 0):
        a.raw(".p2align 12\n.fill 832, 4, 0xbf800000")
    a.raw(f".globl {name}\n.p2align 8\n.type {name},@function\n{name}:")
    prologue(a, opts)
    main_loop(a, opts)
    epilogue(a, opts)
    side_blocks(a, opts)
    slow_path(a)
    txt = a.text()
    if opts.get("stamps"):
        txt = txt.replace(f"    s_mov_b32 s{sMODE}, 0\n", f"    s_mov_b32 s{sMODE}, 0\n    s_mov_b32 s{sP}, 0\n")
        txt = txt.replace(f"    s_mov_b32 s{sRAW}, 1\n", f"    s_mov_b32 s{sRAW}, 1\n    s_add_u32 s{sP}, s{sP}, 1\n")
    txt += f""".section .rodata,"a"
.p2align 6
.amdhsa_kernel {name}
  .amdhsa_next_free_vgpr {NVGPR}
  .amdhsa_next_free_sgpr {NSGPR}
  .amdhsa_accum_offset {NVGPR}
  .amdhsa_group_segment_fixed_size 0
  .amdhsa_kernarg_size 56
  .amdhsa_user_sgpr_count 2
  .amdhsa_user_sgpr_kernarg_segment_ptr 1
  .amdhsa_system_sgpr_workgroup_id_x 1
  .amdhsa_float_denorm_mode_32 3
.end_amdhsa_kernel
"""
    return txt


if __name__ == "__main__":
    opts = {}
    out = "standalone__qk_norm__prompt.s"
    for arg in sys.argv[1:]:
        k, _, v = arg.partition("=")
        if k == "out":
            out = v
        else:
            opts[k] = int(v)
    open(out, "w").write(build(opts))
```

```python
import sys

HEADER = """; Kernarg layout for this problem (56 bytes, ptrs only, base s[0:1]):
;   offset   0: d_in[0] q  shape=(1, 16, 4096, 28) dtype=bfloat16 strides=(3670016, 229376, 56, 2) contiguous=True
;   offset   8: d_in[1] k  shape=(1, 16, 4096, 28) dtype=bfloat16 strides=(3670016, 229376, 56, 2) contiguous=True
;   offset  16: d_in[2] v  shape=(1, 16, 4096, 28) dtype=bfloat16 strides=(3670016, 229376, 56, 2) contiguous=True
;   offset  32: d_out     shape=(1, 16, 4096, 28) dtype=bfloat16 (2 bytes/elem)
"""

HEADB = 229376
CHB = 28672
WSH = 262144
PAR = 0x10000
KB = [0, PAR]
VB = [32768, PAR + 32768]
ONES = 2 * PAR
QB = ONES + 14336
FLAG = QB + 16384
LDS_BYTES = FLAG + 256
T_LIMIT = 0x41800000
K_PAD = (0x3f803f80, 0x00003f80)
Q_PAD = {0: (0xc2420000, 0), 256: (0xc242c380, 0x4380), 1536: (0xc242c4c0, 0x44c0), 3072: (0xc242c540, 0x4540),
         6144: (0xc242c5c0, 0x45c0)}
O_MIN = 0x0c800000
LOG2E = 0x3fb8aa3b
EPS = 0x358637bd

sK, sV, sO, sX, sG = 16, 20, 24, 28, 32
sH, sC, sW, sT, sI, sVOFF, sM0V, sKS = 36, 37, 38, 39, 40, 41, 42, 43
sA, sB, sD = 44, 45, 46
sPAR, sM0K, sKOFF, sRAW, sMODE, sPUB, sSLOW = 47, 48, 49, 50, 51, 52, 53
sWS = 54
sP = 56
sFORCE = 57
sLINK = 58
sTS = 60
NSGPR = 80
vL, vKS, vVG, vKW, vAK, vAV, vDV, vIDX = 1, 2, 3, 4, 5, 6, 7, 8
vT = [9, 10, 11, 12, 13, 14, 15]
RQ = 16
QF = [[16, 20], [24, 28]]
O = [32, 48]
S = [64, 80]
KF = [96, 104]
V1 = [112, 116]
V2 = [120, 124]
R = 128
D = [144, 160]
A1, A2 = 176, 180
MX = [184, 185]
vRR, vPOLL = 186, 187
MXS = [188, 189]
SS = [S, [192, 208]]
NVGPR = 224


def first_pub(opts):
    return 2


def all_ready(opts):
    return sum(2 << (2 * n) for n in range(first_pub(opts) // 2, 8))


class Asm:
    def __init__(self):
        self.l = []
    def __call__(self, s):
        for x in s.split("\n"):
            self.l.append("    " + x.strip())
    def label(self, n):
        self.l.append(n + ":")
    def raw(self, s):
        self.l.append(s)
    def text(self):
        return "\n".join(self.l) + "\n"


def vr(a, n):
    return f"v[{a}:{a + n - 1}]"


def dma4(a, m0, vaddr, srd, soff, flags="", exact=False):
    a(f"s_mov_b32 m0, s{m0}")
    a("s_nop 0")
    for p in range(4):
        if exact and p == 3:
            a("s_mov_b32 exec_hi, 0")
        a(f"buffer_load_dwordx4 v{vaddr}, s[{srd}:{srd+3}], {soff} offen offset:{1024 * p}{flags} lds")
    if exact:
        a("s_mov_b32 exec_hi, -1")


def read_rows(a, r, vaddr):
    for i in range(3):
        a(f"ds_read2_b64 {vr(r + 4 * i, 4)}, v{vaddr} offset0:{2 * i} offset1:{2 * i + 1}")
    a(f"ds_read_b64 {vr(r + 12, 2)}, v{vaddr} offset:48")


def normalise(a, r, pad, dst, scale=None, mid=None, mid2=None, st=lambda n: None):
    nrm = vT[1]
    acc = MX[0]
    a(f"v_mfma_f32_32x32x16_bf16 {vr(D[0], 16)}, {vr(A1, 4)}, {vr(r, 4)}, 0")
    a(f"v_mfma_f32_32x32x16_bf16 {vr(D[0], 16)}, {vr(A2, 4)}, {vr(r + 4, 4)}, {vr(D[0], 16)}")
    a(f"v_mfma_f32_32x32x16_bf16 {vr(D[1], 16)}, {vr(A1, 4)}, {vr(r + 8, 4)}, 0")
    a(f"v_mfma_f32_32x32x16_bf16 {vr(D[1], 16)}, {vr(A2, 4)}, {vr(r + 12, 4)}, {vr(D[1], 16)}")
    if mid:
        mid(a)
    a(f"v_mov_b32 v{r + 7}, {pad}")
    a("s_nop 2" if mid else "s_nop 8")
    st("n1")
    for i in range(14):
        d = vr(D[0] + 2 * i, 2)
        if i == 0:
            a(f"v_pk_mul_f32 {vr(acc, 2)}, {d}, {d}")
        else:
            a(f"v_pk_fma_f32 {vr(acc, 2)}, {d}, {d}, {vr(acc, 2)}")
    a(f"v_add_f32 v{nrm}, v{acc}, v{acc + 1}")
    st("n2")
    a(f"v_sqrt_f32 v{nrm}, v{nrm}")
    a("s_nop 0")
    a(f"v_add_f32 v{nrm}, {hex(EPS)}, v{nrm}")
    a(f"v_rcp_f32 v{nrm}, v{nrm}")
    a("s_nop 0")
    if scale is not None:
        a(f"v_mul_f32 v{nrm}, v{scale}, v{nrm}")
    st("n3")
    if mid2:
        mid2(a)
    for i in range(14):
        d = D[0] + 2 * i
        a(f"v_pk_mul_f32 {vr(d, 2)}, {vr(d, 2)}, {vr(nrm, 2)} op_sel_hi:[1,0]")
        if i in (5, 8, 12):
            write_frag(a, r, dst, (5, 8, 12).index(i))
        if i >= 1:
            a(f"v_cvt_pk_bf16_f32 v{r + i - 1 + (i > 7)}, v{d - 2}, v{d - 1}")
    a(f"v_cvt_pk_bf16_f32 v{r + 14}, v{D[0] + 26}, v{D[0] + 27}")
    write_frag(a, r, dst, 3)


def piece_off(p):
    return (p >> 1) * 1024 + (p & 1) * 512


def write_frag(a, r, vaddr, p):
    a(f"ds_write_b128 v{vaddr}, {vr(r + 4 * p, 4)} offset:{piece_off(p)}")


def rdK(f, tile):
    return f"ds_read_b128 {vr(KF[0] + 4 * f, 4)}, v{vAK} offset:{(tile % 8) * 2048 + 1024 * f}"


def rdV(which, part, tile):
    b = tile & 1
    base = (V1, V2)[which][b] + 2 * part
    return f"ds_read_b64_tr_b16 {vr(base, 2)}, v{vAV} offset:{(tile % 8) * 1792 + 896 * which + 224 * part}"


def qk(x, f, tile):
    s = SS[tile & 1][x]
    c = "0" if f == 0 else vr(s, 16)
    return f"v_mfma_f32_32x32x16_bf16 {vr(s, 16)}, {vr(KF[0] + 4 * f, 4)}, {vr(QF[x][f], 4)}, {c}"


def pv(x, which, tile):
    v = (V1, V2)[which][tile & 1]
    return f"v_smfmac_f32_32x32x32_bf16 {vr(O[x], 16)}, {vr(v, 4)}, {vr(SS[tile & 1][x] + 8 * which, 8)}, v{vIDX}"


def step(a, j, slots, sync=None):
    e = [f"v_exp_f32 v{SS[j & 1][x] + 8 * h + i}, v{SS[j & 1][x] + 8 * h + i}" for h in range(2) for x in range(2) for i in range(8)]
    m = [pv(0, 1, j - 1), pv(1, 1, j - 1), qk(0, 0, j + 1), qk(1, 0, j + 1), qk(0, 1, j + 1), qk(1, 1, j + 1),
         pv(0, 0, j), pv(1, 0, j)]
    r = [rdV(0, 1, j + 1), rdV(1, 0, j + 1), rdV(1, 1, j + 1), rdK(0, j + 2), None, rdK(1, j + 2), None, rdV(0, 0, j + 2)]
    pos = 0
    for g in range(8):
        for i in range(pos, 2 + 4 * g):
            a(e[i])
        pos = 2 + 4 * g
        a(m[g])
        if g == 3 and sync:
            sync(a)
        if r[g]:
            a(r[g])
        for ins in slots.get(g, []):
            a(ins)
    for i in range(pos, 32):
        a(e[i])


HOLD_POINTS = [None, "loop", "done", "karg", "issued", "kdata", "lump2", "prebar", "setup", "qdata"]


def stamp(a, opts, name):
    if opts.get("holdk") and HOLD_POINTS[opts["holdk"]] == name:
        a("s_memrealtime s[60:61]")
    if opts.get("stamps") and name in opts["slots"]:
        n = opts["slots"].index(name)
        a(f"s_memtime s[{sTS + 2 * n}:{sTS + 2 * n + 1}]")


def stamp_it(a, opts, name, kind):
    if opts.get("span") and name in (f"e{opts['span']}", f"h{opts['span']}") and kind == "hook":
        a(f"s_cmp_eq_u32 s{sI}, 1")
        a(f"s_cbranch_scc0 L_sp_{name}")
        a("s_memrealtime s[62:63]" if name[0] == "e" else "s_memrealtime s[60:61]")
        a.label(f"L_sp_{name}")
    if opts.get("stamps") and name in opts["slots"]:
        a(f"s_cmp_eq_u32 s{sI}, {opts.get('it', 0)}")
        a(f"s_cbranch_scc0 L_st_{name}_{kind}")
        stamp(a, opts, name)
        a.label(f"L_st_{name}_{kind}")


def prologue(a, opts):
    t0, t1, t2, t3, t4 = vT[2:7]
    z = V2[1]
    m4 = opts.get("m4", 1)
    touch = opts.get("touch", 1)
    a("s_cmp_ge_u32 s2, 256")
    a("s_cbranch_scc1 L_end")
    a(f"s_mov_b32 s{sFORCE}, 0")
    a.label("L_start")
    stamp(a, opts, "start")
    if opts.get("stamps") or opts.get("hold"):
        a("s_memrealtime s[74:75]")
    if opts.get("hold"):
        a("s_memrealtime s[60:61]")
    a("s_load_dwordx8 s[4:11], s[0:1], 0")
    a("s_load_dwordx4 s[12:15], s[0:1], 32")
    a(f"s_load_dwordx2 s[{sWS}:{sWS+1}], s[0:1], 48")
    a(f"""v_lshrrev_b32 v{t0}, 6, v0
    v_and_b32 v{vL}, 63, v0
    s_and_b32 s{sA}, s2, 7
    v_readfirstlane_b32 s{sW}, v{t0}
    s_lshl_b32 s{sA}, s{sA}, 1
    s_bfe_u32 s{sB}, s2, 0x10003
    s_add_u32 s{sH}, s{sA}, s{sB}
    s_lshr_b32 s{sC}, s2, 4""")
    if opts.get("x_perm"):
        a(f"s_lshr_b32 s{sH}, s2, 4")
        a(f"s_and_b32 s{sC}, s2, 15")
    if opts.get("pf", 1):
        a(f"""s_cmp_eq_u32 s{sW}, 7
        s_cbranch_scc0 L_nopf
        s_getpc_b64 s[{sG}:{sG+1}]
        s_mov_b32 s{sG+2}, L_raw-standalone__qk_norm__prompt_kernel
        s_mov_b32 s{sG+3}, 0x20000
        v_lshlrev_b32 v{t0}, 7, v{vL}
        buffer_load_dword v{vPOLL}, v{t0}, s[{sG}:{sG+3}], 0 offen
        s_movk_i32 s{sA}, 0x2000
        buffer_load_dword v{vPOLL}, v{t0}, s[{sG}:{sG+3}], s{sA} offen""")
        a.label("L_nopf")
    a(f"""s_mul_i32 s{sA}, s{sH}, {HEADB}
    s_mul_i32 s{sD}, s{sC}, 14336
    s_add_u32 s{sB}, s{sD}, s{sA}
    s_lshr_b32 s{sKS}, s{sW}, 2
    s_mul_i32 s{sM0V}, s{sW}, 3584
    v_lshlrev_b32 v{vAK}, 4, v{vL}
    v_add_u32 v{vVG}, s{sM0V}, v{vAK}
    s_add_u32 s{sM0V}, s{sM0V}, {VB[0]}
    s_lshl_b32 s{sM0K}, s{sW}, 12
    s_mov_b32 s{sK+2}, {HEADB}
    s_mov_b32 s{sK+3}, 0x20000
    s_mov_b32 s{sX+2}, 14336
    s_mov_b32 s{sX+3}, 0x20000
    s_add_u32 s{sMODE}, s{sM0K}, {QB}
    s_lshr_b32 s{sD}, s{sH}, 1
    s_lshl_b32 s{sD}, s{sD}, 2""")

    def setup_a(a):
        a(f"""v_mov_b32 v{R+15}, {hex(K_PAD[1])}
        s_mov_b32 vcc_lo, 0xaaaaaaaa
        s_mov_b32 vcc_hi, 0xaaaaaaaa
        v_cndmask_b32 v{t1}, v{R+15}, 1.0, vcc""")
        for p in range(8):
            lo = 3 << (8 * (p >> 1) + 2 * (p & 1))
            a(f"s_mov_b32 vcc_lo, {hex(lo)}")
            a(f"s_mov_b32 vcc_hi, {hex(lo << 4)}")
            a(f"v_cndmask_b32 v{A1 + p}, 0, v{t1}, vcc")
        a(f"""v_mov_b32 v{R+14}, 0
        v_lshrrev_b32 v{t0}, 5, v0
        v_mul_u32_u24 v{t0}, 1536, v{t0}
        v_lshl_add_u32 v{vKW}, v0, 4, v{t0}
        v_mad_u32_u24 v{vRR}, v{vL}, 56, s{sM0K}""")

    if opts.get("prek", 1) == 1:
        setup_a(a)
    a("s_waitcnt lgkmcnt(0)")
    stamp(a, opts, "karg")
    a(f"""s_add_u32 s{sK}, s6, s{sA}
    s_addc_u32 s{sK+1}, s7, 0""")
    dma4(a, sM0K, vVG, sK, 0, exact=m4)
    if opts.get("prek", 1) == 2:
        setup_a(a)
    a(f"""s_cmp_eq_u32 s{sKS}, 0
    s_cbranch_scc0 L_noq
    s_add_u32 s{sX}, s4, s{sB}
    s_addc_u32 s{sX+1}, s5, 0""")
    dma4(a, sMODE, vVG, sX, 0, exact=m4)
    a.label("L_noq")
    a(f"""s_add_u32 s{sV}, s8, s{sA}
    s_addc_u32 s{sV+1}, s9, 0
    s_mov_b32 s{sV+2}, {HEADB}
    s_mov_b32 s{sV+3}, 0x20000""")
    if touch:
        a(f"""s_cmp_eq_u32 s{sW}, 4
        s_cbranch_scc0 L_notouch
        s_mul_i32 s{sP}, s{sC}, 1792
        v_lshlrev_b32 v{t0}, 7, v{vL}
        s_mov_b64 exec, 0x3fff
        buffer_load_dword v{vPOLL}, v{t0}, s[{sV}:{sV+3}], s{sP} offen
        s_mov_b64 exec, -1""")
        a.label("L_notouch")
    a(f"s_load_dword s{sT}, s[10:11], s{sD}")
    stamp(a, opts, "issued")
    if not opts.get("prek", 1):
        setup_a(a)
    a(f"""s_add_u32 s{sO}, s12, s{sB}
    s_addc_u32 s{sO+1}, s13, 0
    s_mov_b32 s{sO+2}, 14336
    s_mov_b32 s{sO+3}, 0x20000
    s_mov_b32 s{sG}, s14
    s_mov_b32 s{sG+1}, s15
    s_mov_b32 s{sG+2}, 256
    s_mov_b32 s{sG+3}, 0x20000
    s_mul_i32 s{sA}, s{sH}, {WSH}
    s_add_u32 s{sX}, s{sWS}, s{sA}
    s_addc_u32 s{sX+1}, s{sWS+1}, 0
    s_mov_b32 s{sX+2}, {WSH}
    v_mov_b64 {vr(z, 2)}, 0
    v_mov_b64 {vr(z + 2, 2)}, 0
    s_and_b32 s{sPUB}, s{sC}, 1
    s_cmp_eq_u32 s{sPUB}, s{sKS}
    s_cselect_b32 s{sPUB}, 1, 0
    s_cmp_ge_u32 s{sC}, {first_pub(opts)}
    s_cselect_b32 s{sPUB}, s{sPUB}, 0
    v_mfma_f32_32x32x16_bf16 {vr(O[0], 16)}, {vr(z, 4)}, {vr(z, 4)}, 0
    s_lshr_b32 s{sKOFF}, s{sC}, 1
    s_max_u32 s{sKOFF}, s{sKOFF}, 1
    s_mul_i32 s{sVOFF}, s{sKOFF}, {CHB}
    s_lshl_b32 s{sKOFF}, s{sKOFF}, 15
    s_lshl_b32 s{sA}, s{sKS}, 14
    v_add_u32 v{vAK}, s{sA}, v{vAK}
    s_mul_i32 s{sA}, s{sKS}, {8 * 1792}
    s_add_u32 s{sA}, s{sA}, {VB[0]}
    v_and_b32 v{t0}, 15, v0
    v_bfe_u32 v{t1}, v0, 2, 2
    v_mad_u32_u24 v{t0}, v{t1}, 3, v{t0}
    v_lshrrev_b32 v{t1}, 4, v{vL}
    v_lshl_add_u32 v{t0}, v{t1}, 2, v{t0}
    v_lshrrev_b32 v{t1}, 5, v{vL}
    v_mad_u32_u24 v{t0}, v{t1}, 48, v{t0}
    v_mfma_f32_32x32x16_bf16 {vr(O[1], 16)}, {vr(z, 4)}, {vr(z, 4)}, 0
    v_lshl_add_u32 v{vAV}, v{t0}, 3, s{sA}
    v_mov_b32 v{vDV}, {PAR}
    v_lshlrev_b32 v{t1}, 6, v{t1}
    v_sub_u32 v{t1}, {ONES + 224}, v{t1}
    s_mov_b32 vcc_lo, 0x88880000
    s_mov_b32 vcc_hi, 0x88880000
    v_cndmask_b32 v{vAV}, v{vAV}, v{t1}, vcc
    v_cndmask_b32 v{vDV}, v{vDV}, v{R+14}, vcc
    v_mov_b32 v{vIDX}, 0xdddddddd
    v_mfma_f32_32x32x16_bf16 {vr(SS[1][0], 16)}, {vr(z, 4)}, {vr(z, 4)}, 0
    v_mfma_f32_32x32x16_bf16 {vr(SS[1][1], 16)}, {vr(z, 4)}, {vr(z, 4)}, 0
    s_cmp_eq_u32 s{sKS}, 0
    s_cbranch_scc1 L_two""")

    def temperature(a):
        a(f"""s_bitcmp1_b32 s{sH}, 0
        s_cselect_b32 s{sA}, 0, 16
        s_lshl_b32 s{sT}, s{sT}, s{sA}
        s_and_b32 s{sT}, s{sT}, 0xffff0000
        s_and_b32 s{sA}, s{sT}, 0x7fffffff
        s_cmp_gt_u32 s{sA}, {hex(T_LIMIT)}
        s_cselect_b32 s{sSLOW}, 1, s{sFORCE}""")

    a(f"""v_subrev_u32 v{t2}, 14336, v{vVG}
    s_sub_u32 s{sMODE}, s{sM0V}, 14336
    s_cmp_eq_u32 s{sW}, 6
    s_cbranch_scc0 L_noones
    v_lshrrev_b32 v{t0}, 3, v{vL}
    v_mul_u32_u24 v{t0}, 1792, v{t0}
    v_bfe_u32 v{t1}, v0, 2, 1
    v_mul_u32_u24 v{t1}, 896, v{t1}
    v_add_u32 v{t0}, v{t0}, v{t1}
    v_bfe_u32 v{t1}, v0, 1, 1
    v_mul_u32_u24 v{t1}, 224, v{t1}
    v_add_u32 v{t0}, v{t0}, v{t1}
    v_and_b32 v{t1}, 1, v0
    v_lshl_add_u32 v{t0}, v{t1}, 6, v{t0}
    v_add_u32 v{t0}, {ONES + 160}, v{t0}
    v_mov_b32 v{t1}, {FLAG}
    v_mov_b32 v{D[0]}, 0x3f80
    v_mov_b32 v{D[0] + 1}, 0
    ds_write_b64 v{t0}, {vr(D[0], 2)}
    ds_write_b64 v{t1}, {vr(z, 2)}""")
    a.label("L_noones")
    stamp(a, opts, "setup")
    vearly = opts.get("vearly", 0)
    if vearly:
        dma4(a, sMODE, t2, sV, 0, exact=m4)
    if vearly == 2:
        dma4(a, sM0V, vVG, sV, 0, exact=m4)
    if touch:
        a(f"""s_waitcnt vmcnt({4 * vearly + 1})
        s_cmp_eq_u32 s{sW}, 4
        s_cbranch_scc1 L_kready""")
    a(f"s_waitcnt vmcnt({4 * vearly})")
    a.label("L_kready")
    stamp(a, opts, "kdata")
    read_rows(a, R, vRR)

    def load_v(a):
        if not vearly:
            dma4(a, sMODE, t2, sV, 0, exact=m4)
        if vearly < 2:
            dma4(a, sM0V, vVG, sV, 0, exact=m4)
    vpos = opts.get("vpos", 0)
    if vpos == 0:
        load_v(a)
    a("s_waitcnt lgkmcnt(0)")
    temperature(a)
    normalise(a, R, hex(K_PAD[0]), vKW, mid=load_v if vpos == 1 and vearly < 2 else None)
    if not opts.get("bar2", 1):
        a("s_waitcnt vmcnt(0)")
    a("s_branch L_join")
    a.label("L_two")
    a(f"""v_mov_b32 v{RQ+14}, 0
    v_add_u32 v{t2}, {QB}, v{vRR}
    v_add_u32 v{t3}, {QB}, v{vKW}""")
    stamp(a, opts, "setup")
    a("s_waitcnt vmcnt(4)")
    stamp(a, opts, "kdata")
    read_rows(a, R, vRR)
    a("s_waitcnt lgkmcnt(0)")

    def scale_setup(a):
        temperature(a)
        qa, qb = Q_PAD[opts.get("M", 1536)]
        a(f"""s_cmp_eq_u32 s{sSLOW}, 1
        s_cselect_b32 s{sD}, 0, {hex(qa)}
        s_cselect_b32 s{sA}, 0, {hex(qb)}
        s_cselect_b64 vcc, -1, 0
        v_mov_b32 v{t4}, {hex(LOG2E)}
        v_mul_f32 v{t4}, s{sT}, v{t4}
        v_mov_b32 v{RQ+15}, s{sA}
        v_cndmask_b32 v{t4}, v{t4}, 1.0, vcc""")

    def second_rows(a):
        stamp(a, opts, "mid")
        a("s_waitcnt vmcnt(0)")
        stamp(a, opts, "qdata")
        read_rows(a, RQ, t2)
    if opts.get("qlate", 1):
        normalise(a, R, hex(K_PAD[0]), vKW, mid=scale_setup)
        second_rows(a)
        a("s_waitcnt lgkmcnt(0)")
    else:
        normalise(a, R, hex(K_PAD[0]), vKW, mid=scale_setup, mid2=second_rows)
        a("s_waitcnt lgkmcnt(4)")
    stamp(a, opts, "n0")
    normalise(a, RQ, f"s{sD}", t3, scale=t4, st=lambda n: stamp(a, opts, n))
    stamp(a, opts, "n5")
    a.label("L_join")
    stamp(a, opts, "lump2")
    a(f"s_mov_b32 s{sPAR}, {PAR}")
    a(f"""v_lshl_add_u32 v{vKS}, v{vL}, 4, s{sM0K}
    s_and_b32 s{sA}, s{sW}, 3
    s_lshl_b32 s{sA}, s{sA}, 12
    s_add_u32 s{sA}, s{sA}, {QB}
    v_lshl_add_u32 v{t0}, v{vL}, 4, s{sA}
    s_mov_b32 s{sMODE}, 0
    s_mov_b32 s{sRAW}, 0
    s_mov_b32 s{sI}, 0
    s_waitcnt lgkmcnt(0)""")
    if opts.get("obias"):
        import struct
        bits = struct.unpack("<I", struct.pack("<f", -1.5 * 2.0 ** (opts["obias"] - 48)))[0]
        for i in range(32):
            a(f"v_mov_b32 v{O[0] + i}, {hex(bits)}")
    stamp(a, opts, "prebar")
    a("s_barrier")
    a(rdK(0, 0))
    a(f"ds_read_b128 {vr(QF[0][0], 4)}, v{t0}")
    a(f"ds_read_b128 {vr(QF[1][0], 4)}, v{t0} offset:2048")
    a(rdK(1, 0))
    a(f"ds_read_b128 {vr(QF[0][1], 4)}, v{t0} offset:1024")
    a(f"ds_read_b128 {vr(QF[1][1], 4)}, v{t0} offset:3072")
    a(f"s_cmp_eq_u32 s{sSLOW}, 1")
    a("s_cbranch_scc1 L_slow")
    if opts.get("bar2", 1):
        a("s_waitcnt lgkmcnt(4)")
        a(qk(0, 0, 0))
        a("s_waitcnt lgkmcnt(1)")
        a(qk(0, 1, 0))
        a("s_waitcnt lgkmcnt(0)")
        a(qk(1, 0, 0))
        a(rdK(0, 1))
        a(qk(1, 1, 0))
        a(rdK(1, 1))
        a("s_waitcnt vmcnt(0)")
        a("s_barrier")
        a(rdV(0, 0, 0)); a(rdV(0, 1, 0)); a(rdV(1, 0, 0)); a(rdV(1, 1, 0))
        a(rdV(0, 0, 1))
    else:
        a(rdV(0, 0, 0)); a(rdV(0, 1, 0)); a(rdV(1, 0, 0)); a(rdV(1, 1, 0))
        a("s_waitcnt lgkmcnt(8)")
        a(qk(0, 0, 0))
        a("s_waitcnt lgkmcnt(5)")
        a(qk(0, 1, 0))
        a("s_waitcnt lgkmcnt(4)")
        a(qk(1, 0, 0))
        a(rdK(0, 1))
        a(qk(1, 1, 0))
        a(rdK(1, 1)); a(rdV(0, 0, 1))
        a("s_nop 6")
    stamp(a, opts, "loop")


PRIO_POINTS = [[(4, 4), (5, 4), (6, 0)], [(4, 0), (5, 0), (5, 7)], [(3, 7), (5, 0), (6, 0)], [(5, 0), (5, 6), (6, 0)],
               [(1, 7), (3, 7), (5, 7)]]


def dma1(p, vaddr, srd, soff, flags=""):
    return f"buffer_load_dwordx4 v{vaddr}, s[{srd}:{srd+3}], s{soff} offen offset:{1024 * p}{flags} lds"


def iteration(a, opts, kind):
    poll_at = opts.get("poll", 3)
    kdma_at = opts.get("kdma", 4)
    lump0_at = opts.get("lump0", 4)
    lump_at = opts.get("lump", 5)
    t0, t1 = vT[2], vT[3]
    sl = {j: {} for j in range(8)}

    def put(j, g, ins):
        sl[j].setdefault(g, []).append(ins)

    groups = {"first": [("K", 0), ("V", 2)], "hook": [("V", 0)], "lean": [("V", 0), ("G", 2)]}[kind]
    for what, j0 in groups:
        put(j0, 0, f"s_xor_b32 m0, s{sM0V if what == 'V' else sM0K}, s{sPAR}")
        for p in range(4):
            ins = {"K": dma1(p, vVG, sK, sVOFF), "V": dma1(p, vVG, sV, sVOFF), "G": dma1(p, vKS, sX, sKOFF, " sc1")}[what]
            put(j0 + (p >> 1), (4, 6)[p & 1], ins)
    for j in range(8):
        put(j, 1, "s_waitcnt lgkmcnt(3)")
    for lvl, (j, g) in zip((2, 1, 0), PRIO_POINTS[opts.get("pp", 1)]):
        put(j, g, f"s_setprio {lvl}")
    put(6, 4, f"s_add_u32 s{sKOFF}, s{sKOFF}, 32768")
    put(6, 6, f"s_add_u32 s{sVOFF}, s{sVOFF}, {CHB}")
    put(6, 6, f"s_xor_b32 s{sPAR}, s{sPAR}, {PAR}")
    put(7, 0, f"s_cmp_eq_u32 s{sKOFF}, {8 * 32768}")
    put(7, 4, f"s_cselect_b32 s{sKOFF}, 32768, s{sKOFF}")
    put(7, 6, f"s_cselect_b32 s{sVOFF}, {CHB}, s{sVOFF}")
    if kind == "lean" and opts.get("nojunk", 1):
        put(5, 4, f"s_cmp_eq_u32 s{sI}, 6")
        put(5, 6, f"s_cselect_b32 s{sA}, 0x40000000, 0")
        put(7, 6, f"s_or_b32 s{sKOFF}, s{sKOFF}, s{sA}")
        put(7, 7, f"s_or_b32 s{sVOFF}, s{sVOFF}, s{sA}")

    def sync(a):
        a("s_waitcnt vmcnt(0) lgkmcnt(0)")
        a("s_barrier")
        a("s_setprio 3")
        a(f"v_xor_b32 v{vAK}, {PAR}, v{vAK}")
        a(f"v_xor_b32 v{vAV}, v{vDV}, v{vAV}")

    for j in range(8):
        step(a, j, sl[j], sync if j == 6 else None)
        stamp_it(a, opts, f"e{j}", kind)
        if kind == "first":
            if j == lump0_at:
                a("s_waitcnt vmcnt(4)")
                lump(a, publish=True)
            if j == 6:
                a(f"""s_and_b32 s{sA}, s{sW}, 3
                s_cselect_b32 s{sA}, 0, s{sPUB}
                s_cmp_eq_u32 s{sA}, 1
                s_cbranch_scc0 L_signalled
                s_and_b32 s{sA}, s{sC}, 14
                s_lshl_b32 s{sA}, 1, s{sA}
                v_mov_b32 v{t1}, s{sA}
                v_mov_b32 v{t0}, 0
                s_lshl_b32 s{sA}, s{sH}, 4
                s_mov_b64 exec, 1
                buffer_atomic_add v{t1}, v{t0}, s[{sG}:{sG+3}], s{sA} offen sc1
                s_mov_b64 exec, -1""")
                a.label("L_signalled")
        if kind == "hook":
            if j == poll_at:
                a(f"""s_cmp_eq_u32 s{sW}, 0
                s_cbranch_scc0 L_polled
                s_mov_b32 m0, {FLAG}
                s_lshl_b32 s{sA}, s{sH}, 4
                v_mov_b32 v{t0}, 0
                s_mov_b64 exec, 1
                buffer_load_dword v{t0}, s[{sG}:{sG+3}], s{sA} offen sc1 lds
                s_mov_b64 exec, -1""")
                a.label("L_polled")
            if j == kdma_at:
                a(f"""v_mov_b32 v{t0}, {FLAG}
                ds_read_b32 v{t0}, v{t0}
                s_xor_b32 m0, s{sM0K}, s{sPAR}
                s_lshr_b32 s{sB}, s{sKOFF}, 14
                s_add_u32 s{sB}, s{sB}, 1
                s_waitcnt lgkmcnt(0)
                v_readfirstlane_b32 s{sA}, v{t0}
                s_cmp_eq_u32 s{sA}, {hex(0x7fffffff if opts.get("x_self") else all_ready(opts))}
                s_cselect_b32 s{sMODE}, 1, 0
                s_bitcmp1_b32 s{sA}, {0 if opts.get("x_self") else "s%d" % sB}
                s_cbranch_scc0 L_raw""")
                for p in range(4):
                    a(dma1(p, vKS, sX, sKOFF, " sc1"))
                a.label("L_kdone")
            if j == lump_at:
                a(f"s_cmp_eq_u32 s{sRAW}, 1")
                a("s_cbranch_scc1 L_lump")
                a.label("L_lumped")
        stamp_it(a, opts, f"h{j}", kind)
    if opts.get("clk"):
        clock_sample(a, f"s{sI}")


def clock_sample(a, slot):
    a(f"""s_memtime s[60:61]
    s_memrealtime s[62:63]
    s_lshl_b32 s64, s2, 3
    s_add_u32 s64, s64, s{sW}
    s_lshl_b32 s64, s64, 7
    s_lshl_b32 s65, {slot}, 3
    s_add_u32 s64, s64, s65
    s_add_u32 s64, s64, 0x1000000
    s_mov_b32 s68, s{sWS}
    s_mov_b32 s69, s{sWS+1}
    s_mov_b32 s70, 0x2000000
    s_mov_b32 s71, 0x20000
    s_waitcnt lgkmcnt(0)
    v_mov_b32 v190, s60
    v_mov_b32 v191, s62
    v_mov_b32 v189, 0
    buffer_store_dwordx2 v[190:191], v189, s[68:71], s64 offen""")


def main_loop(a, opts):
    if opts.get("clk"):
        clock_sample(a, "8")
        a("""s_getreg_b32 s60, hwreg(HW_REG_XCC_ID)
        s_add_u32 s64, s64, 8
        v_mov_b32 v190, s60
        buffer_store_dwordx2 v[190:191], v189, s[68:71], s64 offen""")
    a("s_setprio 3")
    iteration(a, opts, "first")
    a(f"s_mov_b32 s{sI}, 1")
    a.label("L_hook")
    iteration(a, opts, "hook")
    a(f"""s_add_u32 s{sI}, s{sI}, 1
    s_cmp_eq_u32 s{sI}, 8
    s_cbranch_scc1 L_tail
    s_cmp_eq_u32 s{sMODE}, 0
    s_cbranch_scc1 L_hook""")
    a.raw(".p2align 6")
    a.label("L_lean")
    iteration(a, opts, "lean")
    a(f"""s_add_u32 s{sI}, s{sI}, 1
    s_cmp_lt_u32 s{sI}, 8
    s_cbranch_scc1 L_lean""")
    a.label("L_tail")
    a(pv(0, 1, 7))
    a(pv(1, 1, 7))


def lump(a, publish):
    t0, t1 = vT[2], vT[3]
    a(f"v_add_u32 v{t0}, s{sPAR}, v{vRR}")
    a(f"v_add_u32 v{t1}, s{sPAR}, v{vKW}")
    read_rows(a, R, t0)
    a("s_waitcnt lgkmcnt(0)")
    normalise(a, R, hex(K_PAD[0]), t1)
    if publish:
        a(f"s_cmp_eq_u32 s{sPUB}, 1")
        a("s_cbranch_scc0 L_published")
        for p in range(4):
            a(f"buffer_store_dwordx4 {vr(R + 4 * p, 4)}, v{vKW}, s[{sX}:{sX+3}], s{sKOFF} offen offset:{piece_off(p)} sc1")
        a.label("L_published")


def side_blocks(a, opts):
    a.label("L_raw")
    a(f"s_mov_b32 s{sRAW}, 1")
    for p in range(4):
        a(dma1(p, vVG, sK, sVOFF))
    a("s_branch L_kdone")
    a.label("L_lump")
    a(f"s_mov_b32 s{sRAW}, 0")
    a("s_waitcnt vmcnt(0)")
    lump(a, publish=False)
    a("s_branch L_lumped")


def finish_tile(a, src, dst, l1, l0):
    a(f"""v_mov_b32 v{l0}, v{src + 12}
    v_mov_b32 v{l1}, v{src + 12}
    s_nop 1
    v_permlane32_swap_b32 v{l0}, v{l1}
    s_nop 1
    v_rcp_f32 v{l1}, v{l1}
    s_nop 0""")
    for i in range(8):
        a(f"v_pk_mul_f32 {vr(dst + 2 * i, 2)}, {vr(src + 2 * i, 2)}, {vr(l1, 2)} op_sel_hi:[1,0]")
        if i >= 1:
            a(f"v_cvt_pk_bf16_f32 v{dst + i - 1}, v{dst + 2 * i - 2}, v{dst + 2 * i - 1}")
    a(f"v_cvt_pk_bf16_f32 v{dst + 7}, v{dst + 14}, v{dst + 15}")


def epilogue(a, opts):
    asym = opts.get("asym", 0)
    a.label("L_epi")
    stamp(a, opts, "done")
    t0, t1, t2 = vT[0:3]
    l0, l1 = vT[4], vT[3]
    a(f"""s_lshl_b32 s{sB}, s{sW}, {13 if asym else 12}
    s_and_b32 s{sB}, s{sB}, 0x7fff
    v_lshl_add_u32 v{t0}, v{vL}, 4, s{sB}
    v_xor_b32 v{t1}, 0x4000, v{t0}
    v_and_b32 v{t2}, 31, v0
    v_mul_u32_u24 v{t2}, 56, v{t2}
    v_bfe_u32 v{vT[3]}, v0, 5, 1
    v_lshl_add_u32 v{t2}, v{vT[3]}, 3, v{t2}
    s_add_u32 s{sB}, s{sB}, {VB[0]}
    v_add_u32 v{t2}, s{sB}, v{t2}
    s_and_b32 s{sA}, s{sW}, 3
    s_lshl_b32 s{sA}, s{sA}, 1""")
    if not asym:
        a(f"s_add_u32 s{sA}, s{sA}, s{sKS}")
    a(f"""s_mul_i32 s{sA}, s{sA}, {32 * 56}
    s_waitcnt lgkmcnt(0)
    s_cmp_eq_u32 s{sKS}, 0
    s_cbranch_scc1 L_epi0""")
    tiles = []
    if asym:
        a("s_barrier")
        for x in range(2):
            for p in (3, 0, 1, 2):
                a(f"ds_read_b128 {vr(S[x] + 4 * p, 4)}, v{t0} offset:{4096 * x + 1024 * p}")
        for x in range(2):
            for n, p in enumerate((3, 0, 1, 2)):
                a(f"s_waitcnt lgkmcnt({7 - 4 * x - n})")
                for i in (0, 2):
                    a(f"v_pk_add_f32 {vr(S[x] + 4 * p + i, 2)}, {vr(S[x] + 4 * p + i, 2)}, {vr(O[x] + 4 * p + i, 2)}")
            finish_tile(a, S[x], D[x], l1, l0)
        tiles = [0, 1]
        own = O
    else:
        for x in (1, 0):
            if x == 0:
                a.label("L_epi0")
                a("s_nop 3")
            keep, send = O[x], O[1 - x]
            for p in range(4):
                a(f"ds_write_b128 v{t0}, {vr(send + 4 * p, 4)} offset:{1024 * p}")
            a("s_waitcnt lgkmcnt(0)")
            stamp(a, opts, "sent")
            a("s_barrier")
            for p in (3, 0, 1, 2):
                a(f"ds_read_b128 {vr(S[1] + 4 * p, 4)}, v{t1} offset:{1024 * p}")

            def add(p):
                for i in (0, 2):
                    a(f"v_pk_add_f32 {vr(S[0] + 4 * p + i, 2)}, {vr(S[1] + 4 * p + i, 2)}, {vr(keep + 4 * p + i, 2)}")
            a("s_waitcnt lgkmcnt(3)")
            add(3)
            a(f"v_mov_b32 v{l0}, v{S[0] + 12}")
            a(f"v_mov_b32 v{l1}, v{S[0] + 12}")
            a("s_waitcnt lgkmcnt(2)")
            add(0)
            a(f"v_permlane32_swap_b32 v{l0}, v{l1}")
            a("s_waitcnt lgkmcnt(1)")
            add(1)
            a(f"v_rcp_f32 v{l1}, v{l1}")
            a("s_waitcnt lgkmcnt(0)")
            add(2)
            if x == 1:
                a("s_branch L_epi1")
        a.label("L_epi1")
        for g in range(4):
            for i in (0, 2):
                a(f"v_pk_mul_f32 {vr(D[0] + 4 * g + i, 2)}, {vr(S[0] + 4 * g + i, 2)}, {vr(l1, 2)} op_sel_hi:[1,0]")
            if g:
                a(f"ds_write_b64 v{t2}, {vr(D[1] + 2 * g - 2, 2)} offset:{16 * g - 16}")
            for i in (0, 1):
                a(f"v_cvt_pk_bf16_f32 v{D[1] + 2 * g + i}, v{D[0] + 4 * g + 2 * i}, v{D[0] + 4 * g + 2 * i + 1}")
        tiles = [0]
        own = [S[1]]
    for x in tiles:
        for g in range(3 if asym else 0):
            a(f"ds_write_b64 v{t2}, {vr(D[x] + 2 * g, 2)} offset:{1792 * x + 16 * g}")
    a("s_mov_b32 exec_hi, 0")
    for x in tiles:
        a(f"ds_write_b64 v{t2}, {vr(D[x if asym else 1] + 6, 2)} offset:{1792 * x + 48}")
    a("s_mov_b32 exec_hi, -1")
    a(f"v_lshlrev_b32 v{t1}, 4, v{vL}")
    n = 2 * len(tiles)
    for p in range(n):
        a(f"ds_read_b128 {vr(KF[0] + 4 * p, 4)}, v{t0} offset:{VB[0] + 1024 * p}")
    for p in range(n):
        if p == n - 1:
            a("s_mov_b32 exec_hi, 0" if asym else "s_mov_b32 exec_hi, 0xffff")
        a(f"s_waitcnt lgkmcnt({n - 1 - p})")
        a(f"buffer_store_dwordx4 {vr(KF[0] + 4 * p, 4)}, v{t1}, s[{sO}:{sO+3}], s{sA} offen offset:{1024 * p}")
    a("s_mov_b32 exec_hi, -1")
    for x in tiles:
        for i in range(16):
            a(f"v_max_f32 v{S[x] + i}, abs(v{S[x] + i}), abs(v{own[x] + i})")
    vals = [S[x] + i for x in tiles for i in range(13)]
    a(f"v_min3_f32 v{l0}, v{vals[0]}, v{vals[1]}, v{vals[2]}")
    rest = vals[3:]
    while rest:
        b, c = rest[0], rest[1] if len(rest) > 1 else rest[0]
        a(f"v_min3_f32 v{l0}, v{l0}, v{b}, v{c}")
        rest = rest[2:]
    a("s_mov_b32 exec_hi, 0")
    for x in tiles:
        a(f"v_min3_f32 v{l0}, v{l0}, v{S[x] + 13}, v{S[x] + 14}")
        a(f"v_min_f32 v{l0}, v{S[x] + 15}, v{l0}")
    a(f"""s_mov_b32 exec_hi, -1
    v_cmp_gt_f32 vcc, {hex(O_MIN)}, v{l0}
    v_mov_b32 v{t0}, {FLAG + 4}
    v_mov_b32 v{t1}, 1
    s_cbranch_vccz L_final
    ds_write_b32 v{t0}, v{t1}
    s_waitcnt lgkmcnt(0)""")
    if asym:
        a("s_branch L_final")
        a.label("L_epi0")
        a("s_nop 3")
        for x in range(2):
            for p in range(4):
                a(f"ds_write_b128 v{t0}, {vr(O[x] + 4 * p, 4)} offset:{4096 * x + 1024 * p}")
        a(f"v_mov_b32 v{t0}, {FLAG + 4}")
        a("s_waitcnt lgkmcnt(0)")
        stamp(a, opts, "sent")
        a("s_barrier")
    a.label("L_final")
    a(f"""s_barrier
    ds_read_b32 v{t0}, v{t0}
    s_waitcnt lgkmcnt(0)
    v_readfirstlane_b32 s{sA}, v{t0}
    s_cmp_gt_u32 s{sA}, s{sSLOW}
    s_cbranch_scc1 L_redo""")
    if opts.get("stamps"):
        a("s_mov_b64 exec, -1")
        stamp(a, opts, "stored")
        a("s_waitcnt vmcnt(0)")
        stamp(a, opts, "end")
        dbg = opts["stamps"] == 2
        a(f"""s_memrealtime s[76:77]
        s_load_dwordx2 s[4:5], s[0:1], {40 if dbg else 48}
        s_waitcnt lgkmcnt(0)
        s_mov_b32 s6, {64 if dbg else 0x2000000}
        s_mov_b32 s7, 0x20000
        s_lshl_b32 s8, s2, 3
        s_add_u32 s8, s8, s{sW}""")
        if dbg:
            a("""s_cmp_eq_u32 s8, 2047
            s_cselect_b32 s9, 1, 2
            s_cmp_eq_u32 s8, 0
            s_cselect_b32 s8, 0, s9""")
        a("s_lshl_b32 s8, s8, 5")
        if not dbg:
            a("s_add_u32 s8, s8, 0x1000000")
        a("""v_mov_b32 v0, 0
        v_mov_b32 v1, s74
        buffer_store_dword v1, v0, s[4:7], s8 offen""")
        for n in range(1, 7):
            if opts["slots"][n] == "mode":
                a(f"s_mov_b32 s9, s{sP}")
            else:
                a(f"s_sub_u32 s9, s{sTS + 2 * n}, s{sTS}")
            a("v_mov_b32 v1, s9")
            a(f"buffer_store_dword v1, v0, s[4:7], s8 offen offset:{4 * n}")
        a("s_sub_u32 s9, s76, s74")
        a("v_mov_b32 v1, s9")
        a("buffer_store_dword v1, v0, s[4:7], s8 offen offset:28")
    if opts.get("hold"):
        if opts.get("holdraw"):
            a(f"""s_mul_i32 s8, s{sP}, 400
            s_add_u32 s74, s74, s8""")
        if opts.get("span"):
            a("""s_waitcnt lgkmcnt(0)
            s_sub_u32 s8, s60, s62
            s_lshl_b32 s8, s8, 2
            s_add_u32 s74, s74, s8""")
        if opts.get("holdk"):
            a(f"""s_waitcnt lgkmcnt(0)
            s_sub_u32 s8, s60, s74
            s_lshl_b32 s8, s8, {0 if opts["holdk"] == 2 else 2}
            s_add_u32 s74, s74, s8""")
        a.label("L_hold")
        a(f"""s_sleep 4
        s_memrealtime s[76:77]
        s_waitcnt lgkmcnt(0)
        s_sub_u32 s9, s76, s74
        s_cmp_lt_i32 s9, {opts["hold"]}
        s_cbranch_scc1 L_hold""")
    a.label("L_end")
    a("s_endpgm")


def slow_path(a):
    x0 = vT[2]
    a.label("L_redo")
    a(f"""s_mov_b32 s{sFORCE}, 1
    s_waitcnt vmcnt(0)
    s_barrier
    s_branch L_start""")
    a.label("L_slow")
    a(f"""v_mov_b32 v{MXS[0]}, 0xff800000
    v_mov_b32 v{MXS[1]}, 0xff800000
    s_mov_b32 s{sP}, 0""")
    a.label("L_slow_pass")
    a(f"s_mov_b32 s{sVOFF}, 0")
    a.label("L_slow_chunk")
    a("s_waitcnt vmcnt(0) lgkmcnt(0)")
    a("s_barrier")
    dma4(a, sM0K, vVG, sK, f"s{sVOFF}")
    dma4(a, sM0V, vVG, sV, f"s{sVOFF}")
    a("s_waitcnt vmcnt(0)")
    read_rows(a, R, vRR)
    a("s_waitcnt lgkmcnt(0)")
    normalise(a, R, hex(K_PAD[0]), vKW)
    a("s_waitcnt lgkmcnt(0)")
    a("s_barrier")
    for j in range(8):
        a(f"ds_read_b128 {vr(KF[0], 4)}, v{vAK} offset:{j * 2048}")
        a(f"ds_read_b128 {vr(KF[0] + 4, 4)}, v{vAK} offset:{j * 2048 + 1024}")
        for which in range(2):
            for part in range(2):
                base = (V1, V2)[which][0] + 2 * part
                a(f"ds_read_b64_tr_b16 {vr(base, 2)}, v{vAV} offset:{j * 1792 + 896 * which + 224 * part}")
        a("s_waitcnt lgkmcnt(0)")
        a(f"s_call_b64 s[{sLINK}:{sLINK+1}], L_slow_tile")
    a(f"""s_add_u32 s{sVOFF}, s{sVOFF}, {CHB}
    s_cmp_lt_u32 s{sVOFF}, {HEADB}
    s_cbranch_scc1 L_slow_chunk
    s_cmp_eq_u32 s{sP}, 1
    s_cbranch_scc1 L_slow_done""")
    for x in range(2):
        a(f"""v_mov_b32 v{x0}, v{MXS[x]}
        s_nop 1
        v_permlane32_swap_b32 v{x0}, v{MXS[x]}
        s_nop 1
        v_max_f32 v{MXS[x]}, v{x0}, v{MXS[x]}""")
    a(f"""s_barrier
    v_lshlrev_b32 v{x0}, 3, v0
    ds_write_b64 v{x0}, {vr(MXS[0], 2)}
    s_waitcnt lgkmcnt(0)
    s_barrier
    v_xor_b32 v{x0}, 2048, v{x0}
    ds_read_b64 {vr(S[0], 2)}, v{x0}
    s_waitcnt lgkmcnt(0)
    v_max_f32 v{MXS[0]}, v{MXS[0]}, v{S[0]}
    v_max_f32 v{MXS[1]}, v{MXS[1]}, v{S[0] + 1}
    s_mov_b32 s{sP}, 1
    s_branch L_slow_pass""")
    a.label("L_slow_done")
    a("s_barrier")
    a("s_nop 7")
    a("s_branch L_epi")
    a.label("L_slow_tile")
    for x in range(2):
        a(qk(x, 0, 0)); a(qk(x, 1, 0))
    a("s_nop 15")
    for x in range(2):
        for i in range(16):
            a(f"v_mul_f32 v{S[x] + i}, s{sT}, v{S[x] + i}")
    a(f"s_cmp_eq_u32 s{sP}, 1")
    a("s_cbranch_scc1 L_slow_exp")
    for x in range(2):
        for i in range(16):
            a(f"v_max_f32 v{MXS[x]}, v{MXS[x]}, v{S[x] + i}")
    a(f"s_setpc_b64 s[{sLINK}:{sLINK+1}]")
    a.label("L_slow_exp")
    for x in range(2):
        for i in range(16):
            a(f"v_sub_f32 v{S[x] + i}, v{S[x] + i}, v{MXS[x]}")
            a(f"v_mul_f32 v{S[x] + i}, {hex(LOG2E)}, v{S[x] + i}")
            a(f"v_exp_f32 v{S[x] + i}, v{S[x] + i}")
    a("s_nop 1")
    for x in range(2):
        a(pv(x, 0, 0)); a(pv(x, 1, 0))
    a(f"s_setpc_b64 s[{sLINK}:{sLINK+1}]")


SLOTS = {0: ["start", "setup", "prebar", "loop", "mode", "done", "end"],
         1: ["start", "karg", "issued", "setup", "kdata", "prebar", "end"],
         2: ["start", "loop", "done", "sent", "stored", "mode", "end"],
         3: ["start", "kdata", "mid", "qdata", "lump2", "prebar", "end"],
         4: ["start", "loop", "e1", "h1", "e3", "h3", "end"],
         5: ["start", "e4", "h4", "e5", "h5", "e6", "end"],
         6: ["start", "e0", "e2", "e4", "e5", "e6", "e7"],
         7: ["start", "loop", "e0", "h0", "e4", "h4", "e6"],
         8: ["start", "e5", "e6", "h6", "e7", "done", "end"],
         9: ["start", "e1", "h1", "e2", "h2", "e3", "h3"],
         10: ["start", "qdata", "n0", "n1", "n2", "n3", "n4"],
         11: ["start", "n3", "n4", "n5", "prebar", "loop", "end"]}


def build(opts):
    opts["slots"] = SLOTS[opts.get("pro", 0)]
    a = Asm()
    name = "standalone__qk_norm__prompt_kernel"
    a.raw(HEADER + f"; @launch grid=(256,1,1) block=(512,1,1) lds={LDS_BYTES}")
    a.raw('.amdgcn_target "amdgcn-amd-amdhsa--gfx950"\n.text')
    if opts.get("align", 0):
        a.raw(".p2align 12\n.fill 832, 4, 0xbf800000")
    a.raw(f".globl {name}\n.p2align 8\n.type {name},@function\n{name}:")
    prologue(a, opts)
    main_loop(a, opts)
    epilogue(a, opts)
    side_blocks(a, opts)
    slow_path(a)
    txt = a.text()
    if opts.get("stamps") or opts.get("holdraw"):
        txt = txt.replace(f"    s_mov_b32 s{sMODE}, 0\n", f"    s_mov_b32 s{sMODE}, 0\n    s_mov_b32 s{sP}, 0\n")
        txt = txt.replace(f"    s_mov_b32 s{sRAW}, 1\n", f"    s_mov_b32 s{sRAW}, 1\n    s_add_u32 s{sP}, s{sP}, 1\n")
    txt += f""".section .rodata,"a"
.p2align 6
.amdhsa_kernel {name}
  .amdhsa_next_free_vgpr {NVGPR}
  .amdhsa_next_free_sgpr {NSGPR}
  .amdhsa_accum_offset {NVGPR}
  .amdhsa_group_segment_fixed_size 0
  .amdhsa_kernarg_size 56
  .amdhsa_user_sgpr_count 2
  .amdhsa_user_sgpr_kernarg_segment_ptr 1
  .amdhsa_system_sgpr_workgroup_id_x 1
  .amdhsa_float_denorm_mode_32 3
.end_amdhsa_kernel
"""
    return txt


if __name__ == "__main__":
    opts = {}
    out = "standalone__qk_norm__prompt.s"
    for arg in sys.argv[1:]:
        k, _, v = arg.partition("=")
        if k == "out":
            out = v
        else:
            opts[k] = int(v)
    open(out, "w").write(build(opts))
```

```python
import sys

HEADER = """; Kernarg layout for this problem (56 bytes, ptrs only, base s[0:1]):
;   offset   0: d_in[0] q  shape=(1, 16, 4096, 28) dtype=bfloat16 strides=(3670016, 229376, 56, 2) contiguous=True
;   offset   8: d_in[1] k  shape=(1, 16, 4096, 28) dtype=bfloat16 strides=(3670016, 229376, 56, 2) contiguous=True
;   offset  16: d_in[2] v  shape=(1, 16, 4096, 28) dtype=bfloat16 strides=(3670016, 229376, 56, 2) contiguous=True
;   offset  32: d_out     shape=(1, 16, 4096, 28) dtype=bfloat16 (2 bytes/elem)
"""

HEADB = 229376
CHB = 28672
WSH = 262144
PAR = 0x10000
KB = [0, PAR]
VB = [32768, PAR + 32768]
ONES = 2 * PAR
QB = ONES + 14336
FLAG = QB + 16384
LDS_BYTES = FLAG + 256
T_LIMIT = 0x41800000
K_PAD = (0x3f803f80, 0x00003f80)
Q_PAD = {0: (0xc2420000, 0), 256: (0xc242c380, 0x4380), 1536: (0xc242c4c0, 0x44c0), 3072: (0xc242c540, 0x4540),
         6144: (0xc242c5c0, 0x45c0)}
O_MIN = 0x0c800000
LOG2E = 0x3fb8aa3b
EPS = 0x358637bd

sK, sV, sO, sX, sG = 16, 20, 24, 28, 32
sH, sC, sW, sT, sI, sVOFF, sM0V, sKS = 36, 37, 38, 39, 40, 41, 42, 43
sA, sB, sD = 44, 45, 46
sPAR, sM0K, sKOFF, sRAW, sMODE, sPUB, sSLOW = 47, 48, 49, 50, 51, 52, 53
sWS = 54
sP = 56
sFORCE = 57
sLINK = 58
sTS = 60
NSGPR = 80
vL, vKS, vVG, vKW, vAK, vAV, vDV, vIDX = 1, 2, 3, 4, 5, 6, 7, 8
vT = [9, 10, 11, 12, 13, 14, 15]
RQ = 16
QF = [[16, 20], [24, 28]]
O = [32, 48]
S = [64, 80]
KF = [96, 104]
V1 = [112, 116]
V2 = [120, 124]
R = 128
D = [144, 160]
A1, A2 = 176, 180
MX = [184, 185]
vRR, vPOLL = 186, 187
MXS = [188, 189]
SS = [S, [192, 208]]
NVGPR = 224


def first_pub(opts):
    return 2


def all_ready(opts):
    return sum(2 << (2 * n) for n in range(first_pub(opts) // 2, 8))


class Asm:
    def __init__(self):
        self.l = []
    def __call__(self, s):
        for x in s.split("\n"):
            self.l.append("    " + x.strip())
    def label(self, n):
        self.l.append(n + ":")
    def raw(self, s):
        self.l.append(s)
    def text(self):
        return "\n".join(self.l) + "\n"


def vr(a, n):
    return f"v[{a}:{a + n - 1}]"


def dma4(a, m0, vaddr, srd, soff, flags="", exact=False):
    a(f"s_mov_b32 m0, s{m0}")
    a("s_nop 0")
    for p in range(4):
        if exact and p == 3:
            a("s_mov_b32 exec_hi, 0")
        a(f"buffer_load_dwordx4 v{vaddr}, s[{srd}:{srd+3}], {soff} offen offset:{1024 * p}{flags} lds")
    if exact:
        a("s_mov_b32 exec_hi, -1")


def read_rows(a, r, vaddr):
    for i in range(3):
        a(f"ds_read2_b64 {vr(r + 4 * i, 4)}, v{vaddr} offset0:{2 * i} offset1:{2 * i + 1}")
    a(f"ds_read_b64 {vr(r + 12, 2)}, v{vaddr} offset:48")


def normalise(a, r, pad, dst, scale=None, mid=None, mid2=None, st=lambda n: None):
    nrm = vT[1]
    acc = MX[0]
    a(f"v_mfma_f32_32x32x16_bf16 {vr(D[0], 16)}, {vr(A1, 4)}, {vr(r, 4)}, 0")
    a(f"v_mfma_f32_32x32x16_bf16 {vr(D[0], 16)}, {vr(A2, 4)}, {vr(r + 4, 4)}, {vr(D[0], 16)}")
    a(f"v_mfma_f32_32x32x16_bf16 {vr(D[1], 16)}, {vr(A1, 4)}, {vr(r + 8, 4)}, 0")
    a(f"v_mfma_f32_32x32x16_bf16 {vr(D[1], 16)}, {vr(A2, 4)}, {vr(r + 12, 4)}, {vr(D[1], 16)}")
    if mid:
        mid(a)
    a(f"v_mov_b32 v{r + 7}, {pad}")
    a("s_nop 2" if mid else "s_nop 8")
    st("n1")
    for i in range(14):
        d = vr(D[0] + 2 * i, 2)
        if i == 0:
            a(f"v_pk_mul_f32 {vr(acc, 2)}, {d}, {d}")
        else:
            a(f"v_pk_fma_f32 {vr(acc, 2)}, {d}, {d}, {vr(acc, 2)}")
    a(f"v_add_f32 v{nrm}, v{acc}, v{acc + 1}")
    st("n2")
    a(f"v_sqrt_f32 v{nrm}, v{nrm}")
    a("s_nop 0")
    a(f"v_add_f32 v{nrm}, {hex(EPS)}, v{nrm}")
    a(f"v_rcp_f32 v{nrm}, v{nrm}")
    a("s_nop 0")
    if scale is not None:
        a(f"v_mul_f32 v{nrm}, v{scale}, v{nrm}")
    st("n3")
    if mid2:
        mid2(a)
    for i in range(14):
        d = D[0] + 2 * i
        a(f"v_pk_mul_f32 {vr(d, 2)}, {vr(d, 2)}, {vr(nrm, 2)} op_sel_hi:[1,0]")
        if i in (5, 8, 12):
            write_frag(a, r, dst, (5, 8, 12).index(i))
        if i >= 1:
            a(f"v_cvt_pk_bf16_f32 v{r + i - 1 + (i > 7)}, v{d - 2}, v{d - 1}")
    a(f"v_cvt_pk_bf16_f32 v{r + 14}, v{D[0] + 26}, v{D[0] + 27}")
    write_frag(a, r, dst, 3)


def piece_off(p):
    return (p >> 1) * 1024 + (p & 1) * 512


def write_frag(a, r, vaddr, p):
    a(f"ds_write_b128 v{vaddr}, {vr(r + 4 * p, 4)} offset:{piece_off(p)}")


def rdK(f, tile):
    return f"ds_read_b128 {vr(KF[0] + 4 * f, 4)}, v{vAK} offset:{(tile % 8) * 2048 + 1024 * f}"


def rdV(which, part, tile):
    b = tile & 1
    base = (V1, V2)[which][b] + 2 * part
    return f"ds_read_b64_tr_b16 {vr(base, 2)}, v{vAV} offset:{(tile % 8) * 1792 + 896 * which + 224 * part}"


def qk(x, f, tile):
    s = SS[tile & 1][x]
    c = "0" if f == 0 else vr(s, 16)
    return f"v_mfma_f32_32x32x16_bf16 {vr(s, 16)}, {vr(KF[0] + 4 * f, 4)}, {vr(QF[x][f], 4)}, {c}"


def pv(x, which, tile):
    v = (V1, V2)[which][tile & 1]
    return f"v_smfmac_f32_32x32x32_bf16 {vr(O[x], 16)}, {vr(v, 4)}, {vr(SS[tile & 1][x] + 8 * which, 8)}, v{vIDX}"


def step(a, j, slots, sync=None):
    e = [f"v_exp_f32 v{SS[j & 1][x] + 8 * h + i}, v{SS[j & 1][x] + 8 * h + i}" for h in range(2) for x in range(2) for i in range(8)]
    m = [pv(0, 1, j - 1), pv(1, 1, j - 1), qk(0, 0, j + 1), qk(1, 0, j + 1), qk(0, 1, j + 1), qk(1, 1, j + 1),
         pv(0, 0, j), pv(1, 0, j)]
    r = [rdV(0, 1, j + 1), rdV(1, 0, j + 1), rdV(1, 1, j + 1), rdK(0, j + 2), None, rdK(1, j + 2), None, rdV(0, 0, j + 2)]
    pos = 0
    for g in range(8):
        for i in range(pos, 2 + 4 * g):
            a(e[i])
        pos = 2 + 4 * g
        a(m[g])
        if g == 3 and sync:
            sync(a)
        if r[g]:
            a(r[g])
        for ins in slots.get(g, []):
            a(ins)
    for i in range(pos, 32):
        a(e[i])


HOLD_POINTS = [None, "loop", "done", "karg", "issued", "kdata", "lump2", "prebar", "setup", "qdata"]


def stamp(a, opts, name):
    if opts.get("holdk") and HOLD_POINTS[opts["holdk"]] == name:
        a("s_memrealtime s[60:61]")
    if opts.get("stamps") and name in opts["slots"]:
        n = opts["slots"].index(name)
        a(f"s_memtime s[{sTS + 2 * n}:{sTS + 2 * n + 1}]")


def stamp_it(a, opts, name, kind):
    if opts.get("span") and name in (f"e{opts['span']}", f"h{opts['span']}") and kind == "hook":
        a(f"s_cmp_eq_u32 s{sI}, 1")
        a(f"s_cbranch_scc0 L_sp_{name}")
        a("s_memrealtime s[62:63]" if name[0] == "e" else "s_memrealtime s[60:61]")
        a.label(f"L_sp_{name}")
    if opts.get("stamps") and name in opts["slots"]:
        a(f"s_cmp_eq_u32 s{sI}, {opts.get('it', 0)}")
        a(f"s_cbranch_scc0 L_st_{name}_{kind}")
        stamp(a, opts, name)
        a.label(f"L_st_{name}_{kind}")


def prologue(a, opts):
    t0, t1, t2, t3, t4 = vT[2:7]
    z = V2[1]
    m4 = opts.get("m4", 1)
    touch = opts.get("touch", 1)
    a("s_cmp_ge_u32 s2, 256")
    a("s_cbranch_scc1 L_end")
    a(f"s_mov_b32 s{sFORCE}, 0")
    a.label("L_start")
    stamp(a, opts, "start")
    if opts.get("stamps") or opts.get("hold"):
        a("s_memrealtime s[74:75]")
    if opts.get("hold"):
        a("s_memrealtime s[60:61]")
    a("s_load_dwordx8 s[4:11], s[0:1], 0")
    a("s_load_dwordx4 s[12:15], s[0:1], 32")
    a(f"s_load_dwordx2 s[{sWS}:{sWS+1}], s[0:1], 48")
    a(f"""v_lshrrev_b32 v{t0}, 6, v0
    v_and_b32 v{vL}, 63, v0
    s_and_b32 s{sA}, s2, 7
    v_readfirstlane_b32 s{sW}, v{t0}
    s_lshl_b32 s{sA}, s{sA}, 1
    s_bfe_u32 s{sB}, s2, 0x10003
    s_add_u32 s{sH}, s{sA}, s{sB}
    s_lshr_b32 s{sC}, s2, 4""")
    if opts.get("x_perm"):
        a(f"s_lshr_b32 s{sH}, s2, 4")
        a(f"s_and_b32 s{sC}, s2, 15")
    if opts.get("pf", 1):
        c0, c1 = D[0], D[0] + 2
        if opts.get("pfn", 256) < 256:
            a(f"s_cmp_ge_u32 s2, {opts['pfn']}")
            a("s_cbranch_scc1 L_nopf")
        a(f"""s_cmp_eq_u32 s{sW}, 7
        s_cbranch_scc0 L_nopf
        s_getpc_b64 s[{sG}:{sG+1}]""")
        a.label("L_pc")
        a(f"""v_lshlrev_b32 v{t0}, 7, v{vL}
        v_mov_b32 v{c0 + 1}, s{sG+1}
        v_add_co_u32 v{c0}, vcc, s{sG}, v{t0}
        v_add_u32 v{t0}, 0x2000, v{t0}
        v_min_u32 v{t0}, L_raw-L_pc, v{t0}
        v_addc_co_u32 v{c0 + 1}, vcc, 0, v{c0 + 1}, vcc
        v_mov_b32 v{c1 + 1}, s{sG+1}
        v_add_co_u32 v{c1}, vcc, s{sG}, v{t0}
        global_load_dword v{vPOLL}, {vr(c0, 2)}, off
        s_nop 0
        v_addc_co_u32 v{c1 + 1}, vcc, 0, v{c1 + 1}, vcc
        global_load_dword v{vPOLL}, {vr(c1, 2)}, off""")
        a.label("L_nopf")
    a(f"""s_mul_i32 s{sA}, s{sH}, {HEADB}
    s_mul_i32 s{sD}, s{sC}, 14336
    s_add_u32 s{sB}, s{sD}, s{sA}
    s_lshr_b32 s{sKS}, s{sW}, 2
    s_mul_i32 s{sM0V}, s{sW}, 3584
    v_lshlrev_b32 v{vAK}, 4, v{vL}
    v_add_u32 v{vVG}, s{sM0V}, v{vAK}
    s_add_u32 s{sM0V}, s{sM0V}, {VB[0]}
    s_lshl_b32 s{sM0K}, s{sW}, 12
    s_mov_b32 s{sK+2}, {HEADB}
    s_mov_b32 s{sK+3}, 0x20000
    s_mov_b32 s{sX+2}, 14336
    s_mov_b32 s{sX+3}, 0x20000
    s_add_u32 s{sMODE}, s{sM0K}, {QB}
    s_lshr_b32 s{sD}, s{sH}, 1
    s_lshl_b32 s{sD}, s{sD}, 2""")

    def setup_a(a):
        a(f"""v_mov_b32 v{R+15}, {hex(K_PAD[1])}
        s_mov_b32 vcc_lo, 0xaaaaaaaa
        s_mov_b32 vcc_hi, 0xaaaaaaaa
        v_cndmask_b32 v{t1}, v{R+15}, 1.0, vcc""")
        for p in range(8):
            lo = 3 << (8 * (p >> 1) + 2 * (p & 1))
            a(f"s_mov_b32 vcc_lo, {hex(lo)}")
            a(f"s_mov_b32 vcc_hi, {hex(lo << 4)}")
            a(f"v_cndmask_b32 v{A1 + p}, 0, v{t1}, vcc")
        a(f"""v_mov_b32 v{R+14}, 0
        v_lshrrev_b32 v{t0}, 5, v0
        v_mul_u32_u24 v{t0}, 1536, v{t0}
        v_lshl_add_u32 v{vKW}, v0, 4, v{t0}
        v_mad_u32_u24 v{vRR}, v{vL}, 56, s{sM0K}""")

    if opts.get("prek", 1) == 1:
        setup_a(a)
    a("s_waitcnt lgkmcnt(0)")
    stamp(a, opts, "karg")
    a(f"""s_add_u32 s{sK}, s6, s{sA}
    s_addc_u32 s{sK+1}, s7, 0""")
    dma4(a, sM0K, vVG, sK, 0, exact=m4)
    if opts.get("prek", 1) == 2:
        setup_a(a)
    a(f"""s_cmp_eq_u32 s{sKS}, 0
    s_cbranch_scc0 L_noq
    s_add_u32 s{sX}, s4, s{sB}
    s_addc_u32 s{sX+1}, s5, 0""")
    dma4(a, sMODE, vVG, sX, 0, exact=m4)
    a.label("L_noq")
    a(f"""s_add_u32 s{sV}, s8, s{sA}
    s_addc_u32 s{sV+1}, s9, 0
    s_mov_b32 s{sV+2}, {HEADB}
    s_mov_b32 s{sV+3}, 0x20000""")
    if touch:
        a(f"""s_cmp_eq_u32 s{sW}, 4
        s_cbranch_scc0 L_notouch
        s_mul_i32 s{sP}, s{sC}, 1792
        v_lshlrev_b32 v{t0}, 7, v{vL}
        s_mov_b64 exec, 0x3fff
        buffer_load_dword v{vPOLL}, v{t0}, s[{sV}:{sV+3}], s{sP} offen
        s_mov_b64 exec, -1""")
        a.label("L_notouch")
    a(f"s_load_dword s{sT}, s[10:11], s{sD}")
    stamp(a, opts, "issued")
    if not opts.get("prek", 1):
        setup_a(a)
    a(f"""s_add_u32 s{sO}, s12, s{sB}
    s_addc_u32 s{sO+1}, s13, 0
    s_mov_b32 s{sO+2}, 14336
    s_mov_b32 s{sO+3}, 0x20000
    s_mov_b32 s{sG}, s14
    s_mov_b32 s{sG+1}, s15
    s_mov_b32 s{sG+2}, 256
    s_mov_b32 s{sG+3}, 0x20000
    s_mul_i32 s{sA}, s{sH}, {WSH}
    s_add_u32 s{sX}, s{sWS}, s{sA}
    s_addc_u32 s{sX+1}, s{sWS+1}, 0
    s_mov_b32 s{sX+2}, {WSH}
    v_mov_b64 {vr(z, 2)}, 0
    v_mov_b64 {vr(z + 2, 2)}, 0
    s_and_b32 s{sPUB}, s{sC}, 1
    s_cmp_eq_u32 s{sPUB}, s{sKS}
    s_cselect_b32 s{sPUB}, 1, 0
    s_cmp_ge_u32 s{sC}, {first_pub(opts)}
    s_cselect_b32 s{sPUB}, s{sPUB}, 0
    v_mfma_f32_32x32x16_bf16 {vr(O[0], 16)}, {vr(z, 4)}, {vr(z, 4)}, 0
    s_lshr_b32 s{sKOFF}, s{sC}, 1
    s_max_u32 s{sKOFF}, s{sKOFF}, 1
    s_mul_i32 s{sVOFF}, s{sKOFF}, {CHB}
    s_lshl_b32 s{sKOFF}, s{sKOFF}, 15
    s_lshl_b32 s{sA}, s{sKS}, 14
    v_add_u32 v{vAK}, s{sA}, v{vAK}
    s_mul_i32 s{sA}, s{sKS}, {8 * 1792}
    s_add_u32 s{sA}, s{sA}, {VB[0]}
    v_and_b32 v{t0}, 15, v0
    v_bfe_u32 v{t1}, v0, 2, 2
    v_mad_u32_u24 v{t0}, v{t1}, 3, v{t0}
    v_lshrrev_b32 v{t1}, 4, v{vL}
    v_lshl_add_u32 v{t0}, v{t1}, 2, v{t0}
    v_lshrrev_b32 v{t1}, 5, v{vL}
    v_mad_u32_u24 v{t0}, v{t1}, 48, v{t0}
    v_mfma_f32_32x32x16_bf16 {vr(O[1], 16)}, {vr(z, 4)}, {vr(z, 4)}, 0
    v_lshl_add_u32 v{vAV}, v{t0}, 3, s{sA}
    v_mov_b32 v{vDV}, {PAR}
    v_lshlrev_b32 v{t1}, 6, v{t1}
    v_sub_u32 v{t1}, {ONES + 224}, v{t1}
    s_mov_b32 vcc_lo, 0x88880000
    s_mov_b32 vcc_hi, 0x88880000
    v_cndmask_b32 v{vAV}, v{vAV}, v{t1}, vcc
    v_cndmask_b32 v{vDV}, v{vDV}, v{R+14}, vcc
    v_mov_b32 v{vIDX}, 0xdddddddd
    v_mfma_f32_32x32x16_bf16 {vr(SS[1][0], 16)}, {vr(z, 4)}, {vr(z, 4)}, 0
    v_mfma_f32_32x32x16_bf16 {vr(SS[1][1], 16)}, {vr(z, 4)}, {vr(z, 4)}, 0
    s_cmp_eq_u32 s{sKS}, 0
    s_cbranch_scc1 L_two""")

    def temperature(a):
        a(f"""s_bitcmp1_b32 s{sH}, 0
        s_cselect_b32 s{sA}, 0, 16
        s_lshl_b32 s{sT}, s{sT}, s{sA}
        s_and_b32 s{sT}, s{sT}, 0xffff0000
        s_and_b32 s{sA}, s{sT}, 0x7fffffff
        s_cmp_gt_u32 s{sA}, {hex(T_LIMIT)}
        s_cselect_b32 s{sSLOW}, 1, s{sFORCE}""")

    a(f"""v_subrev_u32 v{t2}, 14336, v{vVG}
    s_sub_u32 s{sMODE}, s{sM0V}, 14336
    s_cmp_eq_u32 s{sW}, 6
    s_cbranch_scc0 L_noones
    v_lshrrev_b32 v{t0}, 3, v{vL}
    v_mul_u32_u24 v{t0}, 1792, v{t0}
    v_bfe_u32 v{t1}, v0, 2, 1
    v_mul_u32_u24 v{t1}, 896, v{t1}
    v_add_u32 v{t0}, v{t0}, v{t1}
    v_bfe_u32 v{t1}, v0, 1, 1
    v_mul_u32_u24 v{t1}, 224, v{t1}
    v_add_u32 v{t0}, v{t0}, v{t1}
    v_and_b32 v{t1}, 1, v0
    v_lshl_add_u32 v{t0}, v{t1}, 6, v{t0}
    v_add_u32 v{t0}, {ONES + 160}, v{t0}
    v_mov_b32 v{t1}, {FLAG}
    v_mov_b32 v{D[0]}, 0x3f80
    v_mov_b32 v{D[0] + 1}, 0
    ds_write_b64 v{t0}, {vr(D[0], 2)}
    ds_write_b64 v{t1}, {vr(z, 2)}""")
    a.label("L_noones")
    stamp(a, opts, "setup")
    vearly = opts.get("vearly", 0)
    if vearly:
        dma4(a, sMODE, t2, sV, 0, exact=m4)
    if vearly == 2:
        dma4(a, sM0V, vVG, sV, 0, exact=m4)
    if touch:
        a(f"""s_waitcnt vmcnt({4 * vearly + 1})
        s_cmp_eq_u32 s{sW}, 4
        s_cbranch_scc1 L_kready""")
    a(f"s_waitcnt vmcnt({4 * vearly})")
    a.label("L_kready")
    stamp(a, opts, "kdata")
    read_rows(a, R, vRR)

    def load_v(a):
        if not vearly:
            dma4(a, sMODE, t2, sV, 0, exact=m4)
        if vearly < 2:
            dma4(a, sM0V, vVG, sV, 0, exact=m4)
    vpos = opts.get("vpos", 0)
    if vpos == 0:
        load_v(a)
    a("s_waitcnt lgkmcnt(0)")
    temperature(a)
    normalise(a, R, hex(K_PAD[0]), vKW, mid=load_v if vpos == 1 and vearly < 2 else None)
    if not opts.get("bar2", 1):
        a("s_waitcnt vmcnt(0)")
    a("s_branch L_join")
    a.label("L_two")
    a(f"""v_mov_b32 v{RQ+14}, 0
    v_add_u32 v{t2}, {QB}, v{vRR}
    v_add_u32 v{t3}, {QB}, v{vKW}""")
    stamp(a, opts, "setup")
    a("s_waitcnt vmcnt(4)")
    stamp(a, opts, "kdata")
    read_rows(a, R, vRR)
    a("s_waitcnt lgkmcnt(0)")

    def scale_setup(a):
        temperature(a)
        qa, qb = Q_PAD[opts.get("M", 1536)]
        a(f"""s_cmp_eq_u32 s{sSLOW}, 1
        s_cselect_b32 s{sD}, 0, {hex(qa)}
        s_cselect_b32 s{sA}, 0, {hex(qb)}
        s_cselect_b64 vcc, -1, 0
        v_mov_b32 v{t4}, {hex(LOG2E)}
        v_mul_f32 v{t4}, s{sT}, v{t4}
        v_mov_b32 v{RQ+15}, s{sA}
        v_cndmask_b32 v{t4}, v{t4}, 1.0, vcc""")

    def second_rows(a):
        stamp(a, opts, "mid")
        a("s_waitcnt vmcnt(0)")
        stamp(a, opts, "qdata")
        read_rows(a, RQ, t2)
    if opts.get("qlate", 1):
        normalise(a, R, hex(K_PAD[0]), vKW, mid=scale_setup)
        second_rows(a)
        a("s_waitcnt lgkmcnt(0)")
    else:
        normalise(a, R, hex(K_PAD[0]), vKW, mid=scale_setup, mid2=second_rows)
        a("s_waitcnt lgkmcnt(4)")
    stamp(a, opts, "n0")
    normalise(a, RQ, f"s{sD}", t3, scale=t4, st=lambda n: stamp(a, opts, n))
    stamp(a, opts, "n5")
    a.label("L_join")
    stamp(a, opts, "lump2")
    a(f"s_mov_b32 s{sPAR}, {PAR}")
    a(f"""v_lshl_add_u32 v{vKS}, v{vL}, 4, s{sM0K}
    s_and_b32 s{sA}, s{sW}, 3
    s_lshl_b32 s{sA}, s{sA}, 12
    s_add_u32 s{sA}, s{sA}, {QB}
    v_lshl_add_u32 v{t0}, v{vL}, 4, s{sA}
    s_mov_b32 s{sMODE}, 0
    s_mov_b32 s{sRAW}, 0
    s_mov_b32 s{sI}, 0
    s_waitcnt lgkmcnt(0)""")
    if opts.get("obias"):
        import struct
        bits = struct.unpack("<I", struct.pack("<f", -1.5 * 2.0 ** (opts["obias"] - 48)))[0]
        for i in range(32):
            a(f"v_mov_b32 v{O[0] + i}, {hex(bits)}")
    stamp(a, opts, "prebar")
    a("s_barrier")
    a(rdK(0, 0))
    a(f"ds_read_b128 {vr(QF[0][0], 4)}, v{t0}")
    a(f"ds_read_b128 {vr(QF[1][0], 4)}, v{t0} offset:2048")
    a(rdK(1, 0))
    a(f"ds_read_b128 {vr(QF[0][1], 4)}, v{t0} offset:1024")
    a(f"ds_read_b128 {vr(QF[1][1], 4)}, v{t0} offset:3072")
    a(f"s_cmp_eq_u32 s{sSLOW}, 1")
    a("s_cbranch_scc1 L_slow")
    if opts.get("bar2", 1):
        a("s_waitcnt lgkmcnt(4)")
        a(qk(0, 0, 0))
        a("s_waitcnt lgkmcnt(1)")
        a(qk(0, 1, 0))
        a("s_waitcnt lgkmcnt(0)")
        a(qk(1, 0, 0))
        a(rdK(0, 1))
        a(qk(1, 1, 0))
        a(rdK(1, 1))
        a("s_waitcnt vmcnt(0)")
        a("s_barrier")
        a(rdV(0, 0, 0)); a(rdV(0, 1, 0)); a(rdV(1, 0, 0)); a(rdV(1, 1, 0))
        a(rdV(0, 0, 1))
    else:
        a(rdV(0, 0, 0)); a(rdV(0, 1, 0)); a(rdV(1, 0, 0)); a(rdV(1, 1, 0))
        a("s_waitcnt lgkmcnt(8)")
        a(qk(0, 0, 0))
        a("s_waitcnt lgkmcnt(5)")
        a(qk(0, 1, 0))
        a("s_waitcnt lgkmcnt(4)")
        a(qk(1, 0, 0))
        a(rdK(0, 1))
        a(qk(1, 1, 0))
        a(rdK(1, 1)); a(rdV(0, 0, 1))
        a("s_nop 6")
    stamp(a, opts, "loop")


PRIO_POINTS = [[(4, 4), (5, 4), (6, 0)], [(4, 0), (5, 0), (5, 7)], [(3, 7), (5, 0), (6, 0)], [(5, 0), (5, 6), (6, 0)],
               [(1, 7), (3, 7), (5, 7)]]


def dma1(p, vaddr, srd, soff, flags=""):
    return f"buffer_load_dwordx4 v{vaddr}, s[{srd}:{srd+3}], s{soff} offen offset:{1024 * p}{flags} lds"


def iteration(a, opts, kind):
    poll_at = opts.get("poll", 3)
    kdma_at = opts.get("kdma", 4)
    lump0_at = opts.get("lump0", 4)
    lump_at = opts.get("lump", 5)
    t0, t1 = vT[2], vT[3]
    sl = {j: {} for j in range(8)}

    def put(j, g, ins):
        sl[j].setdefault(g, []).append(ins)

    groups = {"first": [("K", 0), ("V", 2)], "hook": [("V", 0)], "lean": [("V", 0), ("G", 2)]}[kind]
    for what, j0 in groups:
        put(j0, 0, f"s_xor_b32 m0, s{sM0V if what == 'V' else sM0K}, s{sPAR}")
        for p in range(4):
            ins = {"K": dma1(p, vVG, sK, sVOFF), "V": dma1(p, vVG, sV, sVOFF), "G": dma1(p, vKS, sX, sKOFF, " sc1")}[what]
            put(j0 + (p >> 1), (4, 6)[p & 1], ins)
    for j in range(8):
        put(j, 1, "s_waitcnt lgkmcnt(3)")
    for lvl, (j, g) in zip((2, 1, 0), PRIO_POINTS[opts.get("pp", 1)]):
        put(j, g, f"s_setprio {lvl}")
    put(6, 4, f"s_add_u32 s{sKOFF}, s{sKOFF}, 32768")
    put(6, 6, f"s_add_u32 s{sVOFF}, s{sVOFF}, {CHB}")
    put(6, 6, f"s_xor_b32 s{sPAR}, s{sPAR}, {PAR}")
    put(7, 0, f"s_cmp_eq_u32 s{sKOFF}, {8 * 32768}")
    put(7, 4, f"s_cselect_b32 s{sKOFF}, 32768, s{sKOFF}")
    put(7, 6, f"s_cselect_b32 s{sVOFF}, {CHB}, s{sVOFF}")
    if kind == "lean" and opts.get("nojunk", 1):
        put(5, 4, f"s_cmp_eq_u32 s{sI}, 6")
        put(5, 6, f"s_cselect_b32 s{sA}, 0x40000000, 0")
        put(7, 6, f"s_or_b32 s{sKOFF}, s{sKOFF}, s{sA}")
        put(7, 7, f"s_or_b32 s{sVOFF}, s{sVOFF}, s{sA}")

    def sync(a):
        a("s_waitcnt vmcnt(0) lgkmcnt(0)")
        a("s_barrier")
        a("s_setprio 3")
        a(f"v_xor_b32 v{vAK}, {PAR}, v{vAK}")
        a(f"v_xor_b32 v{vAV}, v{vDV}, v{vAV}")

    for j in range(8):
        step(a, j, sl[j], sync if j == 6 else None)
        stamp_it(a, opts, f"e{j}", kind)
        if kind == "first":
            if j == lump0_at:
                a("s_waitcnt vmcnt(4)")
                lump(a, publish=True)
            if j == 6:
                a(f"""s_and_b32 s{sA}, s{sW}, 3
                s_cselect_b32 s{sA}, 0, s{sPUB}
                s_cmp_eq_u32 s{sA}, 1
                s_cbranch_scc0 L_signalled
                s_and_b32 s{sA}, s{sC}, 14
                s_lshl_b32 s{sA}, 1, s{sA}
                v_mov_b32 v{t1}, s{sA}
                v_mov_b32 v{t0}, 0
                s_lshl_b32 s{sA}, s{sH}, 4
                s_mov_b64 exec, 1
                buffer_atomic_add v{t1}, v{t0}, s[{sG}:{sG+3}], s{sA} offen sc1
                s_mov_b64 exec, -1""")
                a.label("L_signalled")
        if kind == "hook":
            if j == poll_at:
                a(f"""s_cmp_eq_u32 s{sW}, 0
                s_cbranch_scc0 L_polled
                s_mov_b32 m0, {FLAG}
                s_lshl_b32 s{sA}, s{sH}, 4
                v_mov_b32 v{t0}, 0
                s_mov_b64 exec, 1
                buffer_load_dword v{t0}, s[{sG}:{sG+3}], s{sA} offen sc1 lds
                s_mov_b64 exec, -1""")
                a.label("L_polled")
            if j == kdma_at:
                a(f"""v_mov_b32 v{t0}, {FLAG}
                ds_read_b32 v{t0}, v{t0}
                s_xor_b32 m0, s{sM0K}, s{sPAR}
                s_lshr_b32 s{sB}, s{sKOFF}, 14
                s_add_u32 s{sB}, s{sB}, 1
                s_waitcnt lgkmcnt(0)
                v_readfirstlane_b32 s{sA}, v{t0}
                s_cmp_eq_u32 s{sA}, {hex(0x7fffffff if opts.get("x_self") else all_ready(opts))}
                s_cselect_b32 s{sMODE}, 1, 0
                s_bitcmp1_b32 s{sA}, {0 if opts.get("x_self") else "s%d" % sB}
                s_cbranch_scc0 L_raw""")
                for p in range(4):
                    a(dma1(p, vKS, sX, sKOFF, " sc1"))
                a.label("L_kdone")
            if j == lump_at:
                a(f"s_cmp_eq_u32 s{sRAW}, 1")
                a("s_cbranch_scc1 L_lump")
                a.label("L_lumped")
        stamp_it(a, opts, f"h{j}", kind)
    if opts.get("clk"):
        clock_sample(a, f"s{sI}")


def clock_sample(a, slot):
    a(f"""s_memtime s[60:61]
    s_memrealtime s[62:63]
    s_lshl_b32 s64, s2, 3
    s_add_u32 s64, s64, s{sW}
    s_lshl_b32 s64, s64, 7
    s_lshl_b32 s65, {slot}, 3
    s_add_u32 s64, s64, s65
    s_add_u32 s64, s64, 0x1000000
    s_mov_b32 s68, s{sWS}
    s_mov_b32 s69, s{sWS+1}
    s_mov_b32 s70, 0x2000000
    s_mov_b32 s71, 0x20000
    s_waitcnt lgkmcnt(0)
    v_mov_b32 v190, s60
    v_mov_b32 v191, s62
    v_mov_b32 v189, 0
    buffer_store_dwordx2 v[190:191], v189, s[68:71], s64 offen""")


def main_loop(a, opts):
    if opts.get("clk"):
        clock_sample(a, "8")
        a("""s_getreg_b32 s60, hwreg(HW_REG_XCC_ID)
        s_add_u32 s64, s64, 8
        v_mov_b32 v190, s60
        buffer_store_dwordx2 v[190:191], v189, s[68:71], s64 offen""")
    a("s_setprio 3")
    iteration(a, opts, "first")
    a(f"s_mov_b32 s{sI}, 1")
    a.label("L_hook")
    iteration(a, opts, "hook")
    a(f"""s_add_u32 s{sI}, s{sI}, 1
    s_cmp_eq_u32 s{sI}, 8
    s_cbranch_scc1 L_tail
    s_cmp_eq_u32 s{sMODE}, 0
    s_cbranch_scc1 L_hook""")
    a.raw(".p2align 6")
    a.label("L_lean")
    iteration(a, opts, "lean")
    a(f"""s_add_u32 s{sI}, s{sI}, 1
    s_cmp_lt_u32 s{sI}, 8
    s_cbranch_scc1 L_lean""")
    a.label("L_tail")
    a(pv(0, 1, 7))
    a(pv(1, 1, 7))


def lump(a, publish):
    t0, t1 = vT[2], vT[3]
    a(f"v_add_u32 v{t0}, s{sPAR}, v{vRR}")
    a(f"v_add_u32 v{t1}, s{sPAR}, v{vKW}")
    read_rows(a, R, t0)
    a("s_waitcnt lgkmcnt(0)")
    normalise(a, R, hex(K_PAD[0]), t1)
    if publish:
        a(f"s_cmp_eq_u32 s{sPUB}, 1")
        a("s_cbranch_scc0 L_published")
        for p in range(4):
            a(f"buffer_store_dwordx4 {vr(R + 4 * p, 4)}, v{vKW}, s[{sX}:{sX+3}], s{sKOFF} offen offset:{piece_off(p)} sc1")
        a.label("L_published")


def side_blocks(a, opts):
    a.label("L_raw")
    a(f"s_mov_b32 s{sRAW}, 1")
    for p in range(4):
        a(dma1(p, vVG, sK, sVOFF))
    a("s_branch L_kdone")
    a.label("L_lump")
    a(f"s_mov_b32 s{sRAW}, 0")
    a("s_waitcnt vmcnt(0)")
    lump(a, publish=False)
    a("s_branch L_lumped")


def finish_tile(a, src, dst, l1, l0):
    a(f"""v_mov_b32 v{l0}, v{src + 12}
    v_mov_b32 v{l1}, v{src + 12}
    s_nop 1
    v_permlane32_swap_b32 v{l0}, v{l1}
    s_nop 1
    v_rcp_f32 v{l1}, v{l1}
    s_nop 0""")
    for i in range(8):
        a(f"v_pk_mul_f32 {vr(dst + 2 * i, 2)}, {vr(src + 2 * i, 2)}, {vr(l1, 2)} op_sel_hi:[1,0]")
        if i >= 1:
            a(f"v_cvt_pk_bf16_f32 v{dst + i - 1}, v{dst + 2 * i - 2}, v{dst + 2 * i - 1}")
    a(f"v_cvt_pk_bf16_f32 v{dst + 7}, v{dst + 14}, v{dst + 15}")


def epilogue(a, opts):
    asym = opts.get("asym", 0)
    a.label("L_epi")
    stamp(a, opts, "done")
    t0, t1, t2 = vT[0:3]
    l0, l1 = vT[4], vT[3]
    a(f"""s_lshl_b32 s{sB}, s{sW}, {13 if asym else 12}
    s_and_b32 s{sB}, s{sB}, 0x7fff
    v_lshl_add_u32 v{t0}, v{vL}, 4, s{sB}
    v_xor_b32 v{t1}, 0x4000, v{t0}
    v_and_b32 v{t2}, 31, v0
    v_mul_u32_u24 v{t2}, 56, v{t2}
    v_bfe_u32 v{vT[3]}, v0, 5, 1
    v_lshl_add_u32 v{t2}, v{vT[3]}, 3, v{t2}
    s_add_u32 s{sB}, s{sB}, {VB[0]}
    v_add_u32 v{t2}, s{sB}, v{t2}
    s_and_b32 s{sA}, s{sW}, 3
    s_lshl_b32 s{sA}, s{sA}, 1""")
    if not asym:
        a(f"s_add_u32 s{sA}, s{sA}, s{sKS}")
    a(f"""s_mul_i32 s{sA}, s{sA}, {32 * 56}
    s_waitcnt lgkmcnt(0)
    s_cmp_eq_u32 s{sKS}, 0
    s_cbranch_scc1 L_epi0""")
    tiles = []
    if asym:
        a("s_barrier")
        for x in range(2):
            for p in (3, 0, 1, 2):
                a(f"ds_read_b128 {vr(S[x] + 4 * p, 4)}, v{t0} offset:{4096 * x + 1024 * p}")
        for x in range(2):
            for n, p in enumerate((3, 0, 1, 2)):
                a(f"s_waitcnt lgkmcnt({7 - 4 * x - n})")
                for i in (0, 2):
                    a(f"v_pk_add_f32 {vr(S[x] + 4 * p + i, 2)}, {vr(S[x] + 4 * p + i, 2)}, {vr(O[x] + 4 * p + i, 2)}")
            finish_tile(a, S[x], D[x], l1, l0)
        tiles = [0, 1]
        own = O
    else:
        for x in (1, 0):
            if x == 0:
                a.label("L_epi0")
                a("s_nop 3")
            keep, send = O[x], O[1 - x]
            for p in range(4):
                a(f"ds_write_b128 v{t0}, {vr(send + 4 * p, 4)} offset:{1024 * p}")
            a("s_waitcnt lgkmcnt(0)")
            stamp(a, opts, "sent")
            a("s_barrier")
            for p in (3, 0, 1, 2):
                a(f"ds_read_b128 {vr(S[1] + 4 * p, 4)}, v{t1} offset:{1024 * p}")

            def add(p):
                for i in (0, 2):
                    a(f"v_pk_add_f32 {vr(S[0] + 4 * p + i, 2)}, {vr(S[1] + 4 * p + i, 2)}, {vr(keep + 4 * p + i, 2)}")
            a("s_waitcnt lgkmcnt(3)")
            add(3)
            a(f"v_mov_b32 v{l0}, v{S[0] + 12}")
            a(f"v_mov_b32 v{l1}, v{S[0] + 12}")
            a("s_waitcnt lgkmcnt(2)")
            add(0)
            a(f"v_permlane32_swap_b32 v{l0}, v{l1}")
            a("s_waitcnt lgkmcnt(1)")
            add(1)
            a(f"v_rcp_f32 v{l1}, v{l1}")
            a("s_waitcnt lgkmcnt(0)")
            add(2)
            if x == 1:
                a("s_branch L_epi1")
        a.label("L_epi1")
        for g in range(4):
            for i in (0, 2):
                a(f"v_pk_mul_f32 {vr(D[0] + 4 * g + i, 2)}, {vr(S[0] + 4 * g + i, 2)}, {vr(l1, 2)} op_sel_hi:[1,0]")
            if g:
                a(f"ds_write_b64 v{t2}, {vr(D[1] + 2 * g - 2, 2)} offset:{16 * g - 16}")
            for i in (0, 1):
                a(f"v_cvt_pk_bf16_f32 v{D[1] + 2 * g + i}, v{D[0] + 4 * g + 2 * i}, v{D[0] + 4 * g + 2 * i + 1}")
        tiles = [0]
        own = [S[1]]
    for x in tiles:
        for g in range(3 if asym else 0):
            a(f"ds_write_b64 v{t2}, {vr(D[x] + 2 * g, 2)} offset:{1792 * x + 16 * g}")
    a("s_mov_b32 exec_hi, 0")
    for x in tiles:
        a(f"ds_write_b64 v{t2}, {vr(D[x if asym else 1] + 6, 2)} offset:{1792 * x + 48}")
    a("s_mov_b32 exec_hi, -1")
    a(f"v_lshlrev_b32 v{t1}, 4, v{vL}")
    n = 2 * len(tiles)
    for p in range(n):
        a(f"ds_read_b128 {vr(KF[0] + 4 * p, 4)}, v{t0} offset:{VB[0] + 1024 * p}")
    for p in range(n):
        if p == n - 1:
            a("s_mov_b32 exec_hi, 0" if asym else "s_mov_b32 exec_hi, 0xffff")
        a(f"s_waitcnt lgkmcnt({n - 1 - p})")
        a(f"buffer_store_dwordx4 {vr(KF[0] + 4 * p, 4)}, v{t1}, s[{sO}:{sO+3}], s{sA} offen offset:{1024 * p}")
    a("s_mov_b32 exec_hi, -1")
    for x in tiles:
        for i in range(16):
            a(f"v_max_f32 v{S[x] + i}, abs(v{S[x] + i}), abs(v{own[x] + i})")
    vals = [S[x] + i for x in tiles for i in range(13)]
    a(f"v_min3_f32 v{l0}, v{vals[0]}, v{vals[1]}, v{vals[2]}")
    rest = vals[3:]
    while rest:
        b, c = rest[0], rest[1] if len(rest) > 1 else rest[0]
        a(f"v_min3_f32 v{l0}, v{l0}, v{b}, v{c}")
        rest = rest[2:]
    a("s_mov_b32 exec_hi, 0")
    for x in tiles:
        a(f"v_min3_f32 v{l0}, v{l0}, v{S[x] + 13}, v{S[x] + 14}")
        a(f"v_min_f32 v{l0}, v{S[x] + 15}, v{l0}")
    a(f"""s_mov_b32 exec_hi, -1
    v_cmp_gt_f32 vcc, {hex(O_MIN)}, v{l0}
    v_mov_b32 v{t0}, {FLAG + 4}
    v_mov_b32 v{t1}, 1
    s_cbranch_vccz L_final
    ds_write_b32 v{t0}, v{t1}
    s_waitcnt lgkmcnt(0)""")
    if asym:
        a("s_branch L_final")
        a.label("L_epi0")
        a("s_nop 3")
        for x in range(2):
            for p in range(4):
                a(f"ds_write_b128 v{t0}, {vr(O[x] + 4 * p, 4)} offset:{4096 * x + 1024 * p}")
        a(f"v_mov_b32 v{t0}, {FLAG + 4}")
        a("s_waitcnt lgkmcnt(0)")
        stamp(a, opts, "sent")
        a("s_barrier")
    a.label("L_final")
    a(f"""s_barrier
    ds_read_b32 v{t0}, v{t0}
    s_waitcnt lgkmcnt(0)
    v_readfirstlane_b32 s{sA}, v{t0}
    s_cmp_gt_u32 s{sA}, s{sSLOW}
    s_cbranch_scc1 L_redo""")
    if opts.get("stamps"):
        a("s_mov_b64 exec, -1")
        stamp(a, opts, "stored")
        a("s_waitcnt vmcnt(0)")
        stamp(a, opts, "end")
        dbg = opts["stamps"] == 2
        a(f"""s_memrealtime s[76:77]
        s_load_dwordx2 s[4:5], s[0:1], {40 if dbg else 48}
        s_waitcnt lgkmcnt(0)
        s_mov_b32 s6, {64 if dbg else 0x2000000}
        s_mov_b32 s7, 0x20000
        s_lshl_b32 s8, s2, 3
        s_add_u32 s8, s8, s{sW}""")
        if dbg:
            a("""s_cmp_eq_u32 s8, 2047
            s_cselect_b32 s9, 1, 2
            s_cmp_eq_u32 s8, 0
            s_cselect_b32 s8, 0, s9""")
        a("s_lshl_b32 s8, s8, 5")
        if not dbg:
            a("s_add_u32 s8, s8, 0x1000000")
        a("""v_mov_b32 v0, 0
        v_mov_b32 v1, s74
        buffer_store_dword v1, v0, s[4:7], s8 offen""")
        for n in range(1, 7):
            if opts["slots"][n] == "mode":
                a(f"s_mov_b32 s9, s{sP}")
            else:
                a(f"s_sub_u32 s9, s{sTS + 2 * n}, s{sTS}")
            a("v_mov_b32 v1, s9")
            a(f"buffer_store_dword v1, v0, s[4:7], s8 offen offset:{4 * n}")
        a("s_sub_u32 s9, s76, s74")
        a("v_mov_b32 v1, s9")
        a("buffer_store_dword v1, v0, s[4:7], s8 offen offset:28")
    if opts.get("hold"):
        if opts.get("holdraw"):
            a(f"""s_mul_i32 s8, s{sP}, 400
            s_add_u32 s74, s74, s8""")
        if opts.get("span"):
            a("""s_waitcnt lgkmcnt(0)
            s_sub_u32 s8, s60, s62
            s_lshl_b32 s8, s8, 2
            s_add_u32 s74, s74, s8""")
        if opts.get("holdk"):
            a(f"""s_waitcnt lgkmcnt(0)
            s_sub_u32 s8, s60, s74
            s_lshl_b32 s8, s8, {0 if opts["holdk"] == 2 else 2}
            s_add_u32 s74, s74, s8""")
        a.label("L_hold")
        a(f"""s_sleep 4
        s_memrealtime s[76:77]
        s_waitcnt lgkmcnt(0)
        s_sub_u32 s9, s76, s74
        s_cmp_lt_i32 s9, {opts["hold"]}
        s_cbranch_scc1 L_hold""")
    a.label("L_end")
    a("s_endpgm")


def slow_path(a):
    x0 = vT[2]
    a.label("L_redo")
    a(f"""s_mov_b32 s{sFORCE}, 1
    s_waitcnt vmcnt(0)
    s_barrier
    s_branch L_start""")
    a.label("L_slow")
    a(f"""v_mov_b32 v{MXS[0]}, 0xff800000
    v_mov_b32 v{MXS[1]}, 0xff800000
    s_mov_b32 s{sP}, 0""")
    a.label("L_slow_pass")
    a(f"s_mov_b32 s{sVOFF}, 0")
    a.label("L_slow_chunk")
    a("s_waitcnt vmcnt(0) lgkmcnt(0)")
    a("s_barrier")
    dma4(a, sM0K, vVG, sK, f"s{sVOFF}")
    dma4(a, sM0V, vVG, sV, f"s{sVOFF}")
    a("s_waitcnt vmcnt(0)")
    read_rows(a, R, vRR)
    a("s_waitcnt lgkmcnt(0)")
    normalise(a, R, hex(K_PAD[0]), vKW)
    a("s_waitcnt lgkmcnt(0)")
    a("s_barrier")
    for j in range(8):
        a(f"ds_read_b128 {vr(KF[0], 4)}, v{vAK} offset:{j * 2048}")
        a(f"ds_read_b128 {vr(KF[0] + 4, 4)}, v{vAK} offset:{j * 2048 + 1024}")
        for which in range(2):
            for part in range(2):
                base = (V1, V2)[which][0] + 2 * part
                a(f"ds_read_b64_tr_b16 {vr(base, 2)}, v{vAV} offset:{j * 1792 + 896 * which + 224 * part}")
        a("s_waitcnt lgkmcnt(0)")
        a(f"s_call_b64 s[{sLINK}:{sLINK+1}], L_slow_tile")
    a(f"""s_add_u32 s{sVOFF}, s{sVOFF}, {CHB}
    s_cmp_lt_u32 s{sVOFF}, {HEADB}
    s_cbranch_scc1 L_slow_chunk
    s_cmp_eq_u32 s{sP}, 1
    s_cbranch_scc1 L_slow_done""")
    for x in range(2):
        a(f"""v_mov_b32 v{x0}, v{MXS[x]}
        s_nop 1
        v_permlane32_swap_b32 v{x0}, v{MXS[x]}
        s_nop 1
        v_max_f32 v{MXS[x]}, v{x0}, v{MXS[x]}""")
    a(f"""s_barrier
    v_lshlrev_b32 v{x0}, 3, v0
    ds_write_b64 v{x0}, {vr(MXS[0], 2)}
    s_waitcnt lgkmcnt(0)
    s_barrier
    v_xor_b32 v{x0}, 2048, v{x0}
    ds_read_b64 {vr(S[0], 2)}, v{x0}
    s_waitcnt lgkmcnt(0)
    v_max_f32 v{MXS[0]}, v{MXS[0]}, v{S[0]}
    v_max_f32 v{MXS[1]}, v{MXS[1]}, v{S[0] + 1}
    s_mov_b32 s{sP}, 1
    s_branch L_slow_pass""")
    a.label("L_slow_done")
    a("s_barrier")
    a("s_nop 7")
    a("s_branch L_epi")
    a.label("L_slow_tile")
    for x in range(2):
        a(qk(x, 0, 0)); a(qk(x, 1, 0))
    a("s_nop 15")
    for x in range(2):
        for i in range(16):
            a(f"v_mul_f32 v{S[x] + i}, s{sT}, v{S[x] + i}")
    a(f"s_cmp_eq_u32 s{sP}, 1")
    a("s_cbranch_scc1 L_slow_exp")
    for x in range(2):
        for i in range(16):
            a(f"v_max_f32 v{MXS[x]}, v{MXS[x]}, v{S[x] + i}")
    a(f"s_setpc_b64 s[{sLINK}:{sLINK+1}]")
    a.label("L_slow_exp")
    for x in range(2):
        for i in range(16):
            a(f"v_sub_f32 v{S[x] + i}, v{S[x] + i}, v{MXS[x]}")
            a(f"v_mul_f32 v{S[x] + i}, {hex(LOG2E)}, v{S[x] + i}")
            a(f"v_exp_f32 v{S[x] + i}, v{S[x] + i}")
    a("s_nop 1")
    for x in range(2):
        a(pv(x, 0, 0)); a(pv(x, 1, 0))
    a(f"s_setpc_b64 s[{sLINK}:{sLINK+1}]")


SLOTS = {0: ["start", "setup", "prebar", "loop", "mode", "done", "end"],
         1: ["start", "karg", "issued", "setup", "kdata", "prebar", "end"],
         2: ["start", "loop", "done", "sent", "stored", "mode", "end"],
         3: ["start", "kdata", "mid", "qdata", "lump2", "prebar", "end"],
         4: ["start", "loop", "e1", "h1", "e3", "h3", "end"],
         5: ["start", "e4", "h4", "e5", "h5", "e6", "end"],
         6: ["start", "e0", "e2", "e4", "e5", "e6", "e7"],
         7: ["start", "loop", "e0", "h0", "e4", "h4", "e6"],
         8: ["start", "e5", "e6", "h6", "e7", "done", "end"],
         9: ["start", "e1", "h1", "e2", "h2", "e3", "h3"],
         10: ["start", "qdata", "n0", "n1", "n2", "n3", "n4"],
         11: ["start", "n3", "n4", "n5", "prebar", "loop", "end"]}


def build(opts):
    opts["slots"] = SLOTS[opts.get("pro", 0)]
    a = Asm()
    name = "standalone__qk_norm__prompt_kernel"
    a.raw(HEADER + f"; @launch grid=(256,1,1) block=(512,1,1) lds={LDS_BYTES}")
    a.raw('.amdgcn_target "amdgcn-amd-amdhsa--gfx950"\n.text')
    if opts.get("align", 0):
        a.raw(".p2align 12\n.fill 832, 4, 0xbf800000")
    a.raw(f".globl {name}\n.p2align 8\n.type {name},@function\n{name}:")
    prologue(a, opts)
    main_loop(a, opts)
    epilogue(a, opts)
    side_blocks(a, opts)
    slow_path(a)
    txt = a.text()
    if opts.get("stamps") or opts.get("holdraw"):
        txt = txt.replace(f"    s_mov_b32 s{sMODE}, 0\n", f"    s_mov_b32 s{sMODE}, 0\n    s_mov_b32 s{sP}, 0\n")
        txt = txt.replace(f"    s_mov_b32 s{sRAW}, 1\n", f"    s_mov_b32 s{sRAW}, 1\n    s_add_u32 s{sP}, s{sP}, 1\n")
    txt += f""".section .rodata,"a"
.p2align 6
.amdhsa_kernel {name}
  .amdhsa_next_free_vgpr {NVGPR}
  .amdhsa_next_free_sgpr {NSGPR}
  .amdhsa_accum_offset {NVGPR}
  .amdhsa_group_segment_fixed_size 0
  .amdhsa_kernarg_size 56
  .amdhsa_user_sgpr_count 2
  .amdhsa_user_sgpr_kernarg_segment_ptr 1
  .amdhsa_system_sgpr_workgroup_id_x 1
  .amdhsa_float_denorm_mode_32 3
.end_amdhsa_kernel
"""
    return txt


if __name__ == "__main__":
    opts = {}
    out = "standalone__qk_norm__prompt.s"
    for arg in sys.argv[1:]:
        k, _, v = arg.partition("=")
        if k == "out":
            out = v
        else:
            opts[k] = int(v)
    open(out, "w").write(build(opts))
```

```python
import sys

HEADER = """; Kernarg layout for this problem (56 bytes, ptrs only, base s[0:1]):
;   offset   0: d_in[0] q  shape=(1, 16, 4096, 28) dtype=bfloat16 strides=(3670016, 229376, 56, 2) contiguous=True
;   offset   8: d_in[1] k  shape=(1, 16, 4096, 28) dtype=bfloat16 strides=(3670016, 229376, 56, 2) contiguous=True
;   offset  16: d_in[2] v  shape=(1, 16, 4096, 28) dtype=bfloat16 strides=(3670016, 229376, 56, 2) contiguous=True
;   offset  32: d_out     shape=(1, 16, 4096, 28) dtype=bfloat16 (2 bytes/elem)
"""

DOC = """;
; Softmax shift: |logit * log2 e| < 23.2 when |t| <= 16, so the spare k-slots subtract the constant 48.5
;   (as -1536 - 48.5 in the first MFMA and +1536 in the second).  Larger or non-finite t, or unnormalised
;   outputs near the fp32 underflow range, take L_slow: two passes with the true row maximum.
; Normalised K: workgroup c normalises chunk 0 and chunk max(c / 2, 1) itself, stores its 256-key half of the
; LDS: K fragments / raw V, two buffer pairs (0, 0x10000); constant spots; query fragments; two flag words.
"""

HEADB = 229376
CHB = 28672
WSH = 262144
PAR = 0x10000
KB = [0, PAR]
VB = [32768, PAR + 32768]
ONES = 2 * PAR
QB = ONES + 14336
FLAG = QB + 16384
LDS_BYTES = FLAG + 256
T_LIMIT = 0x41800000
K_PAD = (0x3f803f80, 0x00003f80)
Q_PAD = {0: (0xc2420000, 0), 256: (0xc242c380, 0x4380), 1536: (0xc242c4c0, 0x44c0), 3072: (0xc242c540, 0x4540),
         6144: (0xc242c5c0, 0x45c0)}
O_MIN = 0x0c800000
LOG2E = 0x3fb8aa3b
EPS = 0x358637bd

sK, sV, sO, sX, sG = 16, 20, 24, 28, 32
sH, sC, sW, sT, sI, sVOFF, sM0V, sKS = 36, 37, 38, 39, 40, 41, 42, 43
sA, sB, sD = 44, 45, 46
sPAR, sM0K, sKOFF, sRAW, sMODE, sPUB, sSLOW = 47, 48, 49, 50, 51, 52, 53
sWS = 54
sP = 56
sFORCE = 57
sLINK = 58
sTS = 60
NSGPR = 80
vL, vKS, vVG, vKW, vAK, vAV, vDV, vIDX = 1, 2, 3, 4, 5, 6, 7, 8
vT = [9, 10, 11, 12, 13, 14, 15]
RQ = 16
QF = [[16 + 8 * t, 20 + 8 * t] for t in range(4)]
O = [48, 64, 80, 96]
SS = [[112, 128], [144, 160]]
KF, V1, V2 = 176, 184, 188
R = 192
D = [208, 224]
A1, A2 = 240, 244
MX = [248, 249]
vRR, vPOLL = 250, 251
MXS = [252, 253, 254, 255]
NVGPR = 256


def first_pub(opts):
    return 2


def all_ready(opts):
    return sum(2 << (2 * n) for n in range(first_pub(opts) // 2, 8))


class Asm:
    def __init__(self):
        self.l = []
    def __call__(self, s):
        for x in s.split("\n"):
            x = x.strip()
            self.l.append(x[1:] + ":" if x.startswith("@") else "    " + x)
    def label(self, n):
        self.l.append(n + ":")
    def note(self, s):
        for x in s.strip().split("\n"):
            self.l.append("    ; " + x.strip())
    def raw(self, s):
        self.l.append(s)
    def text(self):
        return "\n".join(self.l) + "\n"


def vr(a, n):
    return f"v[{a}:{a + n - 1}]"


def dma4(a, m0, vaddr, srd, soff, flags="", exact=False):
    a(f"s_mov_b32 m0, s{m0}")
    a("s_nop 0")
    for p in range(4):
        if exact and p == 3:
            a("s_mov_b32 exec_hi, 0")
        a(f"buffer_load_dwordx4 v{vaddr}, s[{srd}:{srd+3}], {soff} offen offset:{1024 * p}{flags} lds")
    if exact:
        a("s_mov_b32 exec_hi, -1")


def read_rows(a, r, vaddr):
    for i in range(3):
        a(f"ds_read2_b64 {vr(r + 4 * i, 4)}, v{vaddr} offset0:{2 * i} offset1:{2 * i + 1}")
    a(f"ds_read_b64 {vr(r + 12, 2)}, v{vaddr} offset:48")


def normalise(a, r, pad, dst, scale=None, mid=None, mid2=None, st=lambda n: None):
    nrm = vT[1]
    acc = MX[0]
    a(f"v_mfma_f32_32x32x16_bf16 {vr(D[0], 16)}, {vr(A1, 4)}, {vr(r, 4)}, 0")
    a(f"v_mfma_f32_32x32x16_bf16 {vr(D[0], 16)}, {vr(A2, 4)}, {vr(r + 4, 4)}, {vr(D[0], 16)}")
    a(f"v_mfma_f32_32x32x16_bf16 {vr(D[1], 16)}, {vr(A1, 4)}, {vr(r + 8, 4)}, 0")
    a(f"v_mfma_f32_32x32x16_bf16 {vr(D[1], 16)}, {vr(A2, 4)}, {vr(r + 12, 4)}, {vr(D[1], 16)}")
    if mid:
        mid(a)
    a(f"v_mov_b32 v{r + 7}, {pad}")
    a("s_nop 2" if mid else "s_nop 8")
    st("n1")
    for i in range(14):
        d = vr(D[0] + 2 * i, 2)
        if i == 0:
            a(f"v_pk_mul_f32 {vr(acc, 2)}, {d}, {d}")
        else:
            a(f"v_pk_fma_f32 {vr(acc, 2)}, {d}, {d}, {vr(acc, 2)}")
    a(f"v_add_f32 v{nrm}, v{acc}, v{acc + 1}")
    st("n2")
    a(f"v_sqrt_f32 v{nrm}, v{nrm}")
    a("s_nop 0")
    a(f"v_add_f32 v{nrm}, {hex(EPS)}, v{nrm}")
    a(f"v_rcp_f32 v{nrm}, v{nrm}")
    a("s_nop 0")
    if scale is not None:
        a(f"v_mul_f32 v{nrm}, v{scale}, v{nrm}")
    st("n3")
    if mid2:
        mid2(a)
    for i in range(14):
        d = D[0] + 2 * i
        a(f"v_pk_mul_f32 {vr(d, 2)}, {vr(d, 2)}, {vr(nrm, 2)} op_sel_hi:[1,0]")
        if i in (5, 8, 12):
            write_frag(a, r, dst, (5, 8, 12).index(i))
        if i >= 1:
            a(f"v_cvt_pk_bf16_f32 v{r + i - 1 + (i > 7)}, v{d - 2}, v{d - 1}")
    a(f"v_cvt_pk_bf16_f32 v{r + 14}, v{D[0] + 26}, v{D[0] + 27}")
    write_frag(a, r, dst, 3)


def piece_off(p):
    return (p >> 1) * 1024 + (p & 1) * 512


def write_frag(a, r, vaddr, p):
    a(f"ds_write_b128 v{vaddr}, {vr(r + 4 * p, 4)} offset:{piece_off(p)}")


def rdK(f, tile):
    return f"ds_read_b128 {vr(KF + 4 * f, 4)}, v{vAK} offset:{(tile % 4) * 2048 + 1024 * f}"


def rdV(which, part, tile):
    base = (V1, V2)[which] + 2 * part
    return f"ds_read_b64_tr_b16 {vr(base, 2)}, v{vAV} offset:{(tile % 4) * 1792 + 896 * which + 224 * part}"


def qk(p, x, f):
    s = SS[p][x]
    c = "0" if f == 0 else vr(s, 16)
    return f"v_mfma_f32_32x32x16_bf16 {vr(s, 16)}, {vr(KF + 4 * f, 4)}, {vr(QF[2 * p + x][f], 4)}, {c}"


def pv(p, x, which):
    return f"v_smfmac_f32_32x32x32_bf16 {vr(O[2 * p + x], 16)}, {vr((V1, V2)[which], 4)}, {vr(SS[p][x] + 8 * which, 8)}, v{vIDX}"


def step(a, n, slots, sync=None):
    j, p = n >> 1, n & 1
    e = [f"v_exp_f32 v{SS[p][x] + 8 * h + i}, v{SS[p][x] + 8 * h + i}" for h in range(2) for x in range(2) for i in range(8)]
    m = [pv(1 - p, 0, 1), pv(1 - p, 1, 1), qk(1 - p, 0, 0), qk(1 - p, 1, 0), qk(1 - p, 0, 1), qk(1 - p, 1, 1),
         pv(p, 0, 0), pv(p, 1, 0)]
    if p == 0:
        r = {0: [rdV(0, 1, j)], 1: [rdV(1, 0, j)], 2: [rdV(1, 1, j)], 3: [rdK(0, j + 1)],
             5: [rdK(1, j + 1), "s_waitcnt lgkmcnt(2)"]}
    else:
        r = {1: ["s_waitcnt lgkmcnt(0)"], 7: [rdV(0, 0, j + 1)]}
    pos = 0
    for g in range(8):
        for i in range(pos, 2 + 4 * g):
            a(e[i])
        pos = 2 + 4 * g
        a(m[g])
        if g == 3 and sync:
            sync(a)
        for ins in r.get(g, []) + slots.get(g, []):
            a(ins)
    for i in range(pos, 32):
        a(e[i])


HOLD_POINTS = [None, "loop", "done", "karg", "issued", "kdata", "lump2", "prebar", "setup", "qdata"]


def stamp(a, opts, name):
    if opts.get("holdk") and HOLD_POINTS[opts["holdk"]] == name:
        a("s_memrealtime s[60:61]")
    if opts.get("stamps") and name in opts["slots"]:
        n = opts["slots"].index(name)
        a(f"s_memtime s[{sTS + 2 * n}:{sTS + 2 * n + 1}]")


def stamp_it(a, opts, name, kind):
    if opts.get("span") and name in (f"e{opts['span']}", f"h{opts['span']}") and kind == "hook":
        a(f"s_cmp_eq_u32 s{sI}, 1")
        a(f"s_cbranch_scc0 L_sp_{name}")
        a("s_memrealtime s[62:63]" if name[0] == "e" else "s_memrealtime s[60:61]")
        a.label(f"L_sp_{name}")
    if opts.get("stamps") and name in opts["slots"]:
        a(f"s_cmp_eq_u32 s{sI}, {opts.get('it', 0)}")
        a(f"s_cbranch_scc0 L_st_{name}_{kind}")
        stamp(a, opts, name)
        a.label(f"L_st_{name}_{kind}")


def prologue(a, opts):
    t0, t1, t2, t3, t4 = vT[2:7]
    z = V2
    m4 = opts.get("m4", 0)
    touch = opts.get("touch", 1)
    a("s_cmp_ge_u32 s2, 256")
    a("s_cbranch_scc1 L_end")
    a(f"s_mov_b32 s{sFORCE}, 0")
    a.label("L_start")
    stamp(a, opts, "start")
    if opts.get("stamps") or opts.get("hold"):
        a("s_memrealtime s[74:75]")
    if opts.get("hold"):
        a("s_memrealtime s[60:61]")
    a("s_load_dwordx8 s[4:11], s[0:1], 0")
    a("s_load_dwordx4 s[12:15], s[0:1], 32")
    a(f"s_load_dwordx2 s[{sWS}:{sWS+1}], s[0:1], 48")
    a(f"""v_lshrrev_b32 v{t0}, 6, v0
    v_and_b32 v{vL}, 63, v0
    s_and_b32 s{sA}, s2, 7
    v_readfirstlane_b32 s{sW}, v{t0}
    s_lshl_b32 s{sA}, s{sA}, 1
    s_bfe_u32 s{sB}, s2, 0x10003
    s_add_u32 s{sH}, s{sA}, s{sB}
    s_lshr_b32 s{sC}, s2, 4""")
    if opts.get("x_perm"):
        a(f"s_lshr_b32 s{sH}, s2, 4")
        a(f"s_and_b32 s{sC}, s2, 15")
    if opts.get("pf", 1):
        a.note("""pull the kernel's code into L2 while the first loads are pending""")
        c0, c1 = D[0], D[0] + 2
        if opts.get("pfn", 64) < 256:
            a(f"s_cmp_ge_u32 s2, {opts.get('pfn', 64)}")
            a("s_cbranch_scc1 L_nopf")
        a(f"""s_cmp_eq_u32 s{sW}, 7
        s_cbranch_scc0 L_nopf
        s_getpc_b64 s[{sG}:{sG+1}]""")
        a.label("L_pc")
        a(f"""v_lshlrev_b32 v{t0}, 7, v{vL}
        v_mov_b32 v{c0 + 1}, s{sG+1}
        v_add_co_u32 v{c0}, vcc, s{sG}, v{t0}
        v_add_u32 v{t0}, 0x2000, v{t0}
        v_min_u32 v{t0}, L_raw-L_pc, v{t0}
        v_addc_co_u32 v{c0 + 1}, vcc, 0, v{c0 + 1}, vcc
        v_mov_b32 v{c1 + 1}, s{sG+1}
        v_add_co_u32 v{c1}, vcc, s{sG}, v{t0}
        global_load_dword v{vPOLL}, {vr(c0, 2)}, off
        s_nop 0
        v_addc_co_u32 v{c1 + 1}, vcc, 0, v{c1 + 1}, vcc
        global_load_dword v{vPOLL}, {vr(c1, 2)}, off""")
        a.label("L_nopf")
    a(f"""s_mul_i32 s{sA}, s{sH}, {HEADB}
    s_mul_i32 s{sD}, s{sC}, 14336
    s_add_u32 s{sB}, s{sD}, s{sA}
    s_lshr_b32 s{sKS}, s{sW}, 2
    s_mul_i32 s{sM0V}, s{sW}, 3584
    v_lshlrev_b32 v{vAK}, 4, v{vL}
    v_add_u32 v{vVG}, s{sM0V}, v{vAK}
    s_add_u32 s{sM0V}, s{sM0V}, {VB[0]}
    s_lshl_b32 s{sM0K}, s{sW}, 12
    s_mov_b32 s{sK+2}, {HEADB}
    s_mov_b32 s{sK+3}, 0x20000
    s_mov_b32 s{sX+2}, 14336
    s_mov_b32 s{sX+3}, 0x20000
    s_add_u32 s{sMODE}, s{sM0K}, {QB}
    s_lshr_b32 s{sD}, s{sH}, 1
    s_lshl_b32 s{sD}, s{sD}, 2""")

    def setup_a(a):
        a.note("""selection matrices of the bf16 -> fp32 unpacking MFMAs; row and fragment addresses""")
        a(f"""v_mov_b32 v{R+15}, {hex(K_PAD[1])}
        s_mov_b32 vcc_lo, 0xaaaaaaaa
        s_mov_b32 vcc_hi, 0xaaaaaaaa
        v_cndmask_b32 v{t1}, v{R+15}, 1.0, vcc""")
        for p in range(8):
            lo = 3 << (8 * (p >> 1) + 2 * (p & 1))
            a(f"s_mov_b32 vcc_lo, {hex(lo)}")
            a(f"s_mov_b32 vcc_hi, {hex(lo << 4)}")
            a(f"v_cndmask_b32 v{A1 + p}, 0, v{t1}, vcc")
        a(f"""v_mov_b32 v{R+14}, 0
        v_lshrrev_b32 v{t0}, 5, v0
        v_mul_u32_u24 v{t0}, 1536, v{t0}
        v_lshl_add_u32 v{vKW}, v0, 4, v{t0}
        v_mad_u32_u24 v{vRR}, v{vL}, 56, s{sM0K}""")

    if opts.get("prek", 1) == 1:
        setup_a(a)
    a("s_waitcnt lgkmcnt(0)")
    stamp(a, opts, "karg")
    a(f"""s_add_u32 s{sK}, s6, s{sA}
    s_addc_u32 s{sK+1}, s7, 0""")
    dma4(a, sM0K, vVG, sK, 0, exact=m4)
    if opts.get("prek", 1) == 2:
        setup_a(a)
    a(f"""s_cmp_eq_u32 s{sKS}, 0
    s_cbranch_scc0 L_noq
    s_add_u32 s{sX}, s4, s{sB}
    s_addc_u32 s{sX+1}, s5, 0""")
    dma4(a, sMODE, vVG, sX, 0, exact=m4)
    a.label("L_noq")
    a(f"""s_add_u32 s{sV}, s8, s{sA}
    s_addc_u32 s{sV+1}, s9, 0
    s_mov_b32 s{sV+2}, {HEADB}
    s_mov_b32 s{sV+3}, 0x20000""")
    if touch:
        a.note("""each of the head's 16 workgroups pulls a different 1/16 of the first V chunk into L2""")
        a(f"""s_cmp_eq_u32 s{sW}, 4
        s_cbranch_scc0 L_notouch
        s_mul_i32 s{sP}, s{sC}, 1792
        v_lshlrev_b32 v{t0}, 7, v{vL}
        s_mov_b64 exec, 0x3fff
        buffer_load_dword v{vPOLL}, v{t0}, s[{sV}:{sV+3}], s{sP} offen
        s_mov_b64 exec, -1""")
        a.label("L_notouch")
    a(f"s_load_dword s{sT}, s[10:11], s{sD}")
    stamp(a, opts, "issued")
    if not opts.get("prek", 1):
        setup_a(a)
    a(f"""s_add_u32 s{sO}, s12, s{sB}
    s_addc_u32 s{sO+1}, s13, 0
    s_mov_b32 s{sO+2}, 14336
    s_mov_b32 s{sO+3}, 0x20000
    s_mov_b32 s{sG}, s14
    s_mov_b32 s{sG+1}, s15
    s_mov_b32 s{sG+2}, 256
    s_mov_b32 s{sG+3}, 0x20000
    s_mul_i32 s{sA}, s{sH}, {WSH}
    s_add_u32 s{sX}, s{sWS}, s{sA}
    s_addc_u32 s{sX+1}, s{sWS+1}, 0
    s_mov_b32 s{sX+2}, {WSH}
    v_mov_b64 {vr(z, 2)}, 0
    v_mov_b64 {vr(z + 2, 2)}, 0
    s_and_b32 s{sPUB}, s{sC}, 1
    s_cmp_eq_u32 s{sPUB}, s{sKS}
    s_cselect_b32 s{sPUB}, 1, 0
    s_cmp_ge_u32 s{sC}, {first_pub(opts)}
    s_cselect_b32 s{sPUB}, s{sPUB}, 0
    v_mfma_f32_32x32x16_bf16 {vr(O[0], 16)}, {vr(z, 4)}, {vr(z, 4)}, 0
    s_lshr_b32 s{sKOFF}, s{sC}, 1
    s_max_u32 s{sKOFF}, s{sKOFF}, 1
    s_mul_i32 s{sVOFF}, s{sKOFF}, {CHB}
    s_lshl_b32 s{sKOFF}, s{sKOFF}, 15
    s_lshr_b32 s{sB}, s{sW}, 1
    s_lshl_b32 s{sA}, s{sB}, 13
    v_add_u32 v{vAK}, s{sA}, v{vAK}
    v_mfma_f32_32x32x16_bf16 {vr(O[2], 16)}, {vr(z, 4)}, {vr(z, 4)}, 0
    s_mul_i32 s{sA}, s{sB}, {4 * 1792}
    s_add_u32 s{sA}, s{sA}, {VB[0]}
    v_and_b32 v{t0}, 15, v0
    v_bfe_u32 v{t1}, v0, 2, 2
    v_mad_u32_u24 v{t0}, v{t1}, 3, v{t0}
    v_lshrrev_b32 v{t1}, 4, v{vL}
    v_lshl_add_u32 v{t0}, v{t1}, 2, v{t0}
    v_lshrrev_b32 v{t1}, 5, v{vL}
    v_mad_u32_u24 v{t0}, v{t1}, 48, v{t0}
    v_mfma_f32_32x32x16_bf16 {vr(O[1], 16)}, {vr(z, 4)}, {vr(z, 4)}, 0
    v_lshl_add_u32 v{vAV}, v{t0}, 3, s{sA}
    v_mov_b32 v{vDV}, {PAR}
    v_lshlrev_b32 v{t1}, 6, v{t1}
    v_sub_u32 v{t1}, {ONES + 224}, v{t1}
    s_mov_b32 vcc_lo, 0x88880000
    s_mov_b32 vcc_hi, 0x88880000
    v_cndmask_b32 v{vAV}, v{vAV}, v{t1}, vcc
    v_cndmask_b32 v{vDV}, v{vDV}, v{R+14}, vcc
    v_mfma_f32_32x32x16_bf16 {vr(O[3], 16)}, {vr(z, 4)}, {vr(z, 4)}, 0
    v_mov_b32 v{vIDX}, 0xdddddddd
    v_mfma_f32_32x32x16_bf16 {vr(SS[1][0], 16)}, {vr(z, 4)}, {vr(z, 4)}, 0
    v_mfma_f32_32x32x16_bf16 {vr(SS[1][1], 16)}, {vr(z, 4)}, {vr(z, 4)}, 0
    s_cmp_eq_u32 s{sKS}, 0
    s_cbranch_scc1 L_two""")

    def temperature(a):
        a(f"""s_bitcmp1_b32 s{sH}, 0
        s_cselect_b32 s{sA}, 0, 16
        s_lshl_b32 s{sT}, s{sT}, s{sA}
        s_and_b32 s{sT}, s{sT}, 0xffff0000
        s_and_b32 s{sA}, s{sT}, 0x7fffffff
        s_cmp_gt_u32 s{sA}, {hex(T_LIMIT)}
        s_cselect_b32 s{sSLOW}, 1, s{sFORCE}""")

    a(f"""v_subrev_u32 v{t2}, 14336, v{vVG}
    s_sub_u32 s{sMODE}, s{sM0V}, 14336
    s_cmp_eq_u32 s{sW}, 6
    s_cbranch_scc0 L_noones
    v_lshrrev_b32 v{t0}, 3, v{vL}
    v_mul_u32_u24 v{t0}, 1792, v{t0}
    v_bfe_u32 v{t1}, v0, 2, 1
    v_mul_u32_u24 v{t1}, 896, v{t1}
    v_add_u32 v{t0}, v{t0}, v{t1}
    v_bfe_u32 v{t1}, v0, 1, 1
    v_mul_u32_u24 v{t1}, 224, v{t1}
    v_add_u32 v{t0}, v{t0}, v{t1}
    v_and_b32 v{t1}, 1, v0
    v_lshl_add_u32 v{t0}, v{t1}, 6, v{t0}
    v_add_u32 v{t0}, {ONES + 160}, v{t0}
    v_mov_b32 v{t1}, {FLAG}
    v_mov_b32 v{D[0]}, 0x3f80
    v_mov_b32 v{D[0] + 1}, 0
    ds_write_b64 v{t0}, {vr(D[0], 2)}
    ds_write_b64 v{t1}, {vr(z, 2)}""")
    a.label("L_noones")
    stamp(a, opts, "setup")
    vearly = opts.get("vearly", 0)
    if vearly:
        dma4(a, sMODE, t2, sV, 0, exact=m4)
    if vearly == 2:
        dma4(a, sM0V, vVG, sV, 0, exact=m4)
    if touch:
        a(f"""s_waitcnt vmcnt({4 * vearly + 1})
        s_cmp_eq_u32 s{sW}, 4
        s_cbranch_scc1 L_kready""")
    a(f"s_waitcnt vmcnt({4 * vearly})")
    a.label("L_kready")
    stamp(a, opts, "kdata")
    read_rows(a, R, vRR)

    def load_v(a):
        if not vearly:
            dma4(a, sMODE, t2, sV, 0, exact=m4)
        if vearly < 2:
            dma4(a, sM0V, vVG, sV, 0, exact=m4)
    vpos = opts.get("vpos", 0)
    if vpos == 0:
        load_v(a)
    a("s_waitcnt lgkmcnt(0)")
    temperature(a)
    normalise(a, R, hex(K_PAD[0]), vKW, mid=load_v if vpos == 1 and vearly < 2 else None)
    if not opts.get("bar2", 0):
        a("s_waitcnt vmcnt(0)")
    a("s_branch L_join")
    a.label("L_two")
    a(f"""v_mov_b32 v{RQ+14}, 0
    v_add_u32 v{t2}, {QB}, v{vRR}
    v_add_u32 v{t3}, {QB}, v{vKW}""")
    stamp(a, opts, "setup")
    a("s_waitcnt vmcnt(4)")
    stamp(a, opts, "kdata")
    read_rows(a, R, vRR)
    a("s_waitcnt lgkmcnt(0)")

    def scale_setup(a):
        temperature(a)
        qa, qb = Q_PAD[opts.get("M", 1536)]
        a(f"""s_cmp_eq_u32 s{sSLOW}, 1
        s_cselect_b32 s{sD}, 0, {hex(qa)}
        s_cselect_b32 s{sA}, 0, {hex(qb)}
        s_cselect_b64 vcc, -1, 0
        v_mov_b32 v{t4}, {hex(LOG2E)}
        v_mul_f32 v{t4}, s{sT}, v{t4}
        v_mov_b32 v{RQ+15}, s{sA}
        v_cndmask_b32 v{t4}, v{t4}, 1.0, vcc""")

    def second_rows(a):
        stamp(a, opts, "mid")
        a("s_waitcnt vmcnt(0)")
        stamp(a, opts, "qdata")
        read_rows(a, RQ, t2)
    if opts.get("qlate", 1):
        normalise(a, R, hex(K_PAD[0]), vKW, mid=scale_setup)
        second_rows(a)
        a("s_waitcnt lgkmcnt(0)")
    else:
        normalise(a, R, hex(K_PAD[0]), vKW, mid=scale_setup, mid2=second_rows)
        a("s_waitcnt lgkmcnt(4)")
    stamp(a, opts, "n0")
    normalise(a, RQ, f"s{sD}", t3, scale=t4, st=lambda n: stamp(a, opts, n))
    stamp(a, opts, "n5")
    a.label("L_join")
    stamp(a, opts, "lump2")
    a(f"s_mov_b32 s{sPAR}, {PAR}")
    a(f"""v_lshl_add_u32 v{vKS}, v{vL}, 4, s{sM0K}
    s_and_b32 s{sA}, s{sW}, 1
    s_lshl_b32 s{sA}, s{sA}, 13
    s_add_u32 s{sA}, s{sA}, {QB}
    v_lshl_add_u32 v{t0}, v{vL}, 4, s{sA}
    s_mov_b32 s{sMODE}, 0
    s_mov_b32 s{sRAW}, 0
    s_mov_b32 s{sI}, 0
    s_waitcnt lgkmcnt(0)""")
    stamp(a, opts, "prebar")
    a("s_barrier")

    def rdQ(t, f):
        a(f"ds_read_b128 {vr(QF[t][f], 4)}, v{t0} offset:{2048 * t + 1024 * f}")
    a(rdK(0, 0)); rdQ(0, 0); a(rdK(1, 0)); rdQ(0, 1); rdQ(1, 0); rdQ(1, 1)
    rdQ(2, 0); rdQ(3, 0); rdQ(2, 1); rdQ(3, 1)
    a(f"s_cmp_eq_u32 s{sSLOW}, 1")
    a("s_cbranch_scc1 L_slow")
    a(rdV(0, 0, 0))
    a("s_waitcnt lgkmcnt(9)")
    a(qk(0, 0, 0))
    a("s_waitcnt lgkmcnt(7)")
    a(qk(0, 0, 1))
    a("s_waitcnt lgkmcnt(5)")
    a(qk(0, 1, 0))
    a(qk(0, 1, 1))
    a("s_nop 7")
    stamp(a, opts, "loop")


PRIO_POINTS = [[(4, 4), (5, 4), (6, 0)], [(4, 0), (5, 0), (5, 7)], [(3, 7), (5, 0), (6, 0)], [(5, 0), (5, 6), (6, 0)],
               [(1, 7), (3, 7), (5, 7)], [(1, 7), (3, 0), (4, 0)], [(2, 0), (3, 4), (4, 4)], [(0, 7), (2, 7), (4, 4)]]


def dma1(p, vaddr, srd, soff, flags=""):
    return f"buffer_load_dwordx4 v{vaddr}, s[{srd}:{srd+3}], s{soff} offen offset:{1024 * p}{flags} lds"


def iteration(a, opts, kind):
    poll_at = opts.get("poll", 3)
    kdma_at = opts.get("kdma", 4)
    lump0_at = opts.get("lump0", 4)
    lump_at = opts.get("lump", 5)
    t0, t1 = vT[2], vT[3]
    sl = {j: {} for j in range(8)}

    def put(j, g, ins):
        sl[j].setdefault(g, []).append(ins)

    groups = {"first": [("K", 0), ("V", 2)], "hook": [("V", 0)], "lean": [("V", 0), ("G", 2)]}[kind]
    for what, j0 in groups:
        put(j0, 0, f"s_xor_b32 m0, s{sM0V if what == 'V' else sM0K}, s{sPAR}")
        for p in range(4):
            ins = {"K": dma1(p, vVG, sK, sVOFF), "V": dma1(p, vVG, sV, sVOFF), "G": dma1(p, vKS, sX, sKOFF, " sc1")}[what]
            put(j0 + (p >> 1), (4, 6)[p & 1], ins)
    if kind == "first":
        put(0, 1, "s_waitcnt lgkmcnt(3)")
    for lvl, (j, g) in zip((2, 1, 0), PRIO_POINTS[opts.get("pp", 2) if kind == "lean" else opts.get({"first": "pp0", "hook": "pph"}[kind], 2 if kind == "hook" else 1)]):
        put(j, g, f"s_setprio {lvl}")
    if kind == "first" and opts.get("pp0", 1) >= 5:
        put(5, 7, "s_setprio 0")
    put(6, 4, f"s_add_u32 s{sKOFF}, s{sKOFF}, 32768")
    put(6, 6, f"s_add_u32 s{sVOFF}, s{sVOFF}, {CHB}")
    put(6, 6, f"s_xor_b32 s{sPAR}, s{sPAR}, {PAR}")
    put(7, 0, f"s_cmp_eq_u32 s{sKOFF}, {8 * 32768}")
    put(7, 4, f"s_cselect_b32 s{sKOFF}, 32768, s{sKOFF}")
    put(7, 6, f"s_cselect_b32 s{sVOFF}, {CHB}, s{sVOFF}")
    if kind == "lean" and opts.get("nojunk", 1):
        put(5, 4, f"s_cmp_eq_u32 s{sI}, 6")
        put(5, 6, f"s_cselect_b32 s{sA}, 0x40000000, 0")
        put(7, 6, f"s_or_b32 s{sKOFF}, s{sKOFF}, s{sA}")
        put(7, 7, f"s_or_b32 s{sVOFF}, s{sVOFF}, s{sA}")

    def sync(a):
        a("s_waitcnt vmcnt(0) lgkmcnt(0)")
        a("s_barrier")
        a("s_setprio 3")
        a(f"v_xor_b32 v{vAK}, {PAR}, v{vAK}")
        a(f"v_xor_b32 v{vAV}, v{vDV}, v{vAV}")

    for j in range(8):
        step(a, j, sl[j], sync if j == 6 else None)
        stamp_it(a, opts, f"e{j}", kind)
        if kind == "first":
            if j == lump0_at:
                a("s_waitcnt vmcnt(4)")
                lump(a, publish=True)
                if opts.get("pp0", 1) >= 5:
                    a("s_setprio 1")
            if j == 6:
                a.note("every publishing wave's stores completed before the barrier: one lane signals")
                a(f"""s_cmp_eq_u32 s{sW}, 0
                s_cselect_b32 s{sA}, s{sC}, 0
                s_cmp_ge_u32 s{sA}, {first_pub(opts)}
                s_cbranch_scc0 L_signalled
                s_and_b32 s{sA}, s{sC}, 14
                s_lshl_b32 s{sA}, 1, s{sA}
                v_mov_b32 v{t1}, s{sA}
                v_mov_b32 v{t0}, 0
                s_lshl_b32 s{sA}, s{sH}, 4
                s_mov_b64 exec, 1
                buffer_atomic_add v{t1}, v{t0}, s[{sG}:{sG+3}], s{sA} offen sc1
                s_mov_b64 exec, -1""")
                a.label("L_signalled")
        if kind == "hook":
            if j == poll_at:
                a.note("wave 0 copies the head's arrival word into LDS")
                a(f"""s_cmp_eq_u32 s{sW}, 0
                s_cbranch_scc0 L_polled
                s_mov_b32 m0, {FLAG}
                s_lshl_b32 s{sA}, s{sH}, 4
                v_mov_b32 v{t0}, 0
                s_mov_b64 exec, 1
                buffer_load_dword v{t0}, s[{sG}:{sG+3}], s{sA} offen sc1 lds
                s_mov_b64 exec, -1""")
                a.label("L_polled")
            if j == kdma_at:
                a.note("next chunk: from d_ws if both of its publishers have arrived")
                a(f"""v_mov_b32 v{t0}, {FLAG}
                ds_read_b32 v{t0}, v{t0}
                s_xor_b32 m0, s{sM0K}, s{sPAR}
                s_lshr_b32 s{sB}, s{sKOFF}, 14
                s_add_u32 s{sB}, s{sB}, 1
                s_waitcnt lgkmcnt(0)
                v_readfirstlane_b32 s{sA}, v{t0}
                s_cmp_eq_u32 s{sA}, {hex(0x7fffffff if opts.get("x_self") else all_ready(opts))}
                s_cselect_b32 s{sMODE}, 1, 0
                s_bitcmp1_b32 s{sA}, {0 if opts.get("x_self") else "s%d" % sB}
                s_cbranch_scc0 L_raw""")
                for p in range(4):
                    a(dma1(p, vKS, sX, sKOFF, " sc1"))
                a.label("L_kdone")
            if j == lump_at:
                a(f"s_cmp_eq_u32 s{sRAW}, 1")
                a("s_cbranch_scc1 L_lump")
                a.label("L_lumped")
        if j == 6 and kind != "first":
            a(f"s_cmp_eq_u32 s{sI}, 7")
            a("s_cbranch_scc1 L_last")
        stamp_it(a, opts, f"h{j}", kind)
    if opts.get("clk"):
        clock_sample(a, f"s{sI}")


def clock_sample(a, slot):
    a(f"""s_memtime s[60:61]
    s_memrealtime s[62:63]
    s_lshl_b32 s64, s2, 3
    s_add_u32 s64, s64, s{sW}
    s_lshl_b32 s64, s64, 7
    s_lshl_b32 s65, {slot}, 3
    s_add_u32 s64, s64, s65
    s_add_u32 s64, s64, 0x1000000
    s_mov_b32 s68, s{sWS}
    s_mov_b32 s69, s{sWS+1}
    s_mov_b32 s70, 0x2000000
    s_mov_b32 s71, 0x20000
    s_waitcnt lgkmcnt(0)
    v_mov_b32 v254, s60
    v_mov_b32 v255, s62
    v_mov_b32 v253, 0
    buffer_store_dwordx2 v[254:255], v253, s[68:71], s64 offen""")


def main_loop(a, opts):
    if opts.get("clk"):
        clock_sample(a, "8")
        a("""s_getreg_b32 s60, hwreg(HW_REG_XCC_ID)
        s_add_u32 s64, s64, 8
        v_mov_b32 v254, s60
        buffer_store_dwordx2 v[254:255], v253, s[68:71], s64 offen""")
    a("s_setprio 3")
    iteration(a, opts, "first")
    a(f"s_mov_b32 s{sI}, 1")
    a.label("L_hook")
    iteration(a, opts, "hook")
    a(f"""s_add_u32 s{sI}, s{sI}, 1
    s_cmp_eq_u32 s{sMODE}, 0
    s_cbranch_scc1 L_hook""")
    a.raw(".p2align 6")
    a.label("L_lean")
    iteration(a, opts, "lean")
    a(f"s_add_u32 s{sI}, s{sI}, 1")
    a("s_branch L_lean")
    a.label("L_last")
    t0 = vT[0]
    e = [f"v_exp_f32 v{SS[1][x] + 8 * h + i}, v{SS[1][x] + 8 * h + i}" for h in range(2) for x in range(2) for i in range(8)]
    w = [send(t, p) for t in range(2) for p in range(4)]
    if opts.get("skipown", 0):
        a(f"s_lshr_b32 s{sD}, s{sW}, 1")
        for n in range(8):
            w[n] = (f"s_cmp_eq_u32 s{sD}, {n >> 2}\n" if n % 4 == 0 else "") + f"s_cbranch_scc1 L_kept{n}\n{w[n]}\n@L_kept{n}"
    a(f"s_lshl_b32 s{sB}, s{sW}, 14")
    a(f"v_lshl_add_u32 v{t0}, v{vL}, 4, s{sB}")
    seq = ([pv(0, 0, 1)] + e[0:4] + [pv(0, 1, 1)] + e[4:12] + [w[0]] + e[12:15] + [w[1]] + e[15:18] + [pv(1, 0, 0), w[2]]
           + e[18:22] + [pv(1, 1, 0), w[3]] + e[22:24] + [w[4]] + e[24:26] + [pv(1, 0, 1), w[5]] + e[26:29] + [w[6]]
           + e[29:32] + [w[7], "s_nop 0", pv(1, 1, 1)])
    for ins in seq:
        a(ins)


def send(t, p):
    return f"ds_write_b128 v{vT[0]}, {vr(O[t] + 4 * p, 4)} offset:{4096 * t + 1024 * p}"


def lump(a, publish):
    t0, t1 = vT[2], vT[3]
    a(f"v_add_u32 v{t0}, s{sPAR}, v{vRR}")
    a(f"v_add_u32 v{t1}, s{sPAR}, v{vKW}")
    read_rows(a, R, t0)
    a("s_waitcnt lgkmcnt(0)")
    normalise(a, R, hex(K_PAD[0]), t1)
    if publish:
        a(f"s_cmp_eq_u32 s{sPUB}, 1")
        a("s_cbranch_scc0 L_published")
        for p in range(4):
            a(f"buffer_store_dwordx4 {vr(R + 4 * p, 4)}, v{vKW}, s[{sX}:{sX+3}], s{sKOFF} offen offset:{piece_off(p)} sc1")
        a.label("L_published")


def side_blocks(a, opts):
    a.label("L_raw")
    a(f"s_mov_b32 s{sRAW}, 1")
    for p in range(4):
        a(dma1(p, vVG, sK, sVOFF))
    a("s_branch L_kdone")
    a.label("L_lump")
    a(f"s_mov_b32 s{sRAW}, 0")
    a("s_waitcnt vmcnt(0)")
    lump(a, publish=False)
    a("s_branch L_lumped")


def epilogue(a, opts):
    a.label("L_epi")
    stamp(a, opts, "done")
    t0, t1, t2 = vT[0:3]
    l0, l1 = vT[4], vT[3]
    own, tot = D[0], SS[0][0]
    part = [SS[0][0], SS[0][1], SS[1][0]]
    src = [vT[5], vT[6], t1]
    a(f"""s_lshr_b32 s{sD}, s{sW}, 1
    s_lshl_b32 s{sA}, s{sD}, 12
    s_add_u32 s{sB}, s{sB}, s{sA}
    v_and_b32 v{t2}, 31, v0
    v_mul_u32_u24 v{t2}, 56, v{t2}
    v_bfe_u32 v{l1}, v0, 5, 1
    v_lshl_add_u32 v{t2}, v{l1}, 3, v{t2}
    v_add_u32 v{t2}, s{sB}, v{t2}
    v_lshl_add_u32 v{vAK}, v{vL}, 4, s{sB}
    v_xor_b32 v{src[0]}, 0x8000, v{vAK}
    v_xor_b32 v{src[1]}, 0x10000, v{vAK}
    v_xor_b32 v{src[2]}, 0x18000, v{vAK}
    s_and_b32 s{sA}, s{sW}, 1
    s_lshl_b32 s{sA}, s{sA}, 2
    s_add_u32 s{sA}, s{sA}, s{sD}
    s_mul_i32 s{sA}, s{sA}, {32 * 56}
    s_cmp_eq_u32 s{sD}, 1
    s_cbranch_scc1 L_send1
    s_cmp_eq_u32 s{sD}, 2
    s_cbranch_scc1 L_send2
    s_cmp_eq_u32 s{sD}, 3
    s_cbranch_scc1 L_send3""")
    for k in range(4):
        if k:
            a.label(f"L_send{k}")
        ws = [send(t, p) for t in (2, 3) if t != k for p in range(4)]
        for n in range(8):
            if n < len(ws):
                a(ws[n])
            a(f"v_mov_b64 {vr(own + 2 * n, 2)}, {vr(O[k] + 2 * n, 2)}")
        if k < 3:
            a("s_branch L_sent")
    a.label("L_sent")
    a("s_waitcnt lgkmcnt(0)")
    stamp(a, opts, "sent")
    a("s_barrier")
    order = (3, 0, 1, 2)
    for p in order:
        for k in range(3):
            a(f"ds_read_b128 {vr(part[k] + 4 * p, 4)}, v{src[k]} offset:{1024 * p}")
    extra = {0: [f"v_mov_b32 v{l0}, v{tot + 12}", f"v_mov_b32 v{l1}, v{tot + 12}"], 1: [f"v_permlane32_swap_b32 v{l0}, v{l1}"],
             2: [f"v_rcp_f32 v{l1}, v{l1}"], 3: []}
    for n, p in enumerate(order):
        a(f"s_waitcnt lgkmcnt({11 - 3 * n})")
        for i in (0, 2):
            a(f"v_pk_add_f32 {vr(tot + 4 * p + i, 2)}, {vr(part[0] + 4 * p + i, 2)}, {vr(own + 4 * p + i, 2)}")
        a(f"s_waitcnt lgkmcnt({9 - 3 * n})")
        for i in (0, 2):
            a(f"v_pk_add_f32 {vr(part[1] + 4 * p + i, 2)}, {vr(part[1] + 4 * p + i, 2)}, {vr(part[2] + 4 * p + i, 2)}")
        for i in (0, 2):
            a(f"v_pk_add_f32 {vr(tot + 4 * p + i, 2)}, {vr(tot + 4 * p + i, 2)}, {vr(part[1] + 4 * p + i, 2)}")
        for ins in extra[n]:
            a(ins)
    for g in range(4):
        for i in (0, 2):
            a(f"v_pk_mul_f32 {vr(D[1] + 4 * g + i, 2)}, {vr(tot + 4 * g + i, 2)}, {vr(l1, 2)} op_sel_hi:[1,0]")
        if g:
            a(f"ds_write_b64 v{t2}, {vr(R + 2 * g - 2, 2)} offset:{16 * g - 16}")
        for i in (0, 1):
            a(f"v_cvt_pk_bf16_f32 v{R + 2 * g + i}, v{D[1] + 4 * g + 2 * i}, v{D[1] + 4 * g + 2 * i + 1}")
    a(f"""s_mov_b32 exec_hi, 0
    ds_write_b64 v{t2}, {vr(R + 6, 2)} offset:48
    s_mov_b32 exec_hi, -1
    v_lshlrev_b32 v{t1}, 4, v{vL}
    ds_read_b128 {vr(KF, 4)}, v{vAK}
    ds_read_b128 {vr(KF + 4, 4)}, v{vAK} offset:1024
    s_waitcnt lgkmcnt(1)
    buffer_store_dwordx4 {vr(KF, 4)}, v{t1}, s[{sO}:{sO+3}], s{sA} offen
    s_mov_b32 exec_hi, 0xffff
    s_waitcnt lgkmcnt(0)
    buffer_store_dwordx4 {vr(KF + 4, 4)}, v{t1}, s[{sO}:{sO+3}], s{sA} offen offset:1024
    s_mov_b32 exec_hi, -1""")
    for i in range(16):
        a(f"v_max_f32 v{tot + i}, abs(v{tot + i}), abs(v{own + i})")
    a(f"v_min3_f32 v{l0}, v{tot}, v{tot + 1}, v{tot + 2}")
    for i in range(3, 13, 2):
        a(f"v_min3_f32 v{l0}, v{l0}, v{tot + i}, v{tot + i + 1}")
    a("s_mov_b32 exec_hi, 0")
    a(f"v_min3_f32 v{l0}, v{l0}, v{tot + 13}, v{tot + 14}")
    a(f"v_min_f32 v{l0}, v{tot + 15}, v{l0}")
    a(f"""s_mov_b32 exec_hi, -1
    v_cmp_gt_f32 vcc, {hex(O_MIN)}, v{l0}
    v_mov_b32 v{t0}, {FLAG + 4}
    v_mov_b32 v{t1}, 1
    s_cbranch_vccz L_final
    ds_write_b32 v{t0}, v{t1}
    s_waitcnt lgkmcnt(0)""")
    a.label("L_final")
    a(f"""s_barrier
    ds_read_b32 v{t0}, v{t0}
    s_waitcnt lgkmcnt(0)
    v_readfirstlane_b32 s{sA}, v{t0}
    s_cmp_gt_u32 s{sA}, s{sSLOW}
    s_cbranch_scc1 L_redo""")
    if opts.get("stamps"):
        a("s_mov_b64 exec, -1")
        stamp(a, opts, "stored")
        a("s_waitcnt vmcnt(0)")
        stamp(a, opts, "end")
        dbg = opts["stamps"] == 2
        a(f"""s_memrealtime s[76:77]
        s_load_dwordx2 s[4:5], s[0:1], {40 if dbg else 48}
        s_waitcnt lgkmcnt(0)
        s_mov_b32 s6, {64 if dbg else 0x2000000}
        s_mov_b32 s7, 0x20000
        s_lshl_b32 s8, s2, 3
        s_add_u32 s8, s8, s{sW}""")
        if dbg:
            a("""s_cmp_eq_u32 s8, 2047
            s_cselect_b32 s9, 1, 2
            s_cmp_eq_u32 s8, 0
            s_cselect_b32 s8, 0, s9""")
        a("s_lshl_b32 s8, s8, 5")
        if not dbg:
            a("s_add_u32 s8, s8, 0x1000000")
        a("""v_mov_b32 v0, 0
        v_mov_b32 v1, s74
        buffer_store_dword v1, v0, s[4:7], s8 offen""")
        for n in range(1, 7):
            if opts["slots"][n] == "mode":
                a(f"s_mov_b32 s9, s{sP}")
            else:
                a(f"s_sub_u32 s9, s{sTS + 2 * n}, s{sTS}")
            a("v_mov_b32 v1, s9")
            a(f"buffer_store_dword v1, v0, s[4:7], s8 offen offset:{4 * n}")
        a("s_sub_u32 s9, s76, s74")
        a("v_mov_b32 v1, s9")
        a("buffer_store_dword v1, v0, s[4:7], s8 offen offset:28")
    if opts.get("hold"):
        if opts.get("holdraw"):
            a(f"""s_mul_i32 s8, s{sP}, 400
            s_add_u32 s74, s74, s8""")
        if opts.get("span"):
            a("""s_waitcnt lgkmcnt(0)
            s_sub_u32 s8, s60, s62
            s_lshl_b32 s8, s8, 2
            s_add_u32 s74, s74, s8""")
        if opts.get("holdk"):
            a(f"""s_waitcnt lgkmcnt(0)
            s_sub_u32 s8, s60, s74
            s_lshl_b32 s8, s8, {0 if opts["holdk"] == 2 else 2}
            s_add_u32 s74, s74, s8""")
        a.label("L_hold")
        a(f"""s_sleep 4
        s_memrealtime s[76:77]
        s_waitcnt lgkmcnt(0)
        s_sub_u32 s9, s76, s74
        s_cmp_lt_i32 s9, {opts["hold"]}
        s_cbranch_scc1 L_hold""")
    a.label("L_end")
    a("s_endpgm")


def slow_path(a):
    x0 = vT[2]
    a.label("L_redo")
    a(f"""s_mov_b32 s{sFORCE}, 1
    s_waitcnt vmcnt(0)
    s_barrier
    s_branch L_start""")
    a.label("L_slow")
    for t in range(4):
        a(f"v_mov_b32 v{MXS[t]}, 0xff800000")
    a(f"s_mov_b32 s{sP}, 0")
    a.label("L_slow_pass")
    a(f"s_mov_b32 s{sVOFF}, 0")
    a.label("L_slow_chunk")
    a("s_waitcnt vmcnt(0) lgkmcnt(0)")
    a("s_barrier")
    dma4(a, sM0K, vVG, sK, f"s{sVOFF}")
    dma4(a, sM0V, vVG, sV, f"s{sVOFF}")
    a("s_waitcnt vmcnt(0)")
    read_rows(a, R, vRR)
    a("s_waitcnt lgkmcnt(0)")
    normalise(a, R, hex(K_PAD[0]), vKW)
    a("s_waitcnt lgkmcnt(0)")
    a("s_barrier")
    for j in range(4):
        a(rdK(0, j)); a(rdK(1, j))
        for which in range(2):
            for part in range(2):
                a(rdV(which, part, j))
        a("s_waitcnt lgkmcnt(0)")
        a(f"s_call_b64 s[{sLINK}:{sLINK+1}], L_slow_tile")
    a(f"""s_add_u32 s{sVOFF}, s{sVOFF}, {CHB}
    s_cmp_lt_u32 s{sVOFF}, {HEADB}
    s_cbranch_scc1 L_slow_chunk
    s_cmp_eq_u32 s{sP}, 1
    s_cbranch_scc1 L_slow_done""")
    for t in range(4):
        a(f"""v_mov_b32 v{x0}, v{MXS[t]}
        s_nop 1
        v_permlane32_swap_b32 v{x0}, v{MXS[t]}
        s_nop 1
        v_max_f32 v{MXS[t]}, v{x0}, v{MXS[t]}""")
    a(f"""s_barrier
    v_lshlrev_b32 v{x0}, 4, v0
    ds_write_b128 v{x0}, {vr(MXS[0], 4)}
    s_waitcnt lgkmcnt(0)
    s_barrier""")
    for k in range(1, 4):
        a(f"v_xor_b32 v{x0 + 1}, {2048 * k}, v{x0}")
        a(f"ds_read_b128 {vr(D[0], 4)}, v{x0 + 1}")
        a("s_waitcnt lgkmcnt(0)")
        for t in range(4):
            a(f"v_max_f32 v{MXS[t]}, v{MXS[t]}, v{D[0] + t}")
    a(f"s_mov_b32 s{sP}, 1")
    a("s_branch L_slow_pass")
    a.label("L_slow_done")
    a("s_barrier")
    a(f"s_lshl_b32 s{sB}, s{sW}, 14")
    a(f"v_lshl_add_u32 v{vT[0]}, v{vL}, 4, s{sB}")
    a("s_nop 11")
    for t in range(2):
        for p in range(4):
            a(send(t, p))
    a("s_branch L_epi")
    a.label("L_slow_tile")
    tiles = [(p, x) for p in range(2) for x in range(2)]
    for p, x in tiles:
        a(qk(p, x, 0)); a(qk(p, x, 1))
    a("s_nop 15")
    for p, x in tiles:
        for i in range(16):
            a(f"v_mul_f32 v{SS[p][x] + i}, s{sT}, v{SS[p][x] + i}")
    a(f"s_cmp_eq_u32 s{sP}, 1")
    a("s_cbranch_scc1 L_slow_exp")
    for p, x in tiles:
        for i in range(0, 16, 2):
            a(f"v_max3_f32 v{MXS[2 * p + x]}, v{MXS[2 * p + x]}, v{SS[p][x] + i}, v{SS[p][x] + i + 1}")
    a(f"s_setpc_b64 s[{sLINK}:{sLINK+1}]")
    a.label("L_slow_exp")
    for p, x in tiles:
        for i in range(16):
            v = SS[p][x] + i
            a(f"v_sub_f32 v{v}, v{v}, v{MXS[2 * p + x]}")
            a(f"v_mul_f32 v{v}, {hex(LOG2E)}, v{v}")
            a(f"v_exp_f32 v{v}, v{v}")
    a("s_nop 1")
    for p, x in tiles:
        a(pv(p, x, 0)); a(pv(p, x, 1))
    a(f"s_setpc_b64 s[{sLINK}:{sLINK+1}]")


SLOTS = {0: ["start", "setup", "prebar", "loop", "mode", "done", "end"],
         1: ["start", "karg", "issued", "setup", "kdata", "prebar", "end"],
         2: ["start", "loop", "done", "sent", "stored", "mode", "end"],
         3: ["start", "kdata", "mid", "qdata", "lump2", "prebar", "end"],
         4: ["start", "loop", "e1", "h1", "e3", "h3", "end"],
         5: ["start", "e4", "h4", "e5", "h5", "e6", "end"],
         6: ["start", "e0", "e2", "e4", "e5", "e6", "e7"],
         7: ["start", "loop", "e0", "h0", "e4", "h4", "e6"],
         8: ["start", "e5", "e6", "h6", "e7", "done", "end"],
         9: ["start", "e1", "h1", "e2", "h2", "e3", "h3"],
         10: ["start", "qdata", "n0", "n1", "n2", "n3", "n4"],
         11: ["start", "n3", "n4", "n5", "prebar", "loop", "end"]}


def build(opts):
    opts["slots"] = SLOTS[opts.get("pro", 0)]
    a = Asm()
    name = "standalone__qk_norm__prompt_kernel"
    a.raw(HEADER + DOC + f"; @launch grid=(256,1,1) block=(512,1,1) lds={LDS_BYTES}")
    a.raw('.amdgcn_target "amdgcn-amd-amdhsa--gfx950"\n.text')
    if opts.get("align", 0):
        a.raw(".p2align 12\n.fill 832, 4, 0xbf800000")
    a.raw(f".globl {name}\n.p2align 8\n.type {name},@function\n{name}:")
    prologue(a, opts)
    main_loop(a, opts)
    epilogue(a, opts)
    side_blocks(a, opts)
    slow_path(a)
    txt = a.text()
    if opts.get("stamps") or opts.get("holdraw"):
        txt = txt.replace(f"    s_mov_b32 s{sMODE}, 0\n", f"    s_mov_b32 s{sMODE}, 0\n    s_mov_b32 s{sP}, 0\n")
        txt = txt.replace(f"    s_mov_b32 s{sRAW}, 1\n", f"    s_mov_b32 s{sRAW}, 1\n    s_add_u32 s{sP}, s{sP}, 1\n")
    txt += f""".section .rodata,"a"
.p2align 6
.amdhsa_kernel {name}
  .amdhsa_next_free_vgpr {NVGPR}
  .amdhsa_next_free_sgpr {NSGPR}
  .amdhsa_accum_offset {NVGPR}
  .amdhsa_group_segment_fixed_size 0
  .amdhsa_kernarg_size 56
  .amdhsa_user_sgpr_count 2
  .amdhsa_user_sgpr_kernarg_segment_ptr 1
  .amdhsa_system_sgpr_workgroup_id_x 1
  .amdhsa_float_denorm_mode_32 3
.end_amdhsa_kernel
"""
    return txt


if __name__ == "__main__":
    opts = {}
    out = "standalone__qk_norm__prompt.s"
    for arg in sys.argv[1:]:
        k, _, v = arg.partition("=")
        if k == "out":
            out = v
        else:
            opts[k] = int(v)
    open(out, "w").write(build(opts))
```

```python
import sys

HEADER = """; Kernarg layout for this problem (56 bytes, ptrs only, base s[0:1]):
;   offset   0: d_in[0] q  shape=(1, 16, 4096, 28) dtype=bfloat16 strides=(3670016, 229376, 56, 2) contiguous=True
;   offset   8: d_in[1] k  shape=(1, 16, 4096, 28) dtype=bfloat16 strides=(3670016, 229376, 56, 2) contiguous=True
;   offset  16: d_in[2] v  shape=(1, 16, 4096, 28) dtype=bfloat16 strides=(3670016, 229376, 56, 2) contiguous=True
;   offset  32: d_out     shape=(1, 16, 4096, 28) dtype=bfloat16 (2 bytes/elem)
"""

DOC = """;
; Softmax shift: |logit * log2 e| < 23.2 when |t| <= 16, so the spare k-slots subtract the constant 48.5
;   (as -1536 - 48.5 in the first MFMA and +1536 in the second).  Larger or non-finite t, or unnormalised
;   outputs near the fp32 underflow range, take L_slow: two passes with the true row maximum.
; Normalised K: workgroup c normalises chunk 0 and chunk max(c / 2, 1) itself, stores its 256-key half of the
; LDS: K fragments / raw V, two buffer pairs (0, 0x10000); constant spots; query fragments; two flag words.
"""

HEADB = 229376
CHB = 28672
WSH = 262144
PAR = 0x10000
KB = [0, PAR]
VB = [32768, PAR + 32768]
ONES = 2 * PAR
QB = ONES + 14336
FLAG = QB + 16384
LDS_BYTES = FLAG + 256
T_LIMIT = 0x41800000
K_PAD = (0x3f803f80, 0x00003f80)
Q_PAD = {0: (0xc2420000, 0), 256: (0xc242c380, 0x4380), 1536: (0xc242c4c0, 0x44c0), 3072: (0xc242c540, 0x4540),
         6144: (0xc242c5c0, 0x45c0)}
O_MIN = 0x0c800000
LOG2E = 0x3fb8aa3b
EPS = 0x358637bd

sK, sV, sO, sX, sG = 16, 20, 24, 28, 32
sH, sC, sW, sT, sI, sVOFF, sM0V, sKS = 36, 37, 38, 39, 40, 41, 42, 43
sA, sB, sD = 44, 45, 46
sPAR, sM0K, sKOFF, sRAW, sMODE, sPUB, sSLOW = 47, 48, 49, 50, 51, 52, 53
sWS = 54
sP = 56
sFORCE = 57
sLINK = 58
sTS = 60
NSGPR = 80
vL, vKS, vVG, vKW, vAK, vAV, vDV, vIDX = 1, 2, 3, 4, 5, 6, 7, 8
vT = [9, 10, 11, 12, 13, 14, 15]
RQ = 16
QF = [[16 + 8 * t, 20 + 8 * t] for t in range(4)]
O = [48, 64, 80, 96]
SS = [[112, 128], [144, 160]]
KF, V1, V2 = 176, 184, 188
R = 192
D = [208, 224]
A1, A2 = 240, 244
MX = [12, 13]
vPOLL = 15
vJUNK = SS[0][0]
MXS = [2, 7, 14, 15]
NVGPR = 248


def first_pub(opts):
    return 2


def all_ready(opts):
    return sum(2 << (2 * n) for n in range(first_pub(opts) // 2, 8))


class Asm:
    def __init__(self):
        self.l = []
    def __call__(self, s):
        for x in s.split("\n"):
            x = x.strip()
            self.l.append(x[1:] + ":" if x.startswith("@") else "    " + x)
    def label(self, n):
        self.l.append(n + ":")
    def note(self, s):
        for x in s.strip().split("\n"):
            self.l.append("    ; " + x.strip())
    def raw(self, s):
        self.l.append(s)
    def text(self):
        return "\n".join(self.l) + "\n"


def vr(a, n):
    return f"v[{a}:{a + n - 1}]"


def dma4(a, m0, vaddr, srd, soff, flags="", exact=False):
    a(f"s_mov_b32 m0, s{m0}")
    a("s_nop 0")
    for p in range(4):
        if exact and p == 3:
            a("s_mov_b32 exec_hi, 0")
        a(f"buffer_load_dwordx4 v{vaddr}, s[{srd}:{srd+3}], {soff} offen offset:{1024 * p}{flags} lds")
    if exact:
        a("s_mov_b32 exec_hi, -1")


def read_rows(a, r, vaddr):
    for i in range(3):
        a(f"ds_read2_b64 {vr(r + 4 * i, 4)}, v{vaddr} offset0:{2 * i} offset1:{2 * i + 1}")
    a(f"ds_read_b64 {vr(r + 12, 2)}, v{vaddr} offset:48")


def normalise(a, r, pad, dst, scale=None, mid=None, mid2=None, st=lambda n: None):
    nrm = vT[1]
    acc = MX[0]
    a(f"v_mfma_f32_32x32x16_bf16 {vr(D[0], 16)}, {vr(A1, 4)}, {vr(r, 4)}, 0")
    a(f"v_mfma_f32_32x32x16_bf16 {vr(D[0], 16)}, {vr(A2, 4)}, {vr(r + 4, 4)}, {vr(D[0], 16)}")
    a(f"v_mfma_f32_32x32x16_bf16 {vr(D[1], 16)}, {vr(A1, 4)}, {vr(r + 8, 4)}, 0")
    a(f"v_mfma_f32_32x32x16_bf16 {vr(D[1], 16)}, {vr(A2, 4)}, {vr(r + 12, 4)}, {vr(D[1], 16)}")
    if mid:
        mid(a)
    a(f"v_mov_b32 v{r + 7}, {pad}")
    a("s_nop 2" if mid else "s_nop 8")
    st("n1")
    for i in range(14):
        d = vr(D[0] + 2 * i, 2)
        if i == 0:
            a(f"v_pk_mul_f32 {vr(acc, 2)}, {d}, {d}")
        else:
            a(f"v_pk_fma_f32 {vr(acc, 2)}, {d}, {d}, {vr(acc, 2)}")
    a(f"v_add_f32 v{nrm}, v{acc}, v{acc + 1}")
    st("n2")
    a(f"v_sqrt_f32 v{nrm}, v{nrm}")
    a("s_nop 0")
    a(f"v_add_f32 v{nrm}, {hex(EPS)}, v{nrm}")
    a(f"v_rcp_f32 v{nrm}, v{nrm}")
    a("s_nop 0")
    if scale is not None:
        a(f"v_mul_f32 v{nrm}, v{scale}, v{nrm}")
    st("n3")
    if mid2:
        mid2(a)
    for i in range(14):
        d = D[0] + 2 * i
        a(f"v_pk_mul_f32 {vr(d, 2)}, {vr(d, 2)}, {vr(nrm, 2)} op_sel_hi:[1,0]")
        if i in (5, 8, 12):
            write_frag(a, r, dst, (5, 8, 12).index(i))
        if i >= 1:
            a(f"v_cvt_pk_bf16_f32 v{r + i - 1 + (i > 7)}, v{d - 2}, v{d - 1}")
    a(f"v_cvt_pk_bf16_f32 v{r + 14}, v{D[0] + 26}, v{D[0] + 27}")
    write_frag(a, r, dst, 3)


def piece_off(p):
    return (p >> 1) * 1024 + (p & 1) * 512


def write_frag(a, r, vaddr, p):
    a(f"ds_write_b128 v{vaddr}, {vr(r + 4 * p, 4)} offset:{piece_off(p)}")


def rdK(f, tile):
    return f"ds_read_b128 {vr(KF + 4 * f, 4)}, v{vAK} offset:{(tile % 4) * 2048 + 1024 * f}"


def rdV(which, part, tile):
    base = (V1, V2)[which] + 2 * part
    return f"ds_read_b64_tr_b16 {vr(base, 2)}, v{vAV} offset:{(tile % 4) * 1792 + 896 * which + 224 * part}"


def qk(p, x, f):
    s = SS[p][x]
    c = "0" if f == 0 else vr(s, 16)
    return f"v_mfma_f32_32x32x16_bf16 {vr(s, 16)}, {vr(KF + 4 * f, 4)}, {vr(QF[2 * p + x][f], 4)}, {c}"


def pv(p, x, which):
    return f"v_smfmac_f32_32x32x32_bf16 {vr(O[2 * p + x], 16)}, {vr((V1, V2)[which], 4)}, {vr(SS[p][x] + 8 * which, 8)}, v{vIDX}"


def step(a, n, slots, sync=None):
    j, p = n >> 1, n & 1
    e = [f"v_exp_f32 v{SS[p][x] + 8 * h + i}, v{SS[p][x] + 8 * h + i}" for h in range(2) for x in range(2) for i in range(8)]
    m = [pv(1 - p, 0, 1), pv(1 - p, 1, 1), qk(1 - p, 0, 0), qk(1 - p, 1, 0), qk(1 - p, 0, 1), qk(1 - p, 1, 1),
         pv(p, 0, 0), pv(p, 1, 0)]
    if p == 0:
        r = {0: [rdV(0, 1, j)], 1: [rdV(1, 0, j)], 2: [rdV(1, 1, j)], 3: [rdK(0, j + 1)],
             5: [rdK(1, j + 1), "s_waitcnt lgkmcnt(2)"]}
    else:
        r = {1: ["s_waitcnt lgkmcnt(0)"], 7: [rdV(0, 0, j + 1)]}
    pos = 0
    for g in range(8):
        for i in range(pos, 2 + 4 * g):
            a(e[i])
        pos = 2 + 4 * g
        a(m[g])
        if g == 3 and sync:
            sync(a)
        for ins in r.get(g, []) + slots.get(g, []):
            a(ins)
    for i in range(pos, 32):
        a(e[i])


HOLD_POINTS = [None, "loop", "done", "karg", "issued", "kdata", "lump2", "prebar", "setup", "qdata"]


def stamp(a, opts, name):
    if opts.get("holdk") and HOLD_POINTS[opts["holdk"]] == name:
        a("s_memrealtime s[60:61]")
    if opts.get("stamps") and name in opts["slots"]:
        n = opts["slots"].index(name)
        a(f"s_memtime s[{sTS + 2 * n}:{sTS + 2 * n + 1}]")


def stamp_it(a, opts, name, kind):
    if opts.get("span") and name in (f"e{opts['span']}", f"h{opts['span']}") and kind == "hook":
        a(f"s_cmp_eq_u32 s{sI}, 1")
        a(f"s_cbranch_scc0 L_sp_{name}")
        a("s_memrealtime s[62:63]" if name[0] == "e" else "s_memrealtime s[60:61]")
        a.label(f"L_sp_{name}")
    if opts.get("stamps") and name in opts["slots"]:
        a(f"s_cmp_eq_u32 s{sI}, {opts.get('it', 0)}")
        a(f"s_cbranch_scc0 L_st_{name}_{kind}")
        stamp(a, opts, name)
        a.label(f"L_st_{name}_{kind}")


def prologue(a, opts):
    t0, t1, t2, t3, t4 = vT[2], vT[3], vT[0], vT[5], vT[6]
    z = V2
    m4 = opts.get("m4", 0)
    touch = opts.get("touch", 1)
    a("s_cmp_ge_u32 s2, 256")
    a("s_cbranch_scc1 L_end")
    a(f"s_mov_b32 s{sFORCE}, 0")
    a.label("L_start")
    stamp(a, opts, "start")
    if opts.get("stamps") or opts.get("hold"):
        a("s_memrealtime s[74:75]")
    if opts.get("hold"):
        a("s_memrealtime s[60:61]")
    a("s_load_dwordx8 s[4:11], s[0:1], 0")
    a("s_load_dwordx4 s[12:15], s[0:1], 32")
    a(f"s_load_dwordx2 s[{sWS}:{sWS+1}], s[0:1], 48")
    a(f"""v_lshrrev_b32 v{t0}, 6, v0
    v_and_b32 v{vL}, 63, v0
    s_and_b32 s{sA}, s2, 7
    v_readfirstlane_b32 s{sW}, v{t0}
    s_lshl_b32 s{sA}, s{sA}, 1
    s_bfe_u32 s{sB}, s2, 0x10003
    s_add_u32 s{sH}, s{sA}, s{sB}
    s_lshr_b32 s{sC}, s2, 4""")
    if opts.get("x_perm") == 1:
        a(f"s_lshr_b32 s{sH}, s2, 4")
        a(f"s_and_b32 s{sC}, s2, 15")
    if opts.get("x_perm") == 2:
        a(f"""s_lshr_b32 s{sA}, s2, 4
        s_add_u32 s{sH}, s{sH}, s{sA}
        s_add_u32 s{sH}, s{sH}, s{sA}
        s_and_b32 s{sH}, s{sH}, 15""")
    if opts.get("pf", 1):
        a.note("""pull the kernel's code into L2 while the first loads are pending""")
        c0, c1 = D[0], D[0] + 2
        if opts.get("pfn", 64) < 256:
            a(f"s_cmp_ge_u32 s2, {opts.get('pfn', 64)}")
            a("s_cbranch_scc1 L_nopf")
        a(f"""s_cmp_eq_u32 s{sW}, 7
        s_cbranch_scc0 L_nopf
        s_getpc_b64 s[{sG}:{sG+1}]""")
        a.label("L_pc")
        a(f"""v_lshlrev_b32 v{t0}, 7, v{vL}
        v_mov_b32 v{c0 + 1}, s{sG+1}
        v_add_co_u32 v{c0}, vcc, s{sG}, v{t0}
        v_add_u32 v{t0}, 0x2000, v{t0}
        v_min_u32 v{t0}, L_raw-L_pc, v{t0}
        v_addc_co_u32 v{c0 + 1}, vcc, 0, v{c0 + 1}, vcc
        v_mov_b32 v{c1 + 1}, s{sG+1}
        v_add_co_u32 v{c1}, vcc, s{sG}, v{t0}
        global_load_dword v{vJUNK}, {vr(c0, 2)}, off
        s_nop 0
        v_addc_co_u32 v{c1 + 1}, vcc, 0, v{c1 + 1}, vcc
        global_load_dword v{vJUNK}, {vr(c1, 2)}, off""")
        a.label("L_nopf")
    a(f"""s_mul_i32 s{sA}, s{sH}, {HEADB}
    s_mul_i32 s{sD}, s{sC}, 14336
    s_add_u32 s{sB}, s{sD}, s{sA}
    s_lshr_b32 s{sKS}, s{sW}, 2
    s_mul_i32 s{sM0V}, s{sW}, 3584
    v_lshlrev_b32 v{vAK}, 4, v{vL}
    v_add_u32 v{vVG}, s{sM0V}, v{vAK}
    s_add_u32 s{sM0V}, s{sM0V}, {VB[0]}
    s_lshl_b32 s{sM0K}, s{sW}, 12
    s_mov_b32 s{sK+2}, {HEADB}
    s_mov_b32 s{sK+3}, 0x20000
    s_mov_b32 s{sX+2}, 14336
    s_mov_b32 s{sX+3}, 0x20000
    s_add_u32 s{sMODE}, s{sM0K}, {QB}
    s_lshr_b32 s{sD}, s{sH}, 1
    s_lshl_b32 s{sD}, s{sD}, 2""")

    def setup_a(a):
        a.note("""selection matrices of the bf16 -> fp32 unpacking MFMAs; row and fragment addresses""")
        a(f"""v_mov_b32 v{R+15}, {hex(K_PAD[1])}
        s_mov_b32 vcc_lo, 0xaaaaaaaa
        s_mov_b32 vcc_hi, 0xaaaaaaaa
        v_cndmask_b32 v{t1}, v{R+15}, 1.0, vcc""")
        for p in range(8):
            lo = 3 << (8 * (p >> 1) + 2 * (p & 1))
            a(f"s_mov_b32 vcc_lo, {hex(lo)}")
            a(f"s_mov_b32 vcc_hi, {hex(lo << 4)}")
            a(f"v_cndmask_b32 v{A1 + p}, 0, v{t1}, vcc")
        a(f"""v_mov_b32 v{R+14}, 0
        v_lshrrev_b32 v{t0}, 5, v0
        v_mul_u32_u24 v{t0}, 1536, v{t0}
        v_lshl_add_u32 v{vKW}, v0, 4, v{t0}""")

    if opts.get("prek", 1) == 1:
        setup_a(a)
    a("s_waitcnt lgkmcnt(0)")
    stamp(a, opts, "karg")
    a(f"""s_add_u32 s{sK}, s6, s{sA}
    s_addc_u32 s{sK+1}, s7, 0""")
    dma4(a, sM0K, vVG, sK, 0, exact=m4)
    if opts.get("prek", 1) == 2:
        setup_a(a)
    a(f"""s_cmp_eq_u32 s{sKS}, 0
    s_cbranch_scc0 L_noq
    s_add_u32 s{sX}, s4, s{sB}
    s_addc_u32 s{sX+1}, s5, 0""")
    dma4(a, sMODE, vVG, sX, 0, exact=m4)
    a.label("L_noq")
    a(f"""s_add_u32 s{sV}, s8, s{sA}
    s_addc_u32 s{sV+1}, s9, 0
    s_mov_b32 s{sV+2}, {HEADB}
    s_mov_b32 s{sV+3}, 0x20000""")
    if touch:
        a.note("""each of the head's 16 workgroups pulls a different 1/16 of the first V chunk into L2""")
        a(f"""s_cmp_eq_u32 s{sW}, 4
        s_cbranch_scc0 L_notouch
        s_mul_i32 s{sP}, s{sC}, 1792
        v_lshlrev_b32 v{t0}, 7, v{vL}
        s_mov_b64 exec, 0x3fff
        buffer_load_dword v{vJUNK}, v{t0}, s[{sV}:{sV+3}], s{sP} offen
        s_mov_b64 exec, -1""")
        a.label("L_notouch")
    a(f"s_load_dword s{sT}, s[10:11], s{sD}")
    stamp(a, opts, "issued")
    if not opts.get("prek", 1):
        setup_a(a)
    a(f"""s_add_u32 s{sO}, s12, s{sB}
    s_addc_u32 s{sO+1}, s13, 0
    s_mov_b32 s{sO+2}, 14336
    s_mov_b32 s{sO+3}, 0x20000
    s_mov_b32 s{sG}, s14
    s_mov_b32 s{sG+1}, s15
    s_mov_b32 s{sG+2}, 256
    s_mov_b32 s{sG+3}, 0x20000
    s_mul_i32 s{sA}, s{sH}, {WSH}
    s_add_u32 s{sX}, s{sWS}, s{sA}
    s_addc_u32 s{sX+1}, s{sWS+1}, 0
    s_mov_b32 s{sX+2}, {WSH}
    v_mov_b64 {vr(z, 2)}, 0
    v_mov_b64 {vr(z + 2, 2)}, 0
    s_and_b32 s{sPUB}, s{sC}, 1
    s_cmp_eq_u32 s{sPUB}, s{sKS}
    s_cselect_b32 s{sPUB}, 1, 0
    s_cmp_ge_u32 s{sC}, {first_pub(opts)}
    s_cselect_b32 s{sPUB}, s{sPUB}, 0
    v_mfma_f32_32x32x16_bf16 {vr(O[0], 16)}, {vr(z, 4)}, {vr(z, 4)}, 0
    s_lshr_b32 s{sKOFF}, s{sC}, 1
    s_max_u32 s{sKOFF}, s{sKOFF}, 1
    s_mul_i32 s{sVOFF}, s{sKOFF}, {CHB}
    s_lshl_b32 s{sKOFF}, s{sKOFF}, 15
    s_lshr_b32 s{sB}, s{sW}, 1
    s_lshl_b32 s{sA}, s{sB}, 13
    v_add_u32 v{vAK}, s{sA}, v{vAK}
    v_mfma_f32_32x32x16_bf16 {vr(O[2], 16)}, {vr(z, 4)}, {vr(z, 4)}, 0
    s_mul_i32 s{sA}, s{sB}, {4 * 1792}
    s_add_u32 s{sA}, s{sA}, {VB[0]}
    v_and_b32 v{t0}, 15, v0
    v_bfe_u32 v{t1}, v0, 2, 2
    v_mad_u32_u24 v{t0}, v{t1}, 3, v{t0}
    v_lshrrev_b32 v{t1}, 4, v{vL}
    v_lshl_add_u32 v{t0}, v{t1}, 2, v{t0}
    v_lshrrev_b32 v{t1}, 5, v{vL}
    v_mad_u32_u24 v{t0}, v{t1}, 48, v{t0}
    v_mfma_f32_32x32x16_bf16 {vr(O[1], 16)}, {vr(z, 4)}, {vr(z, 4)}, 0
    v_lshl_add_u32 v{vAV}, v{t0}, 3, s{sA}
    v_mov_b32 v{vDV}, {PAR}
    v_lshlrev_b32 v{t1}, 6, v{t1}
    v_sub_u32 v{t1}, {ONES + 224}, v{t1}
    s_mov_b32 vcc_lo, 0x88880000
    s_mov_b32 vcc_hi, 0x88880000
    v_cndmask_b32 v{vAV}, v{vAV}, v{t1}, vcc
    v_cndmask_b32 v{vDV}, v{vDV}, v{R+14}, vcc
    v_mfma_f32_32x32x16_bf16 {vr(O[3], 16)}, {vr(z, 4)}, {vr(z, 4)}, 0
    v_mov_b32 v{vIDX}, 0xdddddddd
    v_mfma_f32_32x32x16_bf16 {vr(SS[1][0], 16)}, {vr(z, 4)}, {vr(z, 4)}, 0
    v_mfma_f32_32x32x16_bf16 {vr(SS[1][1], 16)}, {vr(z, 4)}, {vr(z, 4)}, 0
    s_cmp_eq_u32 s{sKS}, 0
    s_cbranch_scc1 L_two""")

    def temperature(a):
        a(f"""s_bitcmp1_b32 s{sH}, 0
        s_cselect_b32 s{sA}, 0, 16
        s_lshl_b32 s{sT}, s{sT}, s{sA}
        s_and_b32 s{sT}, s{sT}, 0xffff0000
        s_and_b32 s{sA}, s{sT}, 0x7fffffff
        s_cmp_gt_u32 s{sA}, {hex(T_LIMIT)}
        s_cselect_b32 s{sSLOW}, 1, s{sFORCE}""")

    a(f"""v_subrev_u32 v{t2}, 14336, v{vVG}
    s_sub_u32 s{sMODE}, s{sM0V}, 14336
    s_cmp_eq_u32 s{sW}, 6
    s_cbranch_scc0 L_noones
    v_lshrrev_b32 v{t0}, 3, v{vL}
    v_mul_u32_u24 v{t0}, 1792, v{t0}
    v_bfe_u32 v{t1}, v0, 2, 1
    v_mul_u32_u24 v{t1}, 896, v{t1}
    v_add_u32 v{t0}, v{t0}, v{t1}
    v_bfe_u32 v{t1}, v0, 1, 1
    v_mul_u32_u24 v{t1}, 224, v{t1}
    v_add_u32 v{t0}, v{t0}, v{t1}
    v_and_b32 v{t1}, 1, v0
    v_lshl_add_u32 v{t0}, v{t1}, 6, v{t0}
    v_add_u32 v{t0}, {ONES + 160}, v{t0}
    v_mov_b32 v{t1}, {FLAG}
    v_mov_b32 v{D[0]}, 0x3f80
    v_mov_b32 v{D[0] + 1}, 0
    ds_write_b64 v{t0}, {vr(D[0], 2)}
    ds_write_b64 v{t1}, {vr(z, 2)}""")
    a.label("L_noones")
    a(f"v_mad_u32_u24 v{t0}, v{vL}, 56, s{sM0K}")
    stamp(a, opts, "setup")
    vearly = opts.get("vearly", 0)
    if vearly:
        dma4(a, sMODE, t2, sV, 0, exact=m4)
    if vearly == 2:
        dma4(a, sM0V, vVG, sV, 0, exact=m4)
    if touch:
        a(f"""s_waitcnt vmcnt({4 * vearly + 1})
        s_cmp_eq_u32 s{sW}, 4
        s_cbranch_scc1 L_kready""")
    a(f"s_waitcnt vmcnt({4 * vearly})")
    a.label("L_kready")
    stamp(a, opts, "kdata")
    read_rows(a, R, t0)

    def load_v(a):
        if not vearly:
            dma4(a, sMODE, t2, sV, 0, exact=m4)
        if vearly < 2:
            dma4(a, sM0V, vVG, sV, 0, exact=m4)
    vpos = opts.get("vpos", 0)
    if vpos == 0:
        load_v(a)
    a("s_waitcnt lgkmcnt(0)")
    temperature(a)
    normalise(a, R, hex(K_PAD[0]), vKW, mid=load_v if vpos == 1 and vearly < 2 else None)
    if not opts.get("bar2", 0):
        a("s_waitcnt vmcnt(0)")
    a("s_branch L_join")
    a.label("L_two")
    a(f"""v_mov_b32 v{RQ+14}, 0
    v_mad_u32_u24 v{t0}, v{vL}, 56, s{sM0K}
    v_add_u32 v{t2}, {QB}, v{t0}
    v_add_u32 v{t3}, {QB}, v{vKW}""")
    stamp(a, opts, "setup")
    a("s_waitcnt vmcnt(4)")
    stamp(a, opts, "kdata")
    read_rows(a, R, t0)
    a("s_waitcnt lgkmcnt(0)")

    def scale_setup(a):
        temperature(a)
        qa, qb = Q_PAD[opts.get("M", 1536)]
        a(f"""s_cmp_eq_u32 s{sSLOW}, 1
        s_cselect_b32 s{sD}, 0, {hex(qa)}
        s_cselect_b32 s{sA}, 0, {hex(qb)}
        s_cselect_b64 vcc, -1, 0
        v_mov_b32 v{t4}, {hex(LOG2E)}
        v_mul_f32 v{t4}, s{sT}, v{t4}
        v_mov_b32 v{RQ+15}, s{sA}
        v_cndmask_b32 v{t4}, v{t4}, 1.0, vcc""")

    def second_rows(a):
        stamp(a, opts, "mid")
        a("s_waitcnt vmcnt(0)")
        stamp(a, opts, "qdata")
        read_rows(a, RQ, t2)
    if opts.get("qlate", 1):
        normalise(a, R, hex(K_PAD[0]), vKW, mid=scale_setup)
        second_rows(a)
        a("s_waitcnt lgkmcnt(0)")
    else:
        normalise(a, R, hex(K_PAD[0]), vKW, mid=scale_setup, mid2=second_rows)
        a("s_waitcnt lgkmcnt(4)")
    stamp(a, opts, "n0")
    normalise(a, RQ, f"s{sD}", t3, scale=t4, st=lambda n: stamp(a, opts, n))
    stamp(a, opts, "n5")
    a.label("L_join")
    stamp(a, opts, "lump2")
    a(f"s_mov_b32 s{sPAR}, {PAR}")
    a(f"""v_lshl_add_u32 v{vKS}, v{vL}, 4, s{sM0K}
    s_and_b32 s{sA}, s{sW}, 1
    s_lshl_b32 s{sA}, s{sA}, 13
    s_add_u32 s{sA}, s{sA}, {QB}
    v_lshl_add_u32 v{t0}, v{vL}, 4, s{sA}
    s_mov_b32 s{sMODE}, 0
    s_mov_b32 s{sRAW}, 0
    s_mov_b32 s{sI}, 0
    s_waitcnt lgkmcnt(0)""")
    stamp(a, opts, "prebar")
    a("s_barrier")

    def rdQ(t, f):
        a(f"ds_read_b128 {vr(QF[t][f], 4)}, v{t0} offset:{2048 * t + 1024 * f}")
    a(rdK(0, 0)); rdQ(0, 0); a(rdK(1, 0)); rdQ(0, 1); rdQ(1, 0); rdQ(1, 1)
    rdQ(2, 0); rdQ(3, 0); rdQ(2, 1); rdQ(3, 1)
    a(f"s_cmp_eq_u32 s{sSLOW}, 1")
    a("s_cbranch_scc1 L_slow")
    a(rdV(0, 0, 0))
    a("s_waitcnt lgkmcnt(9)")
    a(qk(0, 0, 0))
    a("s_waitcnt lgkmcnt(7)")
    a(qk(0, 0, 1))
    a("s_waitcnt lgkmcnt(5)")
    a(qk(0, 1, 0))
    a(qk(0, 1, 1))
    a("s_nop 7")
    stamp(a, opts, "loop")


PRIO_POINTS = [[(4, 4), (5, 4), (6, 0)], [(4, 0), (5, 0), (5, 7)], [(3, 7), (5, 0), (6, 0)], [(5, 0), (5, 6), (6, 0)],
               [(1, 7), (3, 7), (5, 7)], [(1, 7), (3, 0), (4, 0)], [(2, 0), (3, 4), (4, 4)], [(0, 7), (2, 7), (4, 4)],
               [(1, 7), (4, 7), (5, 7)], [(1, 7), (5, 0), (6, 0)]]


def dma1(p, vaddr, srd, soff, flags=""):
    return f"buffer_load_dwordx4 v{vaddr}, s[{srd}:{srd+3}], s{soff} offen offset:{1024 * p}{flags} lds"


def iteration(a, opts, kind):
    poll_at = opts.get("poll", 2)
    kdma_at = opts.get("kdma", 4)
    lump0_at = opts.get("lump0", 4)
    lump_at = opts.get("lump", 5)
    t0, t1 = vT[2], vT[3]
    sl = {j: {} for j in range(8)}

    def put(j, g, ins):
        sl[j].setdefault(g, []).append(ins)

    groups = {"first": [("K", 0), ("V", 2)], "hook": [("V", 0)], "lean": [("V", 0), ("G", 2)]}[kind]
    early = opts.get("early", 1) and kind == "lean"
    for what, j0 in groups:
        if early:
            spots = [(0, 0), (0, 4), (0, 6), (0, 6), (0, 7)] if what == "V" else [(1, 0), (1, 2), (1, 3), (1, 4), (1, 5)]
        else:
            spots = [(j0, 0), (j0, 4), (j0, 6), (j0 + 1, 4), (j0 + 1, 6)]
        put(*spots[0], f"s_xor_b32 m0, s{sM0V if what == 'V' else sM0K}, s{sPAR}")
        for p in range(4):
            ins = {"K": dma1(p, vVG, sK, sVOFF), "V": dma1(p, vVG, sV, sVOFF), "G": dma1(p, vKS, sX, sKOFF, " sc1")}[what]
            put(*spots[p + 1], ins)
    if kind == "first":
        put(0, 1, "s_waitcnt lgkmcnt(3)")
    for lvl, (j, g) in zip((2, 1, 0), PRIO_POINTS[opts.get("pp", 2) if kind == "lean" else opts.get({"first": "pp0", "hook": "pph"}[kind], 4 if kind == "hook" else 1)]):
        put(j, g, f"s_setprio {lvl}")
    if kind == "first" and opts.get("pp0", 1) >= 5:
        put(5, 7, "s_setprio 0")
    put(6, 4, f"s_add_u32 s{sKOFF}, s{sKOFF}, 32768")
    put(6, 6, f"s_add_u32 s{sVOFF}, s{sVOFF}, {CHB}")
    put(6, 6, f"s_xor_b32 s{sPAR}, s{sPAR}, {PAR}")
    put(7, 0, f"s_cmp_eq_u32 s{sKOFF}, {8 * 32768}")
    put(7, 4, f"s_cselect_b32 s{sKOFF}, 32768, s{sKOFF}")
    put(7, 6, f"s_cselect_b32 s{sVOFF}, {CHB}, s{sVOFF}")
    if kind == "lean" and opts.get("nojunk", 1):
        put(5, 4, f"s_cmp_eq_u32 s{sI}, 6")
        put(5, 6, f"s_cselect_b32 s{sA}, 0x40000000, 0")
        put(7, 6, f"s_or_b32 s{sKOFF}, s{sKOFF}, s{sA}")
        put(7, 7, f"s_or_b32 s{sVOFF}, s{sVOFF}, s{sA}")

    def sync(a):
        a("s_waitcnt vmcnt(0) lgkmcnt(0)")
        a("s_barrier")
        a("s_setprio 3")
        a(f"v_xor_b32 v{vAK}, {PAR}, v{vAK}")
        a(f"v_xor_b32 v{vAV}, v{vDV}, v{vAV}")

    for j in range(8):
        step(a, j, sl[j], sync if j == 6 else None)
        stamp_it(a, opts, f"e{j}", kind)
        if kind == "first":
            if j == lump0_at:
                a("s_waitcnt vmcnt(4)")
                lump(a, publish=True)
                if opts.get("pp0", 1) >= 5:
                    a("s_setprio 1")
            if j == 6:
                a.note("every publishing wave's stores completed before the barrier: one lane signals")
                a(f"""s_cmp_eq_u32 s{sW}, 0
                s_cselect_b32 s{sA}, s{sC}, 0
                s_cmp_ge_u32 s{sA}, {first_pub(opts)}
                s_cbranch_scc0 L_signalled
                s_and_b32 s{sA}, s{sC}, 14
                s_lshl_b32 s{sA}, 1, s{sA}
                v_mov_b32 v{t1}, s{sA}
                v_mov_b32 v{t0}, 0
                s_lshl_b32 s{sA}, s{sH}, 4
                s_mov_b64 exec, 1
                buffer_atomic_add v{t1}, v{t0}, s[{sG}:{sG+3}], s{sA} offen sc1
                s_mov_b64 exec, -1""")
                a.label("L_signalled")
        if kind == "hook":
            if j == 0:
                a.note("after a missed hand-off wave 0 re-reads the arrival word at the memory side")
                a(f"""s_cmp_eq_u32 s{sW}, 0
                s_cselect_b32 s{sA}, s{sI}, 0
                s_cmp_ge_u32 s{sA}, 2
                s_cbranch_scc1 L_repoll""")
                a.label("L_repolled")
            if j == poll_at:
                a.note("wave 0 copies the head's arrival word into LDS")
                a(f"""s_cmp_eq_u32 s{sW}, 0
                s_cbranch_scc0 L_polled
                s_cmp_eq_u32 s{sI}, 1
                s_cbranch_scc0 L_relay
                s_mov_b32 m0, {FLAG}
                s_lshl_b32 s{sA}, s{sH}, 4
                v_mov_b32 v{t0}, 0
                s_mov_b64 exec, 1
                {"s_nop 0" if opts.get("x_miss") else f"buffer_load_dword v{t0}, s[{sG}:{sG+3}], s{sA} offen sc1 lds"}
                s_mov_b64 exec, -1""")
                a.label("L_polled")
            if j == kdma_at:
                a.note("next chunk: from d_ws if both of its publishers have arrived")
                a(f"""v_mov_b32 v{t0}, {FLAG}
                ds_read_b32 v{t0}, v{t0}
                s_xor_b32 m0, s{sM0K}, s{sPAR}
                s_lshr_b32 s{sB}, s{sKOFF}, 14
                s_add_u32 s{sB}, s{sB}, 1
                s_waitcnt lgkmcnt(0)
                v_readfirstlane_b32 s{sA}, v{t0}
                s_cmp_eq_u32 s{sA}, {hex(0x7fffffff if opts.get("x_self") else all_ready(opts))}
                s_cselect_b32 s{sMODE}, 1, 0
                s_bitcmp1_b32 s{sA}, {0 if opts.get("x_self") else "s%d" % sB}
                s_cbranch_scc0 L_raw""")
                for p in range(4):
                    a(dma1(p, vKS, sX, sKOFF, " sc1"))
                a.label("L_kdone")
            if j == lump_at:
                a(f"s_cmp_eq_u32 s{sRAW}, 1")
                a("s_cbranch_scc1 L_lump")
                a.label("L_lumped")
        if j == 6 and kind != "first":
            a(f"s_cmp_eq_u32 s{sI}, 7")
            a("s_cbranch_scc1 L_last")
        stamp_it(a, opts, f"h{j}", kind)
    if opts.get("clk"):
        clock_sample(a, f"s{sI}")


def clock_sample(a, slot):
    a(f"""s_memtime s[60:61]
    s_memrealtime s[62:63]
    s_lshl_b32 s64, s2, 3
    s_add_u32 s64, s64, s{sW}
    s_lshl_b32 s64, s64, 7
    s_lshl_b32 s65, {slot}, 3
    s_add_u32 s64, s64, s65
    s_add_u32 s64, s64, 0x1000000
    s_mov_b32 s68, s{sWS}
    s_mov_b32 s69, s{sWS+1}
    s_mov_b32 s70, 0x2000000
    s_mov_b32 s71, 0x20000
    s_waitcnt lgkmcnt(0)
    v_mov_b32 v246, s60
    v_mov_b32 v247, s62
    v_mov_b32 v245, 0
    buffer_store_dwordx2 v[246:247], v245, s[68:71], s64 offen""")


def main_loop(a, opts):
    if opts.get("clk"):
        clock_sample(a, "8")
        a("""s_getreg_b32 s60, hwreg(HW_REG_XCC_ID)
        s_add_u32 s64, s64, 8
        v_mov_b32 v246, s60
        buffer_store_dwordx2 v[246:247], v245, s[68:71], s64 offen""")
    a("s_setprio 3")
    iteration(a, opts, "first")
    a(f"s_mov_b32 s{sI}, 1")
    a.label("L_hook")
    iteration(a, opts, "hook")
    a(f"""s_add_u32 s{sI}, s{sI}, 1
    s_cmp_eq_u32 s{sMODE}, 0
    s_cbranch_scc1 L_hook""")
    a.raw(".p2align 6")
    a.label("L_lean")
    iteration(a, opts, "lean")
    a(f"s_add_u32 s{sI}, s{sI}, 1")
    a("s_branch L_lean")
    a.label("L_last")
    t0 = vT[0]
    e = [f"v_exp_f32 v{SS[1][x] + 8 * h + i}, v{SS[1][x] + 8 * h + i}" for h in range(2) for x in range(2) for i in range(8)]
    w = [send(t, p) for t in range(2) for p in range(4)]
    if opts.get("skipown", 0):
        a(f"s_lshr_b32 s{sD}, s{sW}, 1")
        for n in range(8):
            w[n] = (f"s_cmp_eq_u32 s{sD}, {n >> 2}\n" if n % 4 == 0 else "") + f"s_cbranch_scc1 L_kept{n}\n{w[n]}\n@L_kept{n}"
    a(f"s_lshl_b32 s{sB}, s{sW}, 14")
    a(f"v_lshl_add_u32 v{t0}, v{vL}, 4, s{sB}")
    seq = ([pv(0, 0, 1)] + e[0:4] + [pv(0, 1, 1)] + e[4:12] + [w[0]] + e[12:15] + [w[1]] + e[15:18] + [pv(1, 0, 0), w[2]]
           + e[18:22] + [pv(1, 1, 0), w[3]] + e[22:24] + [w[4]] + e[24:26] + [pv(1, 0, 1), w[5]] + e[26:29] + [w[6]]
           + e[29:32] + [w[7], "s_nop 0", pv(1, 1, 1)])
    for ins in seq:
        a(ins)


def send(t, p):
    return f"ds_write_b128 v{vT[0]}, {vr(O[t] + 4 * p, 4)} offset:{4096 * t + 1024 * p}"


def lump(a, publish):
    t0, t1 = vT[2], vT[0]
    a(f"s_add_u32 s{sA}, s{sM0K}, s{sPAR}")
    a(f"v_mad_u32_u24 v{t0}, v{vL}, 56, s{sA}")
    a(f"v_add_u32 v{t1}, s{sPAR}, v{vKW}")
    read_rows(a, R, t0)
    a("s_waitcnt lgkmcnt(0)")
    normalise(a, R, hex(K_PAD[0]), t1)
    if publish:
        a(f"s_cmp_eq_u32 s{sPUB}, 1")
        a("s_cbranch_scc0 L_published")
        for p in range(4):
            a(f"buffer_store_dwordx4 {vr(R + 4 * p, 4)}, v{vKW}, s[{sX}:{sX+3}], s{sKOFF} offen offset:{piece_off(p)} sc1")
        a.label("L_published")


def side_blocks(a, opts):
    a.label("L_raw")
    a(f"s_mov_b32 s{sRAW}, 1")
    for p in range(4):
        a(dma1(p, vVG, sK, sVOFF))
    a("s_branch L_kdone")
    a.label("L_lump")
    a(f"s_mov_b32 s{sRAW}, 0")
    a("s_waitcnt vmcnt(0)")
    lump(a, publish=False)
    a("s_branch L_lumped")
    t0 = vT[2]
    a.label("L_repoll")
    a(f"""s_lshl_b32 s{sA}, s{sH}, 4
    v_mov_b32 v{t0}, 0
    v_mov_b32 v{vPOLL}, 0
    s_mov_b64 exec, 1
    buffer_atomic_add v{vPOLL}, v{t0}, s[{sG}:{sG+3}], s{sA} offen sc0 sc1
    s_mov_b64 exec, -1
    s_branch L_repolled""")
    a.label("L_relay")
    a(f"""v_mov_b32 v{t0}, {FLAG}
    s_waitcnt vmcnt(0)
    s_mov_b64 exec, 1
    ds_write_b32 v{t0}, v{vPOLL}
    s_mov_b64 exec, -1
    s_branch L_polled""")


def epilogue(a, opts):
    a.label("L_epi")
    stamp(a, opts, "done")
    t0, t1, t2 = vT[0:3]
    l0, l1 = vT[4], vT[3]
    own, tot = D[0], SS[0][0]
    part = [SS[0][0], SS[0][1], SS[1][0]]
    src = [vT[5], vT[6], t1]
    a(f"""s_lshr_b32 s{sD}, s{sW}, 1
    s_lshl_b32 s{sA}, s{sD}, 12
    s_add_u32 s{sB}, s{sB}, s{sA}
    v_and_b32 v{t2}, 31, v0
    v_mul_u32_u24 v{t2}, 56, v{t2}
    v_bfe_u32 v{l1}, v0, 5, 1
    v_lshl_add_u32 v{t2}, v{l1}, 3, v{t2}
    v_add_u32 v{t2}, s{sB}, v{t2}
    v_lshl_add_u32 v{vAK}, v{vL}, 4, s{sB}
    v_xor_b32 v{src[0]}, 0x8000, v{vAK}
    v_xor_b32 v{src[1]}, 0x10000, v{vAK}
    v_xor_b32 v{src[2]}, 0x18000, v{vAK}
    s_and_b32 s{sA}, s{sW}, 1
    s_lshl_b32 s{sA}, s{sA}, 2
    s_add_u32 s{sA}, s{sA}, s{sD}
    s_mul_i32 s{sA}, s{sA}, {32 * 56}
    s_cmp_eq_u32 s{sD}, 1
    s_cbranch_scc1 L_send1
    s_cmp_eq_u32 s{sD}, 2
    s_cbranch_scc1 L_send2
    s_cmp_eq_u32 s{sD}, 3
    s_cbranch_scc1 L_send3""")
    for k in range(4):
        if k:
            a.label(f"L_send{k}")
        ws = [send(t, p) for t in (2, 3) if t != k for p in range(4)]
        for n in range(8):
            if n < len(ws):
                a(ws[n])
            a(f"v_mov_b64 {vr(own + 2 * n, 2)}, {vr(O[k] + 2 * n, 2)}")
        if k < 3:
            a("s_branch L_sent")
    a.label("L_sent")
    a("s_waitcnt lgkmcnt(0)")
    stamp(a, opts, "sent")
    a("s_barrier")
    order = (3, 0, 1, 2)
    for p in order:
        for k in range(3):
            a(f"ds_read_b128 {vr(part[k] + 4 * p, 4)}, v{src[k]} offset:{1024 * p}")
    extra = {0: [f"v_mov_b32 v{l0}, v{tot + 12}", f"v_mov_b32 v{l1}, v{tot + 12}"], 1: [f"v_permlane32_swap_b32 v{l0}, v{l1}"],
             2: [f"v_rcp_f32 v{l1}, v{l1}"], 3: []}
    for n, p in enumerate(order):
        a(f"s_waitcnt lgkmcnt({11 - 3 * n})")
        for i in (0, 2):
            a(f"v_pk_add_f32 {vr(tot + 4 * p + i, 2)}, {vr(part[0] + 4 * p + i, 2)}, {vr(own + 4 * p + i, 2)}")
        a(f"s_waitcnt lgkmcnt({9 - 3 * n})")
        for i in (0, 2):
            a(f"v_pk_add_f32 {vr(part[1] + 4 * p + i, 2)}, {vr(part[1] + 4 * p + i, 2)}, {vr(part[2] + 4 * p + i, 2)}")
        for i in (0, 2):
            a(f"v_pk_add_f32 {vr(tot + 4 * p + i, 2)}, {vr(tot + 4 * p + i, 2)}, {vr(part[1] + 4 * p + i, 2)}")
        for ins in extra[n]:
            a(ins)
    for g in range(4):
        for i in (0, 2):
            a(f"v_pk_mul_f32 {vr(D[1] + 4 * g + i, 2)}, {vr(tot + 4 * g + i, 2)}, {vr(l1, 2)} op_sel_hi:[1,0]")
        if g:
            a(f"ds_write_b64 v{t2}, {vr(R + 2 * g - 2, 2)} offset:{16 * g - 16}")
        for i in (0, 1):
            a(f"v_cvt_pk_bf16_f32 v{R + 2 * g + i}, v{D[1] + 4 * g + 2 * i}, v{D[1] + 4 * g + 2 * i + 1}")
    a(f"""s_mov_b32 exec_hi, 0
    ds_write_b64 v{t2}, {vr(R + 6, 2)} offset:48
    s_mov_b32 exec_hi, -1
    v_lshlrev_b32 v{t1}, 4, v{vL}
    ds_read_b128 {vr(KF, 4)}, v{vAK}
    ds_read_b128 {vr(KF + 4, 4)}, v{vAK} offset:1024
    s_waitcnt lgkmcnt(1)
    buffer_store_dwordx4 {vr(KF, 4)}, v{t1}, s[{sO}:{sO+3}], s{sA} offen
    s_mov_b32 exec_hi, 0xffff
    s_waitcnt lgkmcnt(0)
    buffer_store_dwordx4 {vr(KF + 4, 4)}, v{t1}, s[{sO}:{sO+3}], s{sA} offen offset:1024
    s_mov_b32 exec_hi, -1""")
    for i in range(16):
        a(f"v_max_f32 v{tot + i}, abs(v{tot + i}), abs(v{own + i})")
    a(f"v_min3_f32 v{l0}, v{tot}, v{tot + 1}, v{tot + 2}")
    for i in range(3, 13, 2):
        a(f"v_min3_f32 v{l0}, v{l0}, v{tot + i}, v{tot + i + 1}")
    a("s_mov_b32 exec_hi, 0")
    a(f"v_min3_f32 v{l0}, v{l0}, v{tot + 13}, v{tot + 14}")
    a(f"v_min_f32 v{l0}, v{tot + 15}, v{l0}")
    a(f"""s_mov_b32 exec_hi, -1
    v_cmp_gt_f32 vcc, {hex(O_MIN)}, v{l0}
    v_mov_b32 v{t0}, {FLAG + 4}
    v_mov_b32 v{t1}, 1
    s_cbranch_vccz L_final
    ds_write_b32 v{t0}, v{t1}
    s_waitcnt lgkmcnt(0)""")
    a.label("L_final")
    a(f"""s_barrier
    ds_read_b32 v{t0}, v{t0}
    s_waitcnt lgkmcnt(0)
    v_readfirstlane_b32 s{sA}, v{t0}
    s_cmp_gt_u32 s{sA}, s{sSLOW}
    s_cbranch_scc1 L_redo""")
    if opts.get("stamps"):
        a("s_mov_b64 exec, -1")
        stamp(a, opts, "stored")
        a("s_waitcnt vmcnt(0)")
        stamp(a, opts, "end")
        dbg = opts["stamps"] == 2
        a(f"""s_memrealtime s[76:77]
        s_load_dwordx2 s[4:5], s[0:1], {40 if dbg else 48}
        s_waitcnt lgkmcnt(0)
        s_mov_b32 s6, {64 if dbg else 0x2000000}
        s_mov_b32 s7, 0x20000
        s_lshl_b32 s8, s2, 3
        s_add_u32 s8, s8, s{sW}""")
        if dbg:
            a("""s_cmp_eq_u32 s8, 2047
            s_cselect_b32 s9, 1, 2
            s_cmp_eq_u32 s8, 0
            s_cselect_b32 s8, 0, s9""")
        a("s_lshl_b32 s8, s8, 5")
        if not dbg:
            a("s_add_u32 s8, s8, 0x1000000")
        a("""v_mov_b32 v0, 0
        v_mov_b32 v1, s74
        buffer_store_dword v1, v0, s[4:7], s8 offen""")
        for n in range(1, 7):
            if opts["slots"][n] == "mode":
                a(f"s_mov_b32 s9, s{sP}")
            else:
                a(f"s_sub_u32 s9, s{sTS + 2 * n}, s{sTS}")
            a("v_mov_b32 v1, s9")
            a(f"buffer_store_dword v1, v0, s[4:7], s8 offen offset:{4 * n}")
        a("s_sub_u32 s9, s76, s74")
        a("v_mov_b32 v1, s9")
        a("buffer_store_dword v1, v0, s[4:7], s8 offen offset:28")
    if opts.get("hold"):
        if opts.get("holdraw"):
            a(f"""s_mul_i32 s8, s{sP}, 400
            s_add_u32 s74, s74, s8""")
        if opts.get("span"):
            a("""s_waitcnt lgkmcnt(0)
            s_sub_u32 s8, s60, s62
            s_lshl_b32 s8, s8, 2
            s_add_u32 s74, s74, s8""")
        if opts.get("holdk"):
            a(f"""s_waitcnt lgkmcnt(0)
            s_sub_u32 s8, s60, s74
            s_lshl_b32 s8, s8, {0 if opts["holdk"] == 2 else 2}
            s_add_u32 s74, s74, s8""")
        a.label("L_hold")
        a(f"""s_sleep 4
        s_memrealtime s[76:77]
        s_waitcnt lgkmcnt(0)
        s_sub_u32 s9, s76, s74
        s_cmp_lt_i32 s9, {opts["hold"]}
        s_cbranch_scc1 L_hold""")
    a.label("L_end")
    a("s_endpgm")


def slow_path(a):
    x0 = vT[2]
    a.label("L_redo")
    a(f"""s_mov_b32 s{sFORCE}, 1
    s_waitcnt vmcnt(0)
    s_barrier
    s_branch L_start""")
    a.label("L_slow")
    for t in range(4):
        a(f"v_mov_b32 v{MXS[t]}, 0xff800000")
    a(f"s_mov_b32 s{sP}, 0")
    a.label("L_slow_pass")
    a(f"s_mov_b32 s{sVOFF}, 0")
    a.label("L_slow_chunk")
    a("s_waitcnt vmcnt(0) lgkmcnt(0)")
    a("s_barrier")
    dma4(a, sM0K, vVG, sK, f"s{sVOFF}")
    dma4(a, sM0V, vVG, sV, f"s{sVOFF}")
    a(f"v_mad_u32_u24 v{x0}, v{vL}, 56, s{sM0K}")
    a("s_waitcnt vmcnt(0)")
    read_rows(a, R, x0)
    a("s_waitcnt lgkmcnt(0)")
    normalise(a, R, hex(K_PAD[0]), vKW)
    a("s_waitcnt lgkmcnt(0)")
    a("s_barrier")
    for j in range(4):
        a(rdK(0, j)); a(rdK(1, j))
        for which in range(2):
            for part in range(2):
                a(rdV(which, part, j))
        a("s_waitcnt lgkmcnt(0)")
        a(f"s_call_b64 s[{sLINK}:{sLINK+1}], L_slow_tile")
    a(f"""s_add_u32 s{sVOFF}, s{sVOFF}, {CHB}
    s_cmp_lt_u32 s{sVOFF}, {HEADB}
    s_cbranch_scc1 L_slow_chunk
    s_cmp_eq_u32 s{sP}, 1
    s_cbranch_scc1 L_slow_done""")
    for t in range(4):
        a(f"""v_mov_b32 v{x0}, v{MXS[t]}
        s_nop 1
        v_permlane32_swap_b32 v{x0}, v{MXS[t]}
        s_nop 1
        v_max_f32 v{MXS[t]}, v{x0}, v{MXS[t]}""")
    for t in range(4):
        a(f"v_mov_b32 v{D[0] + t}, v{MXS[t]}")
    a(f"""s_barrier
    v_lshlrev_b32 v{x0}, 4, v0
    ds_write_b128 v{x0}, {vr(D[0], 4)}
    s_waitcnt lgkmcnt(0)
    s_barrier""")
    for k in range(1, 4):
        a(f"v_xor_b32 v{x0 + 1}, {2048 * k}, v{x0}")
        a(f"ds_read_b128 {vr(D[0], 4)}, v{x0 + 1}")
        a("s_waitcnt lgkmcnt(0)")
        for t in range(4):
            a(f"v_max_f32 v{MXS[t]}, v{MXS[t]}, v{D[0] + t}")
    a(f"s_mov_b32 s{sP}, 1")
    a("s_branch L_slow_pass")
    a.label("L_slow_done")
    a("s_barrier")
    a(f"s_lshl_b32 s{sB}, s{sW}, 14")
    a(f"v_lshl_add_u32 v{vT[0]}, v{vL}, 4, s{sB}")
    a("s_nop 11")
    for t in range(2):
        for p in range(4):
            a(send(t, p))
    a("s_branch L_epi")
    a.label("L_slow_tile")
    tiles = [(p, x) for p in range(2) for x in range(2)]
    for p, x in tiles:
        a(qk(p, x, 0)); a(qk(p, x, 1))
    a("s_nop 15")
    for p, x in tiles:
        for i in range(16):
            a(f"v_mul_f32 v{SS[p][x] + i}, s{sT}, v{SS[p][x] + i}")
    a(f"s_cmp_eq_u32 s{sP}, 1")
    a("s_cbranch_scc1 L_slow_exp")
    for p, x in tiles:
        for i in range(0, 16, 2):
            a(f"v_max3_f32 v{MXS[2 * p + x]}, v{MXS[2 * p + x]}, v{SS[p][x] + i}, v{SS[p][x] + i + 1}")
    a(f"s_setpc_b64 s[{sLINK}:{sLINK+1}]")
    a.label("L_slow_exp")
    for p, x in tiles:
        for i in range(16):
            v = SS[p][x] + i
            a(f"v_sub_f32 v{v}, v{v}, v{MXS[2 * p + x]}")
            a(f"v_mul_f32 v{v}, {hex(LOG2E)}, v{v}")
            a(f"v_exp_f32 v{v}, v{v}")
    a("s_nop 1")
    for p, x in tiles:
        a(pv(p, x, 0)); a(pv(p, x, 1))
    a(f"s_setpc_b64 s[{sLINK}:{sLINK+1}]")


SLOTS = {0: ["start", "setup", "prebar", "loop", "mode", "done", "end"],
         1: ["start", "karg", "issued", "setup", "kdata", "prebar", "end"],
         2: ["start", "loop", "done", "sent", "stored", "mode", "end"],
         3: ["start", "kdata", "mid", "qdata", "lump2", "prebar", "end"],
         4: ["start", "loop", "e1", "h1", "e3", "h3", "end"],
         5: ["start", "e4", "h4", "e5", "h5", "e6", "end"],
         6: ["start", "e0", "e2", "e4", "e5", "e6", "e7"],
         7: ["start", "loop", "e0", "h0", "e4", "h4", "e6"],
         8: ["start", "e5", "e6", "h6", "e7", "done", "end"],
         9: ["start", "e1", "h1", "e2", "h2", "e3", "h3"],
         10: ["start", "qdata", "n0", "n1", "n2", "n3", "n4"],
         11: ["start", "n3", "n4", "n5", "prebar", "loop", "end"]}


def build(opts):
    opts["slots"] = SLOTS[opts.get("pro", 0)]
    a = Asm()
    name = "standalone__qk_norm__prompt_kernel"
    a.raw(HEADER + DOC + f"; @launch grid=(256,1,1) block=(512,1,1) lds={LDS_BYTES}")
    a.raw('.amdgcn_target "amdgcn-amd-amdhsa--gfx950"\n.text')
    if opts.get("align", 0):
        a.raw(".p2align 12\n.fill 832, 4, 0xbf800000")
    a.raw(f".globl {name}\n.p2align 8\n.type {name},@function\n{name}:")
    prologue(a, opts)
    main_loop(a, opts)
    epilogue(a, opts)
    side_blocks(a, opts)
    slow_path(a)
    txt = a.text()
    if opts.get("stamps") or opts.get("holdraw"):
        txt = txt.replace(f"    s_mov_b32 s{sMODE}, 0\n", f"    s_mov_b32 s{sMODE}, 0\n    s_mov_b32 s{sP}, 0\n")
        txt = txt.replace(f"    s_mov_b32 s{sRAW}, 1\n", f"    s_mov_b32 s{sRAW}, 1\n    s_add_u32 s{sP}, s{sP}, 1\n")
    txt += f""".section .rodata,"a"
.p2align 6
.amdhsa_kernel {name}
  .amdhsa_next_free_vgpr {NVGPR}
  .amdhsa_next_free_sgpr {NSGPR}
  .amdhsa_accum_offset {NVGPR}
  .amdhsa_group_segment_fixed_size 0
  .amdhsa_kernarg_size 56
  .amdhsa_user_sgpr_count 2
  .amdhsa_user_sgpr_kernarg_segment_ptr 1
  .amdhsa_system_sgpr_workgroup_id_x 1
  .amdhsa_float_denorm_mode_32 3
.end_amdhsa_kernel
"""
    return txt


if __name__ == "__main__":
    opts = {}
    out = "standalone__qk_norm__prompt.s"
    for arg in sys.argv[1:]:
        k, _, v = arg.partition("=")
        if k == "out":
            out = v
        else:
            opts[k] = int(v)
    open(out, "w").write(build(opts))
```

```python
import sys

HEADER = """; Kernarg layout for this problem (56 bytes, ptrs only, base s[0:1]):
;   offset   0: d_in[0] q  shape=(1, 16, 4096, 28) dtype=bfloat16 strides=(3670016, 229376, 56, 2) contiguous=True
;   offset   8: d_in[1] k  shape=(1, 16, 4096, 28) dtype=bfloat16 strides=(3670016, 229376, 56, 2) contiguous=True
;   offset  16: d_in[2] v  shape=(1, 16, 4096, 28) dtype=bfloat16 strides=(3670016, 229376, 56, 2) contiguous=True
;   offset  32: d_out     shape=(1, 16, 4096, 28) dtype=bfloat16 (2 bytes/elem)
"""

DOC = """;
; Softmax shift: |logit * log2 e| < 23.2 when |t| <= 16, so the spare k-slots subtract the constant 48.5
;   (as -1536 - 48.5 in the first MFMA and +1536 in the second).  Larger or non-finite t, or unnormalised
;   outputs near the fp32 underflow range, take L_slow: two passes with the true row maximum.
; Normalised K: workgroup c normalises chunk 0 and chunk max(c / 2, 1) itself, stores its 256-key half of the
; LDS: K fragments / raw V, two buffer pairs (0, 0x10000); constant spots; query fragments; two flag words.
"""

HEADB = 229376
CHB = 28672
WSH = 262144
PAR = 0x10000
KB = [0, PAR]
VB = [32768, PAR + 32768]
ONES = 2 * PAR
QB = ONES + 14336
FLAG = QB + 16384
LDS_BYTES = FLAG + 256
T_LIMIT = 0x41800000
K_PAD = (0x3f803f80, 0x00003f80)
Q_PAD = {0: (0xc2420000, 0), 256: (0xc242c380, 0x4380), 1536: (0xc242c4c0, 0x44c0), 3072: (0xc242c540, 0x4540),
         6144: (0xc242c5c0, 0x45c0)}
O_MIN = 0x0c800000
LOG2E = 0x3fb8aa3b
EPS = 0x358637bd

sK, sV, sO, sX, sG = 16, 20, 24, 28, 32
sH, sC, sW, sT, sI, sVOFF, sM0V, sKS = 36, 37, 38, 39, 40, 41, 42, 43
sA, sB, sD = 44, 45, 46
sPAR, sM0K, sKOFF, sRAW, sMODE, sPUB, sSLOW = 47, 48, 49, 50, 51, 52, 53
sWS = 54
sP = 56
sFORCE = 57
sLINK = 58
sTS = 60
NSGPR = 80
vL, vKS, vVG, vKW, vAK, vAV, vDV, vIDX = 1, 2, 3, 4, 5, 6, 7, 8
vT = [9, 10, 11, 12, 13, 14, 15]
RQ = 16
QF = [[16 + 8 * t, 20 + 8 * t] for t in range(4)]
O = [48, 64, 80, 96]
SS = [[112, 128], [144, 160]]
KF, V1, V2 = 176, 184, 188
R = 192
D = [208, 224]
A1, A2 = 240, 244
MX = [12, 13]
vPOLL = 15
vJUNK = SS[0][0]
MXS = [2, 7, 14, 15]
NVGPR = 248


def first_pub(opts):
    return 2


def all_ready(opts):
    return sum(2 << (2 * n) for n in range(first_pub(opts) // 2, 8))


class Asm:
    def __init__(self):
        self.l = []
    def __call__(self, s):
        for x in s.split("\n"):
            x = x.strip()
            self.l.append(x[1:] + ":" if x.startswith("@") else "    " + x)
    def label(self, n):
        self.l.append(n + ":")
    def note(self, s):
        for x in s.strip().split("\n"):
            self.l.append("    ; " + x.strip())
    def raw(self, s):
        self.l.append(s)
    def text(self):
        return "\n".join(self.l) + "\n"


def vr(a, n):
    return f"v[{a}:{a + n - 1}]"


def dma4(a, m0, vaddr, srd, soff, flags="", exact=False):
    a(f"s_mov_b32 m0, s{m0}")
    a("s_nop 0")
    for p in range(4):
        if exact and p == 3:
            a("s_mov_b32 exec_hi, 0")
        a(f"buffer_load_dwordx4 v{vaddr}, s[{srd}:{srd+3}], {soff} offen offset:{1024 * p}{flags} lds")
    if exact:
        a("s_mov_b32 exec_hi, -1")


def read_rows(a, r, vaddr):
    for i in range(3):
        a(f"ds_read2_b64 {vr(r + 4 * i, 4)}, v{vaddr} offset0:{2 * i} offset1:{2 * i + 1}")
    a(f"ds_read_b64 {vr(r + 12, 2)}, v{vaddr} offset:48")


def normalise(a, r, pad, dst, scale=None, mid=None, mid2=None, st=lambda n: None):
    nrm = vT[1]
    acc = MX[0]
    a(f"v_mfma_f32_32x32x16_bf16 {vr(D[0], 16)}, {vr(A1, 4)}, {vr(r, 4)}, 0")
    a(f"v_mfma_f32_32x32x16_bf16 {vr(D[0], 16)}, {vr(A2, 4)}, {vr(r + 4, 4)}, {vr(D[0], 16)}")
    a(f"v_mfma_f32_32x32x16_bf16 {vr(D[1], 16)}, {vr(A1, 4)}, {vr(r + 8, 4)}, 0")
    a(f"v_mfma_f32_32x32x16_bf16 {vr(D[1], 16)}, {vr(A2, 4)}, {vr(r + 12, 4)}, {vr(D[1], 16)}")
    if mid:
        mid(a)
    a(f"v_mov_b32 v{r + 7}, {pad}")
    a("s_nop 2" if mid else "s_nop 8")
    st("n1")
    for i in range(14):
        d = vr(D[0] + 2 * i, 2)
        if i == 0:
            a(f"v_pk_mul_f32 {vr(acc, 2)}, {d}, {d}")
        else:
            a(f"v_pk_fma_f32 {vr(acc, 2)}, {d}, {d}, {vr(acc, 2)}")
    a(f"v_add_f32 v{nrm}, v{acc}, v{acc + 1}")
    st("n2")
    a(f"v_sqrt_f32 v{nrm}, v{nrm}")
    a("s_nop 0")
    a(f"v_add_f32 v{nrm}, {hex(EPS)}, v{nrm}")
    a(f"v_rcp_f32 v{nrm}, v{nrm}")
    a("s_nop 0")
    if scale is not None:
        a(f"v_mul_f32 v{nrm}, v{scale}, v{nrm}")
    st("n3")
    if mid2:
        mid2(a)
    for i in range(14):
        d = D[0] + 2 * i
        a(f"v_pk_mul_f32 {vr(d, 2)}, {vr(d, 2)}, {vr(nrm, 2)} op_sel_hi:[1,0]")
        if i in (5, 8, 12):
            write_frag(a, r, dst, (5, 8, 12).index(i))
        if i >= 1:
            a(f"v_cvt_pk_bf16_f32 v{r + i - 1 + (i > 7)}, v{d - 2}, v{d - 1}")
    a(f"v_cvt_pk_bf16_f32 v{r + 14}, v{D[0] + 26}, v{D[0] + 27}")
    write_frag(a, r, dst, 3)


def piece_off(p):
    return (p >> 1) * 1024 + (p & 1) * 512


def write_frag(a, r, vaddr, p):
    a(f"ds_write_b128 v{vaddr}, {vr(r + 4 * p, 4)} offset:{piece_off(p)}")


def rdK(f, tile):
    return f"ds_read_b128 {vr(KF + 4 * f, 4)}, v{vAK} offset:{(tile % 4) * 2048 + 1024 * f}"


def rdV(which, part, tile):
    base = (V1, V2)[which] + 2 * part
    return f"ds_read_b64_tr_b16 {vr(base, 2)}, v{vAV} offset:{(tile % 4) * 1792 + 896 * which + 224 * part}"


def qk(p, x, f):
    s = SS[p][x]
    c = "0" if f == 0 else vr(s, 16)
    return f"v_mfma_f32_32x32x16_bf16 {vr(s, 16)}, {vr(KF + 4 * f, 4)}, {vr(QF[2 * p + x][f], 4)}, {c}"


def pv(p, x, which):
    return f"v_smfmac_f32_32x32x32_bf16 {vr(O[2 * p + x], 16)}, {vr((V1, V2)[which], 4)}, {vr(SS[p][x] + 8 * which, 8)}, v{vIDX}"


def step(a, n, slots, sync=None):
    j, p = n >> 1, n & 1
    e = [f"v_exp_f32 v{SS[p][x] + 8 * h + i}, v{SS[p][x] + 8 * h + i}" for h in range(2) for x in range(2) for i in range(8)]
    m = [pv(1 - p, 0, 1), pv(1 - p, 1, 1), qk(1 - p, 0, 0), qk(1 - p, 1, 0), qk(1 - p, 0, 1), qk(1 - p, 1, 1),
         pv(p, 0, 0), pv(p, 1, 0)]
    if p == 0:
        r = {0: [rdV(0, 1, j)], 1: [rdV(1, 0, j)], 2: [rdV(1, 1, j)], 3: [rdK(0, j + 1)],
             5: [rdK(1, j + 1), "s_waitcnt lgkmcnt(2)"]}
    else:
        r = {1: ["s_waitcnt lgkmcnt(0)"], 7: [rdV(0, 0, j + 1)]}
    pos = 0
    for g in range(8):
        for i in range(pos, 2 + 4 * g):
            a(e[i])
        pos = 2 + 4 * g
        a(m[g])
        if g == 3 and sync:
            sync(a)
        for ins in r.get(g, []) + slots.get(g, []):
            a(ins)
    for i in range(pos, 32):
        a(e[i])


HOLD_POINTS = [None, "loop", "done", "karg", "issued", "kdata", "lump2", "prebar", "setup", "qdata"]


def stamp(a, opts, name):
    if opts.get("holdk") and HOLD_POINTS[opts["holdk"]] == name:
        a("s_memrealtime s[60:61]")
    if opts.get("stamps") and name in opts["slots"]:
        n = opts["slots"].index(name)
        a(f"s_memtime s[{sTS + 2 * n}:{sTS + 2 * n + 1}]")


def stamp_it(a, opts, name, kind):
    if opts.get("span") and name in (f"e{opts['span']}", f"h{opts['span']}") and kind == "hook":
        a(f"s_cmp_eq_u32 s{sI}, 1")
        a(f"s_cbranch_scc0 L_sp_{name}")
        a("s_memrealtime s[62:63]" if name[0] == "e" else "s_memrealtime s[60:61]")
        a.label(f"L_sp_{name}")
    if opts.get("stamps") and name in opts["slots"]:
        a(f"s_cmp_eq_u32 s{sI}, {opts.get('it', 0)}")
        a(f"s_cbranch_scc0 L_st_{name}_{kind}")
        stamp(a, opts, name)
        a.label(f"L_st_{name}_{kind}")


def prologue(a, opts):
    t0, t1, t2, t3, t4 = vT[2], vT[3], vT[0], vT[5], vT[6]
    z = V2
    m4 = opts.get("m4", 0)
    touch = opts.get("touch", 1)
    a("s_cmp_ge_u32 s2, 256")
    a("s_cbranch_scc1 L_end")
    a(f"s_mov_b32 s{sFORCE}, 0")
    a.label("L_start")
    stamp(a, opts, "start")
    if opts.get("stamps") or opts.get("hold"):
        a("s_memrealtime s[74:75]")
    if opts.get("hold"):
        a("s_memrealtime s[60:61]")
    a("s_load_dwordx8 s[4:11], s[0:1], 0")
    a("s_load_dwordx4 s[12:15], s[0:1], 32")
    a(f"s_load_dwordx2 s[{sWS}:{sWS+1}], s[0:1], 48")
    a(f"""v_lshrrev_b32 v{t0}, 6, v0
    v_and_b32 v{vL}, 63, v0
    s_and_b32 s{sA}, s2, 7
    v_readfirstlane_b32 s{sW}, v{t0}
    s_lshl_b32 s{sA}, s{sA}, 1
    s_bfe_u32 s{sB}, s2, 0x10003
    s_add_u32 s{sH}, s{sA}, s{sB}
    s_lshr_b32 s{sC}, s2, 4""")
    if opts.get("x_perm") == 1:
        a(f"s_lshr_b32 s{sH}, s2, 4")
        a(f"s_and_b32 s{sC}, s2, 15")
    if opts.get("x_perm") == 2:
        a(f"""s_lshr_b32 s{sA}, s2, 4
        s_add_u32 s{sH}, s{sH}, s{sA}
        s_add_u32 s{sH}, s{sH}, s{sA}
        s_and_b32 s{sH}, s{sH}, 15""")
    if opts.get("pf", 1):
        a.note("""pull the kernel's code into L2 while the first loads are pending""")
        c0, c1 = D[0], D[0] + 2
        if opts.get("pfn", 64) < 256:
            a(f"s_cmp_ge_u32 s2, {opts.get('pfn', 64)}")
            a("s_cbranch_scc1 L_nopf")
        a(f"""s_cmp_eq_u32 s{sW}, 7
        s_cbranch_scc0 L_nopf
        s_getpc_b64 s[{sG}:{sG+1}]""")
        a.label("L_pc")
        a(f"""v_lshlrev_b32 v{t0}, 7, v{vL}
        v_mov_b32 v{c0 + 1}, s{sG+1}
        v_add_co_u32 v{c0}, vcc, s{sG}, v{t0}
        v_add_u32 v{t0}, 0x2000, v{t0}
        v_min_u32 v{t0}, L_raw-L_pc, v{t0}
        v_addc_co_u32 v{c0 + 1}, vcc, 0, v{c0 + 1}, vcc
        v_mov_b32 v{c1 + 1}, s{sG+1}
        v_add_co_u32 v{c1}, vcc, s{sG}, v{t0}
        global_load_dword v{vJUNK}, {vr(c0, 2)}, off
        s_nop 0
        v_addc_co_u32 v{c1 + 1}, vcc, 0, v{c1 + 1}, vcc
        global_load_dword v{vJUNK}, {vr(c1, 2)}, off""")
        a.label("L_nopf")
    a(f"""s_mul_i32 s{sA}, s{sH}, {HEADB}
    s_mul_i32 s{sD}, s{sC}, 14336
    s_add_u32 s{sB}, s{sD}, s{sA}
    s_lshr_b32 s{sKS}, s{sW}, 2
    s_mul_i32 s{sM0V}, s{sW}, 3584
    v_lshlrev_b32 v{vAK}, 4, v{vL}
    v_add_u32 v{vVG}, s{sM0V}, v{vAK}
    s_add_u32 s{sM0V}, s{sM0V}, {VB[0]}
    s_lshl_b32 s{sM0K}, s{sW}, 12
    s_mov_b32 s{sK+2}, {HEADB}
    s_mov_b32 s{sK+3}, 0x20000
    s_mov_b32 s{sX+2}, 14336
    s_mov_b32 s{sX+3}, 0x20000
    s_add_u32 s{sMODE}, s{sM0K}, {QB}
    s_lshr_b32 s{sD}, s{sH}, 1
    s_lshl_b32 s{sD}, s{sD}, 2""")

    def setup_a(a):
        a.note("""selection matrices of the bf16 -> fp32 unpacking MFMAs; row and fragment addresses""")
        a(f"""v_mov_b32 v{R+15}, {hex(K_PAD[1])}
        s_mov_b32 vcc_lo, 0xaaaaaaaa
        s_mov_b32 vcc_hi, 0xaaaaaaaa
        v_cndmask_b32 v{t1}, v{R+15}, 1.0, vcc""")
        for p in range(8):
            lo = 3 << (8 * (p >> 1) + 2 * (p & 1))
            a(f"s_mov_b32 vcc_lo, {hex(lo)}")
            a(f"s_mov_b32 vcc_hi, {hex(lo << 4)}")
            a(f"v_cndmask_b32 v{A1 + p}, 0, v{t1}, vcc")
        a(f"""v_mov_b32 v{R+14}, 0
        v_lshrrev_b32 v{t0}, 5, v0
        v_mul_u32_u24 v{t0}, 1536, v{t0}
        v_lshl_add_u32 v{vKW}, v0, 4, v{t0}""")

    if opts.get("prek", 1) == 1:
        setup_a(a)
    a("s_waitcnt lgkmcnt(0)")
    stamp(a, opts, "karg")
    a(f"""s_add_u32 s{sK}, s6, s{sA}
    s_addc_u32 s{sK+1}, s7, 0""")
    dma4(a, sM0K, vVG, sK, 0, exact=m4)
    if opts.get("prek", 1) == 2:
        setup_a(a)
    a(f"""s_cmp_eq_u32 s{sKS}, 0
    s_cbranch_scc0 L_noq
    s_add_u32 s{sX}, s4, s{sB}
    s_addc_u32 s{sX+1}, s5, 0""")
    dma4(a, sMODE, vVG, sX, 0, exact=m4)
    a.label("L_noq")
    a(f"""s_add_u32 s{sV}, s8, s{sA}
    s_addc_u32 s{sV+1}, s9, 0
    s_mov_b32 s{sV+2}, {HEADB}
    s_mov_b32 s{sV+3}, 0x20000""")
    if touch:
        a.note("""each of the head's 16 workgroups pulls a different 1/16 of the first V chunk into L2""")
        a(f"""s_cmp_eq_u32 s{sW}, 4
        s_cbranch_scc0 L_notouch
        s_mul_i32 s{sP}, s{sC}, 1792
        v_lshlrev_b32 v{t0}, 7, v{vL}
        s_mov_b64 exec, 0x3fff
        buffer_load_dword v{vJUNK}, v{t0}, s[{sV}:{sV+3}], s{sP} offen
        s_mov_b64 exec, -1""")
        a.label("L_notouch")
    a(f"s_load_dword s{sT}, s[10:11], s{sD}")
    stamp(a, opts, "issued")
    if not opts.get("prek", 1):
        setup_a(a)
    a(f"""s_add_u32 s{sO}, s12, s{sB}
    s_addc_u32 s{sO+1}, s13, 0
    s_mov_b32 s{sO+2}, 14336
    s_mov_b32 s{sO+3}, 0x20000
    s_mov_b32 s{sG}, s14
    s_mov_b32 s{sG+1}, s15
    s_mov_b32 s{sG+2}, 256
    s_mov_b32 s{sG+3}, 0x20000
    s_mul_i32 s{sA}, s{sH}, {WSH}
    s_add_u32 s{sX}, s{sWS}, s{sA}
    s_addc_u32 s{sX+1}, s{sWS+1}, 0
    s_mov_b32 s{sX+2}, {WSH}
    v_mov_b64 {vr(z, 2)}, 0
    v_mov_b64 {vr(z + 2, 2)}, 0
    s_and_b32 s{sPUB}, s{sC}, 1
    s_cmp_eq_u32 s{sPUB}, s{sKS}
    s_cselect_b32 s{sPUB}, 1, 0
    s_cmp_ge_u32 s{sC}, {first_pub(opts)}
    s_cselect_b32 s{sPUB}, s{sPUB}, 0
    v_mfma_f32_32x32x16_bf16 {vr(O[0], 16)}, {vr(z, 4)}, {vr(z, 4)}, 0
    s_lshr_b32 s{sKOFF}, s{sC}, 1
    s_max_u32 s{sKOFF}, s{sKOFF}, 1
    s_mul_i32 s{sVOFF}, s{sKOFF}, {CHB}
    s_lshl_b32 s{sKOFF}, s{sKOFF}, 15
    s_lshr_b32 s{sB}, s{sW}, 1
    s_lshl_b32 s{sA}, s{sB}, 13
    v_add_u32 v{vAK}, s{sA}, v{vAK}
    v_mfma_f32_32x32x16_bf16 {vr(O[2], 16)}, {vr(z, 4)}, {vr(z, 4)}, 0
    s_mul_i32 s{sA}, s{sB}, {4 * 1792}
    s_add_u32 s{sA}, s{sA}, {VB[0]}
    v_and_b32 v{t0}, 15, v0
    v_bfe_u32 v{t1}, v0, 2, 2
    v_mad_u32_u24 v{t0}, v{t1}, 3, v{t0}
    v_lshrrev_b32 v{t1}, 4, v{vL}
    v_lshl_add_u32 v{t0}, v{t1}, 2, v{t0}
    v_lshrrev_b32 v{t1}, 5, v{vL}
    v_mad_u32_u24 v{t0}, v{t1}, 48, v{t0}
    v_mfma_f32_32x32x16_bf16 {vr(O[1], 16)}, {vr(z, 4)}, {vr(z, 4)}, 0
    v_lshl_add_u32 v{vAV}, v{t0}, 3, s{sA}
    v_mov_b32 v{vDV}, {PAR}
    v_lshlrev_b32 v{t1}, 6, v{t1}
    v_sub_u32 v{t1}, {ONES + 224}, v{t1}
    s_mov_b32 vcc_lo, 0x88880000
    s_mov_b32 vcc_hi, 0x88880000
    v_cndmask_b32 v{vAV}, v{vAV}, v{t1}, vcc
    v_cndmask_b32 v{vDV}, v{vDV}, v{R+14}, vcc
    v_mfma_f32_32x32x16_bf16 {vr(O[3], 16)}, {vr(z, 4)}, {vr(z, 4)}, 0
    v_mov_b32 v{vIDX}, 0xdddddddd
    v_mfma_f32_32x32x16_bf16 {vr(SS[1][0], 16)}, {vr(z, 4)}, {vr(z, 4)}, 0
    v_mfma_f32_32x32x16_bf16 {vr(SS[1][1], 16)}, {vr(z, 4)}, {vr(z, 4)}, 0
    s_cmp_eq_u32 s{sKS}, 0
    s_cbranch_scc1 L_two""")

    def temperature(a):
        a(f"""s_bitcmp1_b32 s{sH}, 0
        s_cselect_b32 s{sA}, 0, 16
        s_lshl_b32 s{sT}, s{sT}, s{sA}
        s_and_b32 s{sT}, s{sT}, 0xffff0000
        s_and_b32 s{sA}, s{sT}, 0x7fffffff
        s_cmp_gt_u32 s{sA}, {hex(T_LIMIT)}
        s_cselect_b32 s{sSLOW}, 1, s{sFORCE}""")

    a(f"""v_subrev_u32 v{t2}, 14336, v{vVG}
    s_sub_u32 s{sMODE}, s{sM0V}, 14336
    s_cmp_eq_u32 s{sW}, 6
    s_cbranch_scc0 L_noones
    v_lshrrev_b32 v{t0}, 3, v{vL}
    v_mul_u32_u24 v{t0}, 1792, v{t0}
    v_bfe_u32 v{t1}, v0, 2, 1
    v_mul_u32_u24 v{t1}, 896, v{t1}
    v_add_u32 v{t0}, v{t0}, v{t1}
    v_bfe_u32 v{t1}, v0, 1, 1
    v_mul_u32_u24 v{t1}, 224, v{t1}
    v_add_u32 v{t0}, v{t0}, v{t1}
    v_and_b32 v{t1}, 1, v0
    v_lshl_add_u32 v{t0}, v{t1}, 6, v{t0}
    v_add_u32 v{t0}, {ONES + 160}, v{t0}
    v_mov_b32 v{t1}, {FLAG}
    v_mov_b32 v{D[0]}, 0x3f80
    v_mov_b32 v{D[0] + 1}, 0
    ds_write_b64 v{t0}, {vr(D[0], 2)}
    ds_write_b64 v{t1}, {vr(z, 2)}""")
    a.label("L_noones")
    a(f"v_mad_u32_u24 v{t0}, v{vL}, 56, s{sM0K}")
    stamp(a, opts, "setup")
    vearly = opts.get("vearly", 0)
    if vearly:
        dma4(a, sMODE, t2, sV, 0, exact=m4)
    if vearly == 2:
        dma4(a, sM0V, vVG, sV, 0, exact=m4)
    if touch:
        a(f"""s_waitcnt vmcnt({4 * vearly + 1})
        s_cmp_eq_u32 s{sW}, 4
        s_cbranch_scc1 L_kready""")
    a(f"s_waitcnt vmcnt({4 * vearly})")
    a.label("L_kready")
    stamp(a, opts, "kdata")
    read_rows(a, R, t0)

    def load_v(a):
        if not vearly:
            dma4(a, sMODE, t2, sV, 0, exact=m4)
        if vearly < 2:
            dma4(a, sM0V, vVG, sV, 0, exact=m4)
    vpos = opts.get("vpos", 0)
    if vpos == 0:
        load_v(a)
    a("s_waitcnt lgkmcnt(0)")
    temperature(a)
    normalise(a, R, hex(K_PAD[0]), vKW, mid=load_v if vpos == 1 and vearly < 2 else None)
    if not opts.get("bar2", 0):
        a("s_waitcnt vmcnt(0)")
    a("s_branch L_join")
    a.label("L_two")
    a(f"""v_mov_b32 v{RQ+14}, 0
    v_mad_u32_u24 v{t0}, v{vL}, 56, s{sM0K}
    v_add_u32 v{t2}, {QB}, v{t0}
    v_add_u32 v{t3}, {QB}, v{vKW}""")
    stamp(a, opts, "setup")
    a("s_waitcnt vmcnt(4)")
    stamp(a, opts, "kdata")
    read_rows(a, R, t0)
    a("s_waitcnt lgkmcnt(0)")

    def scale_setup(a):
        temperature(a)
        qa, qb = Q_PAD[opts.get("M", 1536)]
        a(f"""s_cmp_eq_u32 s{sSLOW}, 1
        s_cselect_b32 s{sD}, 0, {hex(qa)}
        s_cselect_b32 s{sA}, 0, {hex(qb)}
        s_cselect_b64 vcc, -1, 0
        v_mov_b32 v{t4}, {hex(LOG2E)}
        v_mul_f32 v{t4}, s{sT}, v{t4}
        v_mov_b32 v{RQ+15}, s{sA}
        v_cndmask_b32 v{t4}, v{t4}, 1.0, vcc""")

    def second_rows(a):
        stamp(a, opts, "mid")
        a("s_waitcnt vmcnt(0)")
        stamp(a, opts, "qdata")
        read_rows(a, RQ, t2)
    if opts.get("qlate", 1):
        normalise(a, R, hex(K_PAD[0]), vKW, mid=scale_setup)
        second_rows(a)
        a("s_waitcnt lgkmcnt(0)")
    else:
        normalise(a, R, hex(K_PAD[0]), vKW, mid=scale_setup, mid2=second_rows)
        a("s_waitcnt lgkmcnt(4)")
    stamp(a, opts, "n0")
    normalise(a, RQ, f"s{sD}", t3, scale=t4, st=lambda n: stamp(a, opts, n))
    stamp(a, opts, "n5")
    a.label("L_join")
    stamp(a, opts, "lump2")
    a(f"s_mov_b32 s{sPAR}, {PAR}")
    a(f"""v_lshl_add_u32 v{vKS}, v{vL}, 4, s{sM0K}
    s_and_b32 s{sA}, s{sW}, 1
    s_lshl_b32 s{sA}, s{sA}, 13
    s_add_u32 s{sA}, s{sA}, {QB}
    v_lshl_add_u32 v{t0}, v{vL}, 4, s{sA}
    s_mov_b32 s{sMODE}, 0
    s_mov_b32 s{sRAW}, 0
    s_mov_b32 s{sI}, 0
    s_waitcnt lgkmcnt(0)""")
    stamp(a, opts, "prebar")
    a("s_barrier")

    def rdQ(t, f):
        a(f"ds_read_b128 {vr(QF[t][f], 4)}, v{t0} offset:{2048 * t + 1024 * f}")
    a(rdK(0, 0)); rdQ(0, 0); a(rdK(1, 0)); rdQ(0, 1); rdQ(1, 0); rdQ(1, 1)
    rdQ(2, 0); rdQ(3, 0); rdQ(2, 1); rdQ(3, 1)
    a(f"s_cmp_eq_u32 s{sSLOW}, 1")
    a("s_cbranch_scc1 L_slow")
    a(rdV(0, 0, 0))
    a("s_waitcnt lgkmcnt(9)")
    a(qk(0, 0, 0))
    a("s_waitcnt lgkmcnt(7)")
    a(qk(0, 0, 1))
    a("s_waitcnt lgkmcnt(5)")
    a(qk(0, 1, 0))
    a(qk(0, 1, 1))
    a("s_nop 7")
    stamp(a, opts, "loop")


PRIO_POINTS = [[(4, 4), (5, 4), (6, 0)], [(4, 0), (5, 0), (5, 7)], [(3, 7), (5, 0), (6, 0)], [(5, 0), (5, 6), (6, 0)],
               [(1, 7), (3, 7), (5, 7)], [(1, 7), (3, 0), (4, 0)], [(2, 0), (3, 4), (4, 4)], [(0, 7), (2, 7), (4, 4)],
               [(1, 7), (4, 7), (5, 7)], [(1, 7), (5, 0), (6, 0)], [(2, 7), (3, 7), (4, 7)], [(2, 7), (4, 7), (5, 7)]]


def dma1(p, vaddr, srd, soff, flags=""):
    return f"buffer_load_dwordx4 v{vaddr}, s[{srd}:{srd+3}], s{soff} offen offset:{1024 * p}{flags} lds"


def iteration(a, opts, kind):
    poll_at = opts.get("poll", 3)
    kdma_at = opts.get("kdma", 4)
    lump0_at = opts.get("lump0", 4)
    lump_at = opts.get("lump", 5)
    t0, t1 = vT[2], vT[3]
    sl = {j: {} for j in range(8)}

    def put(j, g, ins):
        sl[j].setdefault(g, []).append(ins)

    groups = {"first": [("K", 0), ("V", 2)], "hook": [("V", 0)], "lean": [("V", 0), ("G", 2)]}[kind]
    early = opts.get("early", 0) and kind == "lean"
    for what, j0 in groups:
        if early:
            spots = [(0, 0), (0, 4), (0, 6), (0, 6), (0, 7)] if what == "V" else [(1, 0), (1, 2), (1, 3), (1, 4), (1, 5)]
        else:
            spots = [(j0, 0), (j0, 4), (j0, 6), (j0 + 1, 4), (j0 + 1, 6)]
        put(*spots[0], f"s_xor_b32 m0, s{sM0V if what == 'V' else sM0K}, s{sPAR}")
        for p in range(4):
            ins = {"K": dma1(p, vVG, sK, sVOFF), "V": dma1(p, vVG, sV, sVOFF), "G": dma1(p, vKS, sX, sKOFF, " sc1")}[what]
            put(*spots[p + 1], ins)
    if kind == "first":
        put(0, 1, "s_waitcnt lgkmcnt(3)")
    for lvl, (j, g) in zip((2, 1, 0), PRIO_POINTS[opts.get("pp", 2) if kind == "lean" else opts.get({"first": "pp0", "hook": "pph"}[kind], 10 if kind == "hook" else 1)]):
        put(j, g, f"s_setprio {lvl}")
    if kind == "first" and opts.get("pp0", 1) >= 5:
        put(5, 7, "s_setprio 0")
    put(6, 4, f"s_add_u32 s{sKOFF}, s{sKOFF}, 32768")
    put(6, 6, f"s_add_u32 s{sVOFF}, s{sVOFF}, {CHB}")
    put(6, 6, f"s_xor_b32 s{sPAR}, s{sPAR}, {PAR}")
    put(7, 0, f"s_cmp_eq_u32 s{sKOFF}, {8 * 32768}")
    put(7, 4, f"s_cselect_b32 s{sKOFF}, 32768, s{sKOFF}")
    put(7, 6, f"s_cselect_b32 s{sVOFF}, {CHB}, s{sVOFF}")
    if kind == "lean" and opts.get("nojunk", 1):
        put(5, 4, f"s_cmp_eq_u32 s{sI}, 6")
        put(5, 6, f"s_cselect_b32 s{sA}, 0x40000000, 0")
        put(7, 6, f"s_or_b32 s{sKOFF}, s{sKOFF}, s{sA}")
        put(7, 7, f"s_or_b32 s{sVOFF}, s{sVOFF}, s{sA}")

    def sync(a):
        a("s_waitcnt vmcnt(0) lgkmcnt(0)")
        a("s_barrier")
        a("s_setprio 3")
        a(f"v_xor_b32 v{vAK}, {PAR}, v{vAK}")
        a(f"v_xor_b32 v{vAV}, v{vDV}, v{vAV}")
        if kind == "first":
            a.note("every publishing wave's stores completed before the barrier: one lane signals")
            a(f"""s_cmp_eq_u32 s{sW}, 0
            s_cselect_b32 s{sA}, s{sC}, 0
            s_cmp_ge_u32 s{sA}, {first_pub(opts)}
            s_cbranch_scc0 L_signalled
            s_and_b32 s{sA}, s{sC}, 14
            s_lshl_b32 s{sA}, 1, s{sA}
            v_mov_b32 v{t1}, s{sA}
            v_mov_b32 v{t0}, 0
            s_lshl_b32 s{sA}, s{sH}, 4
            s_mov_b64 exec, 1
            buffer_atomic_add v{t1}, v{t0}, s[{sG}:{sG+3}], s{sA} offen sc1
            s_mov_b64 exec, -1""")
            a.label("L_signalled")

    for j in range(8):
        step(a, j, sl[j], sync if j == 6 else None)
        stamp_it(a, opts, f"e{j}", kind)
        if kind == "first":
            if j == lump0_at:
                a("s_waitcnt vmcnt(4)")
                lump(a, publish=True)
                if opts.get("pp0", 1) >= 5:
                    a("s_setprio 1")
        if kind == "hook":
            if j == 0:
                a.note("after a missed hand-off wave 0 re-reads the arrival word at the memory side")
                a(f"""s_cmp_eq_u32 s{sW}, 0
                s_cselect_b32 s{sA}, s{sI}, 0
                s_cmp_ge_u32 s{sA}, 2
                s_cbranch_scc1 L_repoll""")
                a.label("L_repolled")
            if j == poll_at:
                a.note("wave 0 copies the head's arrival word into LDS")
                a(f"""s_cmp_eq_u32 s{sW}, 0
                s_cbranch_scc0 L_polled
                s_cmp_eq_u32 s{sI}, 1
                s_cbranch_scc0 L_relay
                s_mov_b32 m0, {FLAG}
                s_lshl_b32 s{sA}, s{sH}, 4
                v_mov_b32 v{t0}, 0
                s_mov_b64 exec, 1
                {"s_nop 0" if opts.get("x_miss") else f"buffer_load_dword v{t0}, s[{sG}:{sG+3}], s{sA} offen sc1 lds"}
                s_mov_b64 exec, -1""")
                a.label("L_polled")
            if j == kdma_at:
                a.note("next chunk: from d_ws if both of its publishers have arrived")
                a(f"""v_mov_b32 v{t0}, {FLAG}
                ds_read_b32 v{t0}, v{t0}
                s_xor_b32 m0, s{sM0K}, s{sPAR}
                s_lshr_b32 s{sB}, s{sKOFF}, 14
                s_add_u32 s{sB}, s{sB}, 1
                s_waitcnt lgkmcnt(0)
                v_readfirstlane_b32 s{sA}, v{t0}
                s_cmp_eq_u32 s{sA}, {hex(0x7fffffff if opts.get("x_self") else all_ready(opts))}
                s_cselect_b32 s{sMODE}, 1, 0
                s_bitcmp1_b32 s{sA}, {0 if opts.get("x_self") else "s%d" % sB}
                s_cbranch_scc0 L_raw""")
                for p in range(4):
                    a(dma1(p, vKS, sX, sKOFF, " sc1"))
                a.label("L_kdone")
            if j == lump_at:
                a(f"s_cmp_eq_u32 s{sRAW}, 1")
                a("s_cbranch_scc1 L_lump")
                a.label("L_lumped")
        if j == 6 and kind != "first":
            a(f"s_cmp_eq_u32 s{sI}, 7")
            a("s_cbranch_scc1 L_last")
        stamp_it(a, opts, f"h{j}", kind)
    if opts.get("clk"):
        clock_sample(a, f"s{sI}")


def clock_sample(a, slot):
    a(f"""s_memtime s[60:61]
    s_memrealtime s[62:63]
    s_lshl_b32 s64, s2, 3
    s_add_u32 s64, s64, s{sW}
    s_lshl_b32 s64, s64, 7
    s_lshl_b32 s65, {slot}, 3
    s_add_u32 s64, s64, s65
    s_add_u32 s64, s64, 0x1000000
    s_mov_b32 s68, s{sWS}
    s_mov_b32 s69, s{sWS+1}
    s_mov_b32 s70, 0x2000000
    s_mov_b32 s71, 0x20000
    s_waitcnt lgkmcnt(0)
    v_mov_b32 v246, s60
    v_mov_b32 v247, s62
    v_mov_b32 v245, 0
    buffer_store_dwordx2 v[246:247], v245, s[68:71], s64 offen""")


def main_loop(a, opts):
    if opts.get("clk"):
        clock_sample(a, "8")
        a("""s_getreg_b32 s60, hwreg(HW_REG_XCC_ID)
        s_add_u32 s64, s64, 8
        v_mov_b32 v246, s60
        buffer_store_dwordx2 v[246:247], v245, s[68:71], s64 offen""")
    a("s_setprio 3")
    iteration(a, opts, "first")
    a(f"s_mov_b32 s{sI}, 1")
    a.label("L_hook")
    iteration(a, opts, "hook")
    a(f"""s_add_u32 s{sI}, s{sI}, 1
    s_cmp_eq_u32 s{sMODE}, 0
    s_cbranch_scc1 L_hook""")
    a.raw(".p2align 6")
    a.label("L_lean")
    iteration(a, opts, "lean")
    a(f"s_add_u32 s{sI}, s{sI}, 1")
    a("s_branch L_lean")
    a.label("L_last")
    t0 = vT[0]
    e = [f"v_exp_f32 v{SS[1][x] + 8 * h + i}, v{SS[1][x] + 8 * h + i}" for h in range(2) for x in range(2) for i in range(8)]
    w = [send(t, p) for t in range(2) for p in range(4)]
    if opts.get("skipown", 0):
        a(f"s_lshr_b32 s{sD}, s{sW}, 1")
        for n in range(8):
            w[n] = (f"s_cmp_eq_u32 s{sD}, {n >> 2}\n" if n % 4 == 0 else "") + f"s_cbranch_scc1 L_kept{n}\n{w[n]}\n@L_kept{n}"
    a(f"s_lshl_b32 s{sB}, s{sW}, 14")
    a(f"v_lshl_add_u32 v{t0}, v{vL}, 4, s{sB}")
    seq = ([pv(0, 0, 1)] + e[0:4] + [pv(0, 1, 1)] + e[4:12] + [w[0]] + e[12:15] + [w[1]] + e[15:18] + [pv(1, 0, 0), w[2]]
           + e[18:22] + [pv(1, 1, 0), w[3]] + e[22:24] + [w[4]] + e[24:26] + [pv(1, 0, 1), w[5]] + e[26:29] + [w[6]]
           + e[29:32] + [w[7], "s_nop 0", pv(1, 1, 1)])
    for ins in seq:
        a(ins)


def send(t, p):
    return f"ds_write_b128 v{vT[0]}, {vr(O[t] + 4 * p, 4)} offset:{4096 * t + 1024 * p}"


def lump(a, publish):
    t0, t1 = vT[2], vT[0]
    a(f"s_add_u32 s{sA}, s{sM0K}, s{sPAR}")
    a(f"v_mad_u32_u24 v{t0}, v{vL}, 56, s{sA}")
    a(f"v_add_u32 v{t1}, s{sPAR}, v{vKW}")
    read_rows(a, R, t0)
    a("s_waitcnt lgkmcnt(0)")
    normalise(a, R, hex(K_PAD[0]), t1)
    if publish:
        a(f"s_cmp_eq_u32 s{sPUB}, 1")
        a("s_cbranch_scc0 L_published")
        for p in range(4):
            a(f"buffer_store_dwordx4 {vr(R + 4 * p, 4)}, v{vKW}, s[{sX}:{sX+3}], s{sKOFF} offen offset:{piece_off(p)} sc1")
        a.label("L_published")


def side_blocks(a, opts):
    a.label("L_raw")
    a(f"s_mov_b32 s{sRAW}, 1")
    for p in range(4):
        a(dma1(p, vVG, sK, sVOFF))
    a("s_branch L_kdone")
    a.label("L_lump")
    a(f"s_mov_b32 s{sRAW}, 0")
    a("s_waitcnt vmcnt(0)")
    lump(a, publish=False)
    a("s_branch L_lumped")
    t0 = vT[2]
    a.label("L_repoll")
    a(f"""s_lshl_b32 s{sA}, s{sH}, 4
    v_mov_b32 v{t0}, 0
    v_mov_b32 v{vPOLL}, 0
    s_mov_b64 exec, 1
    buffer_atomic_add v{vPOLL}, v{t0}, s[{sG}:{sG+3}], s{sA} offen sc0 sc1
    s_mov_b64 exec, -1
    s_branch L_repolled""")
    a.label("L_relay")
    a(f"""v_mov_b32 v{t0}, {FLAG}
    s_waitcnt vmcnt(0)
    s_mov_b64 exec, 1
    ds_write_b32 v{t0}, v{vPOLL}
    s_mov_b64 exec, -1
    s_branch L_polled""")


def epilogue(a, opts):
    a.label("L_epi")
    stamp(a, opts, "done")
    t0, t1, t2 = vT[0:3]
    l0, l1 = vT[4], vT[3]
    own, tot = D[0], SS[0][0]
    part = [SS[0][0], SS[0][1], SS[1][0]]
    src = [vT[5], vT[6], t1]
    a(f"""s_lshr_b32 s{sD}, s{sW}, 1
    s_lshl_b32 s{sA}, s{sD}, 12
    s_add_u32 s{sB}, s{sB}, s{sA}
    v_and_b32 v{t2}, 31, v0
    v_mul_u32_u24 v{t2}, 56, v{t2}
    v_bfe_u32 v{l1}, v0, 5, 1
    v_lshl_add_u32 v{t2}, v{l1}, 3, v{t2}
    v_add_u32 v{t2}, s{sB}, v{t2}
    v_lshl_add_u32 v{vAK}, v{vL}, 4, s{sB}
    v_xor_b32 v{src[0]}, 0x8000, v{vAK}
    v_xor_b32 v{src[1]}, 0x10000, v{vAK}
    v_xor_b32 v{src[2]}, 0x18000, v{vAK}
    s_and_b32 s{sA}, s{sW}, 1
    s_lshl_b32 s{sA}, s{sA}, 2
    s_add_u32 s{sA}, s{sA}, s{sD}
    s_mul_i32 s{sA}, s{sA}, {32 * 56}
    s_cmp_eq_u32 s{sD}, 1
    s_cbranch_scc1 L_send1
    s_cmp_eq_u32 s{sD}, 2
    s_cbranch_scc1 L_send2
    s_cmp_eq_u32 s{sD}, 3
    s_cbranch_scc1 L_send3""")
    for k in range(4):
        if k:
            a.label(f"L_send{k}")
        ws = [send(t, p) for t in (2, 3) if t != k for p in range(4)]
        for n in range(8):
            if n < len(ws):
                a(ws[n])
            a(f"v_mov_b64 {vr(own + 2 * n, 2)}, {vr(O[k] + 2 * n, 2)}")
        if k < 3:
            a("s_branch L_sent")
    a.label("L_sent")
    a("s_waitcnt lgkmcnt(0)")
    stamp(a, opts, "sent")
    a("s_barrier")
    order = (3, 0, 1, 2)
    for p in order:
        for k in range(3):
            a(f"ds_read_b128 {vr(part[k] + 4 * p, 4)}, v{src[k]} offset:{1024 * p}")
    extra = {0: [f"v_mov_b32 v{l0}, v{tot + 12}", f"v_mov_b32 v{l1}, v{tot + 12}"], 1: [f"v_permlane32_swap_b32 v{l0}, v{l1}"],
             2: [f"v_rcp_f32 v{l1}, v{l1}"], 3: []}
    for n, p in enumerate(order):
        a(f"s_waitcnt lgkmcnt({11 - 3 * n})")
        for i in (0, 2):
            a(f"v_pk_add_f32 {vr(tot + 4 * p + i, 2)}, {vr(part[0] + 4 * p + i, 2)}, {vr(own + 4 * p + i, 2)}")
        a(f"s_waitcnt lgkmcnt({9 - 3 * n})")
        for i in (0, 2):
            a(f"v_pk_add_f32 {vr(part[1] + 4 * p + i, 2)}, {vr(part[1] + 4 * p + i, 2)}, {vr(part[2] + 4 * p + i, 2)}")
        for i in (0, 2):
            a(f"v_pk_add_f32 {vr(tot + 4 * p + i, 2)}, {vr(tot + 4 * p + i, 2)}, {vr(part[1] + 4 * p + i, 2)}")
        for ins in extra[n]:
            a(ins)
    for g in range(4):
        for i in (0, 2):
            a(f"v_pk_mul_f32 {vr(D[1] + 4 * g + i, 2)}, {vr(tot + 4 * g + i, 2)}, {vr(l1, 2)} op_sel_hi:[1,0]")
        if g:
            a(f"ds_write_b64 v{t2}, {vr(R + 2 * g - 2, 2)} offset:{16 * g - 16}")
        for i in (0, 1):
            a(f"v_cvt_pk_bf16_f32 v{R + 2 * g + i}, v{D[1] + 4 * g + 2 * i}, v{D[1] + 4 * g + 2 * i + 1}")
    a(f"""s_mov_b32 exec_hi, 0
    ds_write_b64 v{t2}, {vr(R + 6, 2)} offset:48
    s_mov_b32 exec_hi, -1
    v_lshlrev_b32 v{t1}, 4, v{vL}
    ds_read_b128 {vr(KF, 4)}, v{vAK}
    ds_read_b128 {vr(KF + 4, 4)}, v{vAK} offset:1024
    s_waitcnt lgkmcnt(1)
    buffer_store_dwordx4 {vr(KF, 4)}, v{t1}, s[{sO}:{sO+3}], s{sA} offen
    s_mov_b32 exec_hi, 0xffff
    s_waitcnt lgkmcnt(0)
    buffer_store_dwordx4 {vr(KF + 4, 4)}, v{t1}, s[{sO}:{sO+3}], s{sA} offen offset:1024
    s_mov_b32 exec_hi, -1""")
    for i in range(16):
        a(f"v_max_f32 v{tot + i}, abs(v{tot + i}), abs(v{own + i})")
    a(f"v_min3_f32 v{l0}, v{tot}, v{tot + 1}, v{tot + 2}")
    for i in range(3, 13, 2):
        a(f"v_min3_f32 v{l0}, v{l0}, v{tot + i}, v{tot + i + 1}")
    a("s_mov_b32 exec_hi, 0")
    a(f"v_min3_f32 v{l0}, v{l0}, v{tot + 13}, v{tot + 14}")
    a(f"v_min_f32 v{l0}, v{tot + 15}, v{l0}")
    a(f"""s_mov_b32 exec_hi, -1
    v_cmp_gt_f32 vcc, {hex(O_MIN)}, v{l0}
    v_mov_b32 v{t0}, {FLAG + 4}
    v_mov_b32 v{t1}, 1
    s_cbranch_vccz L_final
    ds_write_b32 v{t0}, v{t1}
    s_waitcnt lgkmcnt(0)""")
    a.label("L_final")
    a(f"""s_barrier
    ds_read_b32 v{t0}, v{t0}
    s_waitcnt lgkmcnt(0)
    v_readfirstlane_b32 s{sA}, v{t0}
    s_cmp_gt_u32 s{sA}, s{sSLOW}
    s_cbranch_scc1 L_redo""")
    if opts.get("stamps"):
        a("s_mov_b64 exec, -1")
        stamp(a, opts, "stored")
        a("s_waitcnt vmcnt(0)")
        stamp(a, opts, "end")
        dbg = opts["stamps"] == 2
        a(f"""s_memrealtime s[76:77]
        s_load_dwordx2 s[4:5], s[0:1], {40 if dbg else 48}
        s_waitcnt lgkmcnt(0)
        s_mov_b32 s6, {64 if dbg else 0x2000000}
        s_mov_b32 s7, 0x20000
        s_lshl_b32 s8, s2, 3
        s_add_u32 s8, s8, s{sW}""")
        if dbg:
            a("""s_cmp_eq_u32 s8, 2047
            s_cselect_b32 s9, 1, 2
            s_cmp_eq_u32 s8, 0
            s_cselect_b32 s8, 0, s9""")
        a("s_lshl_b32 s8, s8, 5")
        if not dbg:
            a("s_add_u32 s8, s8, 0x1000000")
        a("""v_mov_b32 v0, 0
        v_mov_b32 v1, s74
        buffer_store_dword v1, v0, s[4:7], s8 offen""")
        for n in range(1, 7):
            if opts["slots"][n] == "mode":
                a(f"s_mov_b32 s9, s{sP}")
            else:
                a(f"s_sub_u32 s9, s{sTS + 2 * n}, s{sTS}")
            a("v_mov_b32 v1, s9")
            a(f"buffer_store_dword v1, v0, s[4:7], s8 offen offset:{4 * n}")
        a("s_sub_u32 s9, s76, s74")
        a("v_mov_b32 v1, s9")
        a("buffer_store_dword v1, v0, s[4:7], s8 offen offset:28")
    if opts.get("hold"):
        if opts.get("holdraw"):
            a(f"""s_mul_i32 s8, s{sP}, 400
            s_add_u32 s74, s74, s8""")
        if opts.get("span"):
            a("""s_waitcnt lgkmcnt(0)
            s_sub_u32 s8, s60, s62
            s_lshl_b32 s8, s8, 2
            s_add_u32 s74, s74, s8""")
        if opts.get("holdk"):
            a(f"""s_waitcnt lgkmcnt(0)
            s_sub_u32 s8, s60, s74
            s_lshl_b32 s8, s8, {0 if opts["holdk"] == 2 else 2}
            s_add_u32 s74, s74, s8""")
        a.label("L_hold")
        a(f"""s_sleep 4
        s_memrealtime s[76:77]
        s_waitcnt lgkmcnt(0)
        s_sub_u32 s9, s76, s74
        s_cmp_lt_i32 s9, {opts["hold"]}
        s_cbranch_scc1 L_hold""")
    a.label("L_end")
    a("s_endpgm")


def slow_path(a):
    x0 = vT[2]
    a.label("L_redo")
    a(f"""s_mov_b32 s{sFORCE}, 1
    s_waitcnt vmcnt(0)
    s_barrier
    s_branch L_start""")
    a.label("L_slow")
    for t in range(4):
        a(f"v_mov_b32 v{MXS[t]}, 0xff800000")
    a(f"s_mov_b32 s{sP}, 0")
    a.label("L_slow_pass")
    a(f"s_mov_b32 s{sVOFF}, 0")
    a.label("L_slow_chunk")
    a("s_waitcnt vmcnt(0) lgkmcnt(0)")
    a("s_barrier")
    dma4(a, sM0K, vVG, sK, f"s{sVOFF}")
    dma4(a, sM0V, vVG, sV, f"s{sVOFF}")
    a(f"v_mad_u32_u24 v{x0}, v{vL}, 56, s{sM0K}")
    a("s_waitcnt vmcnt(0)")
    read_rows(a, R, x0)
    a("s_waitcnt lgkmcnt(0)")
    normalise(a, R, hex(K_PAD[0]), vKW)
    a("s_waitcnt lgkmcnt(0)")
    a("s_barrier")
    for j in range(4):
        a(rdK(0, j)); a(rdK(1, j))
        for which in range(2):
            for part in range(2):
                a(rdV(which, part, j))
        a("s_waitcnt lgkmcnt(0)")
        a(f"s_call_b64 s[{sLINK}:{sLINK+1}], L_slow_tile")
    a(f"""s_add_u32 s{sVOFF}, s{sVOFF}, {CHB}
    s_cmp_lt_u32 s{sVOFF}, {HEADB}
    s_cbranch_scc1 L_slow_chunk
    s_cmp_eq_u32 s{sP}, 1
    s_cbranch_scc1 L_slow_done""")
    for t in range(4):
        a(f"""v_mov_b32 v{x0}, v{MXS[t]}
        s_nop 1
        v_permlane32_swap_b32 v{x0}, v{MXS[t]}
        s_nop 1
        v_max_f32 v{MXS[t]}, v{x0}, v{MXS[t]}""")
    for t in range(4):
        a(f"v_mov_b32 v{D[0] + t}, v{MXS[t]}")
    a(f"""s_barrier
    v_lshlrev_b32 v{x0}, 4, v0
    ds_write_b128 v{x0}, {vr(D[0], 4)}
    s_waitcnt lgkmcnt(0)
    s_barrier""")
    for k in range(1, 4):
        a(f"v_xor_b32 v{x0 + 1}, {2048 * k}, v{x0}")
        a(f"ds_read_b128 {vr(D[0], 4)}, v{x0 + 1}")
        a("s_waitcnt lgkmcnt(0)")
        for t in range(4):
            a(f"v_max_f32 v{MXS[t]}, v{MXS[t]}, v{D[0] + t}")
    a(f"s_mov_b32 s{sP}, 1")
    a("s_branch L_slow_pass")
    a.label("L_slow_done")
    a("s_barrier")
    a(f"s_lshl_b32 s{sB}, s{sW}, 14")
    a(f"v_lshl_add_u32 v{vT[0]}, v{vL}, 4, s{sB}")
    a("s_nop 11")
    for t in range(2):
        for p in range(4):
            a(send(t, p))
    a("s_branch L_epi")
    a.label("L_slow_tile")
    tiles = [(p, x) for p in range(2) for x in range(2)]
    for p, x in tiles:
        a(qk(p, x, 0)); a(qk(p, x, 1))
    a("s_nop 15")
    for p, x in tiles:
        for i in range(16):
            a(f"v_mul_f32 v{SS[p][x] + i}, s{sT}, v{SS[p][x] + i}")
    a(f"s_cmp_eq_u32 s{sP}, 1")
    a("s_cbranch_scc1 L_slow_exp")
    for p, x in tiles:
        for i in range(0, 16, 2):
            a(f"v_max3_f32 v{MXS[2 * p + x]}, v{MXS[2 * p + x]}, v{SS[p][x] + i}, v{SS[p][x] + i + 1}")
    a(f"s_setpc_b64 s[{sLINK}:{sLINK+1}]")
    a.label("L_slow_exp")
    for p, x in tiles:
        for i in range(16):
            v = SS[p][x] + i
            a(f"v_sub_f32 v{v}, v{v}, v{MXS[2 * p + x]}")
            a(f"v_mul_f32 v{v}, {hex(LOG2E)}, v{v}")
            a(f"v_exp_f32 v{v}, v{v}")
    a("s_nop 1")
    for p, x in tiles:
        a(pv(p, x, 0)); a(pv(p, x, 1))
    a(f"s_setpc_b64 s[{sLINK}:{sLINK+1}]")


SLOTS = {0: ["start", "setup", "prebar", "loop", "mode", "done", "end"],
         1: ["start", "karg", "issued", "setup", "kdata", "prebar", "end"],
         2: ["start", "loop", "done", "sent", "stored", "mode", "end"],
         3: ["start", "kdata", "mid", "qdata", "lump2", "prebar", "end"],
         4: ["start", "loop", "e1", "h1", "e3", "h3", "end"],
         5: ["start", "e4", "h4", "e5", "h5", "e6", "end"],
         6: ["start", "e0", "e2", "e4", "e5", "e6", "e7"],
         7: ["start", "loop", "e0", "h0", "e4", "h4", "e6"],
         8: ["start", "e5", "e6", "h6", "e7", "done", "end"],
         9: ["start", "e1", "h1", "e2", "h2", "e3", "h3"],
         10: ["start", "qdata", "n0", "n1", "n2", "n3", "n4"],
         11: ["start", "n3", "n4", "n5", "prebar", "loop", "end"]}


def build(opts):
    opts["slots"] = SLOTS[opts.get("pro", 0)]
    a = Asm()
    name = "standalone__qk_norm__prompt_kernel"
    a.raw(HEADER + DOC + f"; @launch grid=(256,1,1) block=(512,1,1) lds={LDS_BYTES}")
    a.raw('.amdgcn_target "amdgcn-amd-amdhsa--gfx950"\n.text')
    if opts.get("align", 0):
        a.raw(".p2align 12\n.fill 832, 4, 0xbf800000")
    a.raw(f".globl {name}\n.p2align 8\n.type {name},@function\n{name}:")
    prologue(a, opts)
    main_loop(a, opts)
    epilogue(a, opts)
    side_blocks(a, opts)
    slow_path(a)
    txt = a.text()
    if opts.get("stamps") or opts.get("holdraw"):
        txt = txt.replace(f"    s_mov_b32 s{sMODE}, 0\n", f"    s_mov_b32 s{sMODE}, 0\n    s_mov_b32 s{sP}, 0\n")
        txt = txt.replace(f"    s_mov_b32 s{sRAW}, 1\n", f"    s_mov_b32 s{sRAW}, 1\n    s_add_u32 s{sP}, s{sP}, 1\n")
    txt += f""".section .rodata,"a"
.p2align 6
.amdhsa_kernel {name}
  .amdhsa_next_free_vgpr {NVGPR}
  .amdhsa_next_free_sgpr {NSGPR}
  .amdhsa_accum_offset {NVGPR}
  .amdhsa_group_segment_fixed_size 0
  .amdhsa_kernarg_size 56
  .amdhsa_user_sgpr_count 2
  .amdhsa_user_sgpr_kernarg_segment_ptr 1
  .amdhsa_system_sgpr_workgroup_id_x 1
  .amdhsa_float_denorm_mode_32 3
.end_amdhsa_kernel
"""
    return txt


if __name__ == "__main__":
    opts = {}
    out = "standalone__qk_norm__prompt.s"
    for arg in sys.argv[1:]:
        k, _, v = arg.partition("=")
        if k == "out":
            out = v
        else:
            opts[k] = int(v)
    open(out, "w").write(build(opts))
```

```python
import sys

HEADER = """; Kernarg layout for this problem (56 bytes, ptrs only, base s[0:1]):
;   offset   0: d_in[0] q  shape=(1, 16, 4096, 28) dtype=bfloat16 strides=(3670016, 229376, 56, 2) contiguous=True
;   offset   8: d_in[1] k  shape=(1, 16, 4096, 28) dtype=bfloat16 strides=(3670016, 229376, 56, 2) contiguous=True
;   offset  16: d_in[2] v  shape=(1, 16, 4096, 28) dtype=bfloat16 strides=(3670016, 229376, 56, 2) contiguous=True
;   offset  32: d_out     shape=(1, 16, 4096, 28) dtype=bfloat16 (2 bytes/elem)
"""

DOC = """;
; Softmax shift: |logit * log2 e| < 23.2 when |t| <= 16, so the four spare k-slots subtract the constant 49.5
;   (products -1536, -1585.5, +1536, +1536).  Larger or non-finite t, or unnormalised outputs near the
; Normalised K: workgroup c normalises chunk 0 and chunk max(c / 2, 1) itself, stores its 256-key half of the
; LDS: K fragments / raw V, two buffer pairs (0, 0x10000); constant spots; query fragments; two flag words.
"""

HEADB = 229376
CHB = 28672
WSH = 262144
PAR = 0x10000
KB = [0, PAR]
VB = [32768, PAR + 32768]
ONES = 2 * PAR
QB = ONES + 14336
FLAG = QB + 16384
LDS_BYTES = FLAG + 256
T_LIMIT = 0x41800000
K_PAD2 = {3072: 0x3f9e0000, 1536: 0x3fa80000, 768: 0x3fb80000, 384: 0x3fa00000}
Q_PAD = {1536: (0xc4c00000, 0xc4970000, 0x44c00000),
         768: (0xc4400000, 0xc40e0000, 0x44400000),
         384: (0xc3c00000, 0xc3ad0000, 0x43c00000),
         3072: (0xc5400000, 0xc51e0000, 0x45400000)}
O_MIN = 0x0c800000
LOG2E = 0x3fb8aa3b
EPS = 0x358637bd

sK, sV, sO, sX, sG = 16, 20, 24, 28, 32
sH, sC, sW, sT, sI, sVOFF, sM0V, sKS = 36, 37, 38, 39, 40, 41, 42, 43
sA, sB, sD = 44, 45, 46
sPAR, sM0K, sKOFF, sRAW, sMODE, sPUB, sSLOW = 47, 48, 49, 50, 51, 52, 53
sWS = 54
sP = 56
sFORCE = 57
sKP, sQP = 3, 78
sLINK = 58
sTS = 60
NSGPR = 80
vL, vKS, vVG, vKW, vAK, vAV, vDV, vIDX = 1, 2, 3, 4, 5, 6, 7, 8
vT = [9, 10, 11, 12, 13, 14, 15]
RQ = 16
QF = [[16 + 8 * t, 20 + 8 * t] for t in range(4)]
O = [48, 64, 80, 96]
SS = [[112, 128], [144, 160]]
KF, V1, V2 = 176, 184, 188
R = 192
D = [208, 224]
A1, A2 = 240, 244
MX = [12, 13]
vPOLL = 15
vJUNK = SS[0][0]
MXS = [2, 7, 14, 15]
NVGPR = 248


def first_pub(opts):
    return 2


def all_ready(opts):
    return sum(2 << (2 * n) for n in range(first_pub(opts) // 2, 8))


class Asm:
    def __init__(self):
        self.l = []
    def __call__(self, s):
        for x in s.split("\n"):
            x = x.strip()
            self.l.append(x[1:] + ":" if x.startswith("@") else "    " + x)
    def label(self, n):
        self.l.append(n + ":")
    def note(self, s):
        for x in s.strip().split("\n"):
            self.l.append("    ; " + x.strip())
    def raw(self, s):
        self.l.append(s)
    def text(self):
        return "\n".join(self.l) + "\n"


def vr(a, n):
    return f"v[{a}:{a + n - 1}]"


def dma4(a, m0, vaddr, srd, soff, flags="", exact=False):
    a(f"s_mov_b32 m0, s{m0}")
    a("s_nop 0")
    for p in range(4):
        if exact and p == 3:
            a("s_mov_b32 exec_hi, 0")
        a(f"buffer_load_dwordx4 v{vaddr}, s[{srd}:{srd+3}], {soff} offen offset:{1024 * p}{flags} lds")
    if exact:
        a("s_mov_b32 exec_hi, -1")


def read_rows(a, r, vaddr):
    for i in range(3):
        a(f"ds_read2_b64 {vr(r + 4 * i, 4)}, v{vaddr} offset0:{2 * i} offset1:{2 * i + 1}")
    a(f"ds_read_b64 {vr(r + 12, 2)}, v{vaddr} offset:48")


def normalise(a, r, pads, dst, scale=None, mid=None, mid2=None, st=lambda n: None):
    nrm = vT[1]
    acc = MX[0]
    a(f"v_mfma_f32_32x32x16_bf16 {vr(D[0], 16)}, {vr(A1, 4)}, {vr(r, 4)}, 0")
    a(f"v_mfma_f32_32x32x16_bf16 {vr(D[0], 16)}, {vr(A2, 4)}, {vr(r + 4, 4)}, {vr(D[0], 16)}")
    a(f"v_mfma_f32_32x32x16_bf16 {vr(D[1], 16)}, {vr(A1, 4)}, {vr(r + 8, 4)}, 0")
    a(f"v_mfma_f32_32x32x16_bf16 {vr(D[1], 16)}, {vr(A2, 4)}, {vr(r + 12, 4)}, {vr(D[1], 16)}")
    if mid:
        mid(a)
    a("s_nop 3" if mid else "s_nop 9")
    st("n1")
    for i in range(14):
        d = vr(D[0] + 2 * i, 2)
        if i == 0:
            a(f"v_pk_mul_f32 {vr(acc, 2)}, {d}, {d}")
        else:
            a(f"v_pk_fma_f32 {vr(acc, 2)}, {d}, {d}, {vr(acc, 2)}")
    a(f"v_add_f32 v{nrm}, v{acc}, v{acc + 1}")
    st("n2")
    a(f"v_sqrt_f32 v{nrm}, v{nrm}")
    a("s_nop 0")
    a(f"v_add_f32 v{nrm}, {hex(EPS)}, v{nrm}")
    a(f"v_rcp_f32 v{nrm}, v{nrm}")
    a("s_nop 0")
    if scale is not None:
        a(f"v_mul_f32 v{nrm}, v{scale}, v{nrm}")
    st("n3")
    if mid2:
        mid2(a)
    muls = [f"v_pk_mul_f32 {vr(D[0] + 2 * i, 2)}, {vr(D[0] + 2 * i, 2)}, {vr(nrm, 2)} op_sel_hi:[1,0]" for i in range(14)]
    done = 0
    for n in range(16):
        p, k = n >> 2, n & 3
        lo = 7 * p + 2 * k
        hi = lo + 1 if k < 3 else lo
        while done < 14 and 2 * done <= hi + 2:
            a(muls[done])
            done += 1
        if n in (5, 9, 13):
            write_frag(a, r, dst, p - 1)
        a(f"v_cvt_pk_bf16_f32 v{r + n}, v{D[0] + lo}, {f'v{D[0] + hi}' if k < 3 else pads[p]}")
    write_frag(a, r, dst, 3)


def normalise_half(a, r, pads, dst, scale):
    nrm, acc, tmp = vT[1], MX[0], vT[2]
    a(f"v_mfma_f32_32x32x16_bf16 {vr(D[0], 16)}, {vr(A1, 4)}, {vr(r, 4)}, 0")
    a(f"v_mfma_f32_32x32x16_bf16 {vr(D[0], 16)}, {vr(A2, 4)}, {vr(r + 4, 4)}, {vr(D[0], 16)}")
    a("s_nop 11")
    for i in range(7):
        d = vr(D[0] + 2 * i, 2)
        a(f"v_pk_mul_f32 {vr(acc, 2)}, {d}, {d}" if i == 0 else f"v_pk_fma_f32 {vr(acc, 2)}, {d}, {d}, {vr(acc, 2)}")
    a(f"""v_add_f32 v{nrm}, v{acc}, v{acc + 1}
    v_add_f32 v{tmp}, v{acc}, v{acc + 1}
    s_nop 1
    v_permlane32_swap_b32 v{nrm}, v{tmp}
    s_nop 1
    v_add_f32 v{nrm}, v{nrm}, v{tmp}
    v_sqrt_f32 v{nrm}, v{nrm}
    s_nop 0
    v_add_f32 v{nrm}, {hex(EPS)}, v{nrm}
    v_rcp_f32 v{nrm}, v{nrm}
    s_nop 0
    v_mul_f32 v{nrm}, v{scale}, v{nrm}""")
    muls = [f"v_pk_mul_f32 {vr(D[0] + 2 * i, 2)}, {vr(D[0] + 2 * i, 2)}, {vr(nrm, 2)} op_sel_hi:[1,0]" for i in range(7)]
    done = 0
    for n in range(8):
        p, k = n >> 2, n & 3
        lo = 7 * p + 2 * k
        hi = lo + 1 if k < 3 else lo
        while done < 7 and 2 * done <= hi + 2:
            a(muls[done])
            done += 1
        if n == 5:
            a(f"ds_write_b128 v{dst}, {vr(r, 4)}")
        a(f"v_cvt_pk_bf16_f32 v{r + n}, v{D[0] + lo}, v{D[0] + hi if k < 3 else pads[p]}")
    a(f"ds_write_b128 v{dst}, {vr(r + 4, 4)} offset:512")


K_PADS = ["1.0", f"s{sKP}", "1.0", "1.0"]


def piece_off(p):
    return (p >> 1) * 1024 + (p & 1) * 512


def write_frag(a, r, vaddr, p):
    a(f"ds_write_b128 v{vaddr}, {vr(r + 4 * p, 4)} offset:{piece_off(p)}")


def rdK(f, tile):
    return f"ds_read_b128 {vr(KF + 4 * f, 4)}, v{vAK} offset:{(tile % 4) * 2048 + 1024 * f}"


def rdV(which, part, tile):
    base = (V1, V2)[which] + 2 * part
    return f"ds_read_b64_tr_b16 {vr(base, 2)}, v{vAV} offset:{(tile % 4) * 1792 + 896 * which + 224 * part}"


def qk(p, x, f):
    s = SS[p][x]
    c = "0" if f == 0 else vr(s, 16)
    return f"v_mfma_f32_32x32x16_bf16 {vr(s, 16)}, {vr(KF + 4 * f, 4)}, {vr(QF[2 * p + x][f], 4)}, {c}"


def pv(p, x, which):
    return f"v_smfmac_f32_32x32x32_bf16 {vr(O[2 * p + x], 16)}, {vr((V1, V2)[which], 4)}, {vr(SS[p][x] + 8 * which, 8)}, v{vIDX}"


def step(a, n, slots, sync=None):
    j, p = n >> 1, n & 1
    e = [f"v_exp_f32 v{SS[p][x] + 8 * h + i}, v{SS[p][x] + 8 * h + i}" for h in range(2) for x in range(2) for i in range(8)]
    m = [pv(1 - p, 0, 1), pv(1 - p, 1, 1), qk(1 - p, 0, 0), qk(1 - p, 1, 0), qk(1 - p, 0, 1), qk(1 - p, 1, 1),
         pv(p, 0, 0), pv(p, 1, 0)]
    if p == 0:
        r = {0: [rdV(0, 1, j)], 1: [rdV(1, 0, j)], 2: [rdV(1, 1, j)], 3: [rdK(0, j + 1)],
             5: [rdK(1, j + 1), "s_waitcnt lgkmcnt(2)"]}
    else:
        r = {1: ["s_waitcnt lgkmcnt(0)"], 7: [rdV(0, 0, j + 1)]}
    pos = 0
    for g in range(8):
        for i in range(pos, 2 + 4 * g):
            a(e[i])
        pos = 2 + 4 * g
        a(m[g])
        if g == 3 and sync:
            sync(a)
        for ins in r.get(g, []) + slots.get(g, []):
            a(ins)
    for i in range(pos, 32):
        a(e[i])


HOLD_POINTS = [None, "loop", "done", "karg", "issued", "kdata", "lump2", "prebar", "setup", "qdata"]


def stamp(a, opts, name):
    if opts.get("holdk") and HOLD_POINTS[opts["holdk"]] == name:
        a("s_memrealtime s[60:61]")
    if opts.get("stamps") and name in opts["slots"]:
        n = opts["slots"].index(name)
        a(f"s_memtime s[{sTS + 2 * n}:{sTS + 2 * n + 1}]")


def stamp_it(a, opts, name, kind):
    if opts.get("span") and name in (f"e{opts['span']}", f"h{opts['span']}") and kind == "hook":
        a(f"s_cmp_eq_u32 s{sI}, 1")
        a(f"s_cbranch_scc0 L_sp_{name}")
        a("s_memrealtime s[62:63]" if name[0] == "e" else "s_memrealtime s[60:61]")
        a.label(f"L_sp_{name}")
    if opts.get("stamps") and name in opts["slots"]:
        a(f"s_cmp_eq_u32 s{sI}, {opts.get('it', 0)}")
        a(f"s_cbranch_scc0 L_st_{name}_{kind}")
        stamp(a, opts, name)
        a.label(f"L_st_{name}_{kind}")


def prologue(a, opts):
    t0, t1, t2, t3, t4 = vT[2], vT[3], vT[0], vT[5], vT[6]
    z = V2
    m4 = opts.get("m4", 0)
    touch = opts.get("touch", 1)
    a("s_cmp_ge_u32 s2, 256")
    a("s_cbranch_scc1 L_end")
    a(f"s_mov_b32 s{sFORCE}, 0")
    a.label("L_start")
    stamp(a, opts, "start")
    if opts.get("stamps") or opts.get("hold"):
        a("s_memrealtime s[74:75]")
    if opts.get("hold"):
        a("s_memrealtime s[60:61]")
    a("s_load_dwordx8 s[4:11], s[0:1], 0")
    a("s_load_dwordx4 s[12:15], s[0:1], 32")
    a(f"s_load_dwordx2 s[{sWS}:{sWS+1}], s[0:1], 48")
    a(f"""v_lshrrev_b32 v{t0}, 6, v0
    v_and_b32 v{vL}, 63, v0
    s_and_b32 s{sA}, s2, 7
    v_readfirstlane_b32 s{sW}, v{t0}
    s_lshl_b32 s{sA}, s{sA}, 1
    s_bfe_u32 s{sB}, s2, 0x10003
    s_add_u32 s{sH}, s{sA}, s{sB}
    s_lshr_b32 s{sC}, s2, 4""")
    if opts.get("x_perm") == 1:
        a(f"s_lshr_b32 s{sH}, s2, 4")
        a(f"s_and_b32 s{sC}, s2, 15")
    if opts.get("x_perm") == 2:
        a(f"""s_lshr_b32 s{sA}, s2, 4
        s_add_u32 s{sH}, s{sH}, s{sA}
        s_add_u32 s{sH}, s{sH}, s{sA}
        s_and_b32 s{sH}, s{sH}, 15""")
    if opts.get("pf", 1):
        a.note("""pull the kernel's code into L2 while the first loads are pending""")
        c0, c1 = D[0], D[0] + 2
        if opts.get("pfn", 64) < 256:
            a(f"s_cmp_ge_u32 s2, {opts.get('pfn', 64)}")
            a("s_cbranch_scc1 L_nopf")
        a(f"""s_cmp_eq_u32 s{sW}, 7
        s_cbranch_scc0 L_nopf
        s_getpc_b64 s[{sG}:{sG+1}]""")
        a.label("L_pc")
        a(f"""v_lshlrev_b32 v{t0}, 7, v{vL}
        v_mov_b32 v{c0 + 1}, s{sG+1}
        v_add_co_u32 v{c0}, vcc, s{sG}, v{t0}
        v_add_u32 v{t0}, 0x2000, v{t0}
        v_min_u32 v{t0}, L_raw-L_pc, v{t0}
        v_addc_co_u32 v{c0 + 1}, vcc, 0, v{c0 + 1}, vcc
        v_mov_b32 v{c1 + 1}, s{sG+1}
        v_add_co_u32 v{c1}, vcc, s{sG}, v{t0}
        global_load_dword v{vJUNK}, {vr(c0, 2)}, off
        s_nop 0
        v_addc_co_u32 v{c1 + 1}, vcc, 0, v{c1 + 1}, vcc
        global_load_dword v{vJUNK}, {vr(c1, 2)}, off""")
        a.label("L_nopf")
    a(f"""s_mul_i32 s{sA}, s{sH}, {HEADB}
    s_mul_i32 s{sD}, s{sC}, 14336
    s_add_u32 s{sB}, s{sD}, s{sA}
    s_lshr_b32 s{sKS}, s{sW}, 2
    s_mul_i32 s{sM0V}, s{sW}, 3584
    v_lshlrev_b32 v{vAK}, 4, v{vL}
    v_add_u32 v{vVG}, s{sM0V}, v{vAK}
    s_add_u32 s{sM0V}, s{sM0V}, {VB[0]}
    s_lshl_b32 s{sM0K}, s{sW}, 12
    s_mov_b32 s{sK+2}, {HEADB}
    s_mov_b32 s{sK+3}, 0x20000
    s_mov_b32 s{sX+2}, 14336
    s_mov_b32 s{sX+3}, 0x20000
    s_lshl_b32 s{sMODE}, s{sW}, 11
    s_add_u32 s{sMODE}, s{sMODE}, {QB}
    s_mul_i32 s{sRAW}, s{sW}, 1792
    s_lshr_b32 s{sD}, s{sH}, 1
    s_lshl_b32 s{sD}, s{sD}, 2""")

    def setup_a(a):
        a.note("""selection matrices of the bf16 -> fp32 unpacking MFMAs; row and fragment addresses""")
        a(f"""v_mov_b32 v{R+15}, 0x3f80
        s_mov_b32 s{sKP}, {hex(K_PAD2[opts.get("M", 1536)])}
        s_mov_b32 vcc_lo, 0xaaaaaaaa
        s_mov_b32 vcc_hi, 0xaaaaaaaa
        v_cndmask_b32 v{t1}, v{R+15}, 1.0, vcc""")
        for p in range(8):
            lo = 3 << (8 * (p >> 1) + 2 * (p & 1))
            a(f"s_mov_b32 vcc_lo, {hex(lo)}")
            a(f"s_mov_b32 vcc_hi, {hex(lo << 4)}")
            a(f"v_cndmask_b32 v{A1 + p}, 0, v{t1}, vcc")
        a(f"""v_mov_b32 v{R+14}, 0
        v_lshrrev_b32 v{t0}, 5, v0
        v_mul_u32_u24 v{t0}, 1536, v{t0}
        v_lshl_add_u32 v{vKW}, v0, 4, v{t0}""")

    if opts.get("prek", 1) == 1:
        setup_a(a)
    a("s_waitcnt lgkmcnt(0)")
    stamp(a, opts, "karg")
    a(f"""s_add_u32 s{sK}, s6, s{sA}
    s_addc_u32 s{sK+1}, s7, 0""")
    dma4(a, sM0K, vVG, sK, 0)
    a(f"""s_add_u32 s{sX}, s4, s{sB}
    s_addc_u32 s{sX+1}, s5, 0
    s_mov_b32 m0, s{sMODE}
    s_nop 0
    buffer_load_dwordx4 v{vAK}, s[{sX}:{sX+3}], s{sRAW} offen lds
    buffer_load_dwordx4 v{vAK}, s[{sX}:{sX+3}], s{sRAW} offen offset:1024 lds""")
    a(f"""s_add_u32 s{sV}, s8, s{sA}
    s_addc_u32 s{sV+1}, s9, 0
    s_mov_b32 s{sV+2}, {HEADB}
    s_mov_b32 s{sV+3}, 0x20000""")
    if touch:
        a.note("""each of the head's 16 workgroups pulls a different 1/16 of the first V chunk into L2""")
        a(f"""s_cmp_eq_u32 s{sW}, 4
        s_cbranch_scc0 L_notouch
        s_mul_i32 s{sP}, s{sC}, 1792
        v_lshlrev_b32 v{t0}, 7, v{vL}
        s_mov_b64 exec, 0x3fff
        buffer_load_dword v{vJUNK}, v{t0}, s[{sV}:{sV+3}], s{sP} offen
        s_mov_b64 exec, -1""")
        a.label("L_notouch")
    a(f"s_load_dword s{sT}, s[10:11], s{sD}")
    stamp(a, opts, "issued")
    if not opts.get("prek", 1):
        setup_a(a)
    a(f"""s_add_u32 s{sO}, s12, s{sB}
    s_addc_u32 s{sO+1}, s13, 0
    s_mov_b32 s{sO+2}, 14336
    s_mov_b32 s{sO+3}, 0x20000
    s_mov_b32 s{sG}, s14
    s_mov_b32 s{sG+1}, s15
    s_mov_b32 s{sG+2}, 256
    s_mov_b32 s{sG+3}, 0x20000
    s_mul_i32 s{sA}, s{sH}, {WSH}
    s_add_u32 s{sX}, s{sWS}, s{sA}
    s_addc_u32 s{sX+1}, s{sWS+1}, 0
    s_mov_b32 s{sX+2}, {WSH}
    v_mov_b64 {vr(z, 2)}, 0
    v_mov_b64 {vr(z + 2, 2)}, 0
    s_and_b32 s{sPUB}, s{sC}, 1
    s_cmp_eq_u32 s{sPUB}, s{sKS}
    s_cselect_b32 s{sPUB}, 1, 0
    s_cmp_ge_u32 s{sC}, {first_pub(opts)}
    s_cselect_b32 s{sPUB}, s{sPUB}, 0
    v_mfma_f32_32x32x16_bf16 {vr(O[0], 16)}, {vr(z, 4)}, {vr(z, 4)}, 0
    s_lshr_b32 s{sKOFF}, s{sC}, 1
    s_max_u32 s{sKOFF}, s{sKOFF}, 1
    s_mul_i32 s{sVOFF}, s{sKOFF}, {CHB}
    s_lshl_b32 s{sKOFF}, s{sKOFF}, 15
    s_lshr_b32 s{sB}, s{sW}, 1
    s_lshl_b32 s{sA}, s{sB}, 13
    v_add_u32 v{vAK}, s{sA}, v{vAK}
    v_mfma_f32_32x32x16_bf16 {vr(O[2], 16)}, {vr(z, 4)}, {vr(z, 4)}, 0
    s_mul_i32 s{sA}, s{sB}, {4 * 1792}
    s_add_u32 s{sA}, s{sA}, {VB[0]}
    v_and_b32 v{t0}, 15, v0
    v_bfe_u32 v{t1}, v0, 2, 2
    v_mad_u32_u24 v{t0}, v{t1}, 3, v{t0}
    v_lshrrev_b32 v{t1}, 4, v{vL}
    v_lshl_add_u32 v{t0}, v{t1}, 2, v{t0}
    v_lshrrev_b32 v{t1}, 5, v{vL}
    v_mad_u32_u24 v{t0}, v{t1}, 48, v{t0}
    v_mfma_f32_32x32x16_bf16 {vr(O[1], 16)}, {vr(z, 4)}, {vr(z, 4)}, 0
    v_lshl_add_u32 v{vAV}, v{t0}, 3, s{sA}
    v_mov_b32 v{vDV}, {PAR}
    v_lshlrev_b32 v{t1}, 6, v{t1}
    v_sub_u32 v{t1}, {ONES + 224}, v{t1}
    s_mov_b32 vcc_lo, 0x88880000
    s_mov_b32 vcc_hi, 0x88880000
    v_cndmask_b32 v{vAV}, v{vAV}, v{t1}, vcc
    v_cndmask_b32 v{vDV}, v{vDV}, v{R+14}, vcc
    v_mfma_f32_32x32x16_bf16 {vr(O[3], 16)}, {vr(z, 4)}, {vr(z, 4)}, 0
    v_mov_b32 v{vIDX}, 0xdddddddd
    v_mfma_f32_32x32x16_bf16 {vr(SS[1][0], 16)}, {vr(z, 4)}, {vr(z, 4)}, 0
    v_mfma_f32_32x32x16_bf16 {vr(SS[1][1], 16)}, {vr(z, 4)}, {vr(z, 4)}, 0""")

    def temperature(a):
        a(f"""s_bitcmp1_b32 s{sH}, 0
        s_cselect_b32 s{sA}, 0, 16
        s_lshl_b32 s{sT}, s{sT}, s{sA}
        s_and_b32 s{sT}, s{sT}, 0xffff0000
        s_and_b32 s{sA}, s{sT}, 0x7fffffff
        s_cmp_gt_u32 s{sA}, {hex(T_LIMIT)}
        s_cselect_b32 s{sSLOW}, 1, s{sFORCE}""")

    a(f"""s_cmp_eq_u32 s{sW}, 6
    s_cbranch_scc0 L_noones
    v_lshrrev_b32 v{t0}, 3, v{vL}
    v_mul_u32_u24 v{t0}, 1792, v{t0}
    v_bfe_u32 v{t1}, v0, 2, 1
    v_mul_u32_u24 v{t1}, 896, v{t1}
    v_add_u32 v{t0}, v{t0}, v{t1}
    v_bfe_u32 v{t1}, v0, 1, 1
    v_mul_u32_u24 v{t1}, 224, v{t1}
    v_add_u32 v{t0}, v{t0}, v{t1}
    v_and_b32 v{t1}, 1, v0
    v_lshl_add_u32 v{t0}, v{t1}, 6, v{t0}
    v_add_u32 v{t0}, {ONES + 160}, v{t0}
    v_mov_b32 v{t1}, {FLAG}
    v_mov_b32 v{D[0]}, 0x3f80
    v_mov_b32 v{D[0] + 1}, 0
    ds_write_b64 v{t0}, {vr(D[0], 2)}
    ds_write_b64 v{t1}, {vr(z, 2)}""")
    a.label("L_noones")
    pa, pb = RQ + 8, RQ + 9
    a(f"""v_and_b32 v{t1}, 31, v0
    v_bfe_u32 v{t0}, v0, 5, 1
    v_mad_u32_u24 v{t2}, v{t1}, 56, s{sMODE}
    v_mad_u32_u24 v{t2}, v{t0}, 28, v{t2}
    v_lshlrev_b32 v{t0}, 10, v{t0}
    v_lshl_add_u32 v{t3}, v{t1}, 4, v{t0}
    v_add_u32 v{t3}, s{sMODE}, v{t3}
    v_mov_b32 v{RQ + 7}, 0
    v_mad_u32_u24 v{t0}, v{vL}, 56, s{sM0K}""")
    stamp(a, opts, "setup")
    if touch:
        a(f"""s_waitcnt vmcnt(3)
        s_cmp_eq_u32 s{sW}, 4
        s_cbranch_scc1 L_kready""")
    a("s_waitcnt vmcnt(2)")
    a.label("L_kready")
    stamp(a, opts, "kdata")
    read_rows(a, R, t0)
    vpos = opts.get("vpos", 1)
    if vpos == 0:
        dma4(a, sM0V, vVG, sV, 0)
    a("s_waitcnt lgkmcnt(0)")

    def scale_setup(a):
        if vpos == 1:
            dma4(a, sM0V, vVG, sV, 0)
        temperature(a)
        qa, qb, qc = Q_PAD[opts.get("M", 1536)]
        a(f"""s_cmp_eq_u32 s{sSLOW}, 1
        s_cselect_b32 s{sD}, 0, {hex(qa)}
        s_cselect_b32 s{sQP}, 0, {hex(qb)}
        s_cselect_b32 s{sQP + 1}, 0, {hex(qc)}
        s_cselect_b64 vcc, -1, 0
        v_mov_b32 v{t4}, {hex(LOG2E)}
        v_mul_f32 v{t4}, s{sT}, v{t4}
        v_cndmask_b32 v{t4}, v{t4}, 1.0, vcc
        v_mov_b32 v{pa}, s{sD}
        v_mov_b32 v{pb}, s{sQP}
        s_mov_b32 exec_lo, 0
        v_mov_b32 v{pa}, s{sQP + 1}
        v_mov_b32 v{pb}, s{sQP + 1}
        s_mov_b32 exec_lo, -1""")
    normalise(a, R, K_PADS, vKW, mid=scale_setup)
    stamp(a, opts, "mid")
    a("s_waitcnt vmcnt(4)")
    stamp(a, opts, "qdata")
    for i in range(3):
        a(f"ds_read2_b32 {vr(RQ + 2 * i, 2)}, v{t2} offset0:{2 * i} offset1:{2 * i + 1}")
    a(f"ds_read_b32 v{RQ + 6}, v{t2} offset:24")
    a("s_waitcnt lgkmcnt(0)")
    normalise_half(a, RQ, [pa, pb], t3, t4)
    a("s_waitcnt vmcnt(0)")
    a.label("L_join")
    stamp(a, opts, "lump2")
    a(f"s_mov_b32 s{sPAR}, {PAR}")
    a(f"""v_lshl_add_u32 v{vKS}, v{vL}, 4, s{sM0K}
    s_and_b32 s{sA}, s{sW}, 1
    s_lshl_b32 s{sA}, s{sA}, 13
    s_add_u32 s{sA}, s{sA}, {QB}
    v_lshl_add_u32 v{t0}, v{vL}, 4, s{sA}
    s_mov_b32 s{sMODE}, 0
    s_mov_b32 s{sRAW}, 0
    s_mov_b32 s{sI}, 0
    s_waitcnt lgkmcnt(0)""")
    stamp(a, opts, "prebar")
    a("s_barrier")

    def rdQ(t, f):
        a(f"ds_read_b128 {vr(QF[t][f], 4)}, v{t0} offset:{2048 * t + 1024 * f}")
    a(rdK(0, 0)); rdQ(0, 0); a(rdK(1, 0)); rdQ(0, 1); rdQ(1, 0); rdQ(1, 1)
    rdQ(2, 0); rdQ(3, 0); rdQ(2, 1); rdQ(3, 1)
    a(f"s_cmp_eq_u32 s{sSLOW}, 1")
    a("s_cbranch_scc1 L_slow")
    a(rdV(0, 0, 0))
    a("s_waitcnt lgkmcnt(9)")
    a(qk(0, 0, 0))
    a("s_waitcnt lgkmcnt(7)")
    a(qk(0, 0, 1))
    a("s_waitcnt lgkmcnt(5)")
    a(qk(0, 1, 0))
    a(qk(0, 1, 1))
    a("s_nop 7")
    stamp(a, opts, "loop")


PRIO_POINTS = [[(4, 4), (5, 4), (6, 0)], [(4, 0), (5, 0), (5, 7)], [(3, 7), (5, 0), (6, 0)], [(5, 0), (5, 6), (6, 0)],
               [(1, 7), (3, 7), (5, 7)], [(1, 7), (3, 0), (4, 0)], [(2, 0), (3, 4), (4, 4)], [(0, 7), (2, 7), (4, 4)],
               [(1, 7), (4, 7), (5, 7)], [(1, 7), (5, 0), (6, 0)], [(2, 7), (3, 7), (4, 7)], [(2, 7), (4, 7), (5, 7)]]


def dma1(p, vaddr, srd, soff, flags=""):
    return f"buffer_load_dwordx4 v{vaddr}, s[{srd}:{srd+3}], s{soff} offen offset:{1024 * p}{flags} lds"


def iteration(a, opts, kind):
    poll_at = opts.get("poll", 3)
    kdma_at = opts.get("kdma", 4)
    lump0_at = opts.get("lump0", 4)
    lump_at = opts.get("lump", 5)
    t0, t1 = vT[2], vT[3]
    sl = {j: {} for j in range(8)}

    def put(j, g, ins):
        sl[j].setdefault(g, []).append(ins)

    groups = {"first": [("K", 0), ("V", 2)], "hook": [("V", 0)], "lean": [("V", 0), ("G", 2)]}[kind]
    early = opts.get("early", 0) and kind == "lean"
    for what, j0 in groups:
        if early:
            spots = [(0, 0), (0, 4), (0, 6), (0, 6), (0, 7)] if what == "V" else [(1, 0), (1, 2), (1, 3), (1, 4), (1, 5)]
        else:
            spots = [(j0, 0), (j0, 4), (j0, 6), (j0 + 1, 4), (j0 + 1, 6)]
        put(*spots[0], f"s_xor_b32 m0, s{sM0V if what == 'V' else sM0K}, s{sPAR}")
        for p in range(4):
            ins = {"K": dma1(p, vVG, sK, sVOFF), "V": dma1(p, vVG, sV, sVOFF), "G": dma1(p, vKS, sX, sKOFF, " sc1")}[what]
            put(*spots[p + 1], ins)
    if kind == "first":
        put(0, 1, "s_waitcnt lgkmcnt(3)")
    for lvl, (j, g) in zip((2, 1, 0), PRIO_POINTS[opts.get("pp", 2) if kind == "lean" else opts.get({"first": "pp0", "hook": "pph"}[kind], 10 if kind == "hook" else 1)]):
        put(j, g, f"s_setprio {lvl}")
    if kind == "first" and opts.get("pp0", 1) >= 5:
        put(5, 7, "s_setprio 0")
    if kind == "hook":
        load = "s_nop 0" if opts.get("x_miss") else f"buffer_load_dword v{t0}, s[{sG}:{sG+3}], s{sA} offen sc1 lds"
        put(poll_at, opts.get("pollg", 4), f"""; wave 0 copies the head's arrival word into LDS
            s_cmp_eq_u32 s{sW}, 0
            s_cbranch_scc0 L_polled
            s_cmp_eq_u32 s{sI}, 1
            s_cbranch_scc0 L_relay
            s_mov_b32 m0, {FLAG}
            s_lshl_b32 s{sA}, s{sH}, 4
            v_mov_b32 v{t0}, 0
            s_mov_b64 exec, 1
            {load}
            s_mov_b64 exec, -1
            @L_polled""")
    put(6, 4, f"s_add_u32 s{sKOFF}, s{sKOFF}, 32768")
    put(6, 6, f"s_add_u32 s{sVOFF}, s{sVOFF}, {CHB}")
    put(6, 6, f"s_xor_b32 s{sPAR}, s{sPAR}, {PAR}")
    put(7, 0, f"s_cmp_eq_u32 s{sKOFF}, {8 * 32768}")
    put(7, 4, f"s_cselect_b32 s{sKOFF}, 32768, s{sKOFF}")
    put(7, 6, f"s_cselect_b32 s{sVOFF}, {CHB}, s{sVOFF}")
    if kind == "lean" and opts.get("nojunk", 1):
        put(5, 4, f"s_cmp_eq_u32 s{sI}, 6")
        put(5, 6, f"s_cselect_b32 s{sA}, 0x40000000, 0")
        put(7, 6, f"s_or_b32 s{sKOFF}, s{sKOFF}, s{sA}")
        put(7, 7, f"s_or_b32 s{sVOFF}, s{sVOFF}, s{sA}")

    def sync(a):
        a("s_waitcnt vmcnt(0) lgkmcnt(0)")
        a("s_barrier")
        a("s_setprio 3")
        a(f"v_xor_b32 v{vAK}, {PAR}, v{vAK}")
        a(f"v_xor_b32 v{vAV}, v{vDV}, v{vAV}")
        if kind == "first":
            a.note("every publishing wave's stores completed before the barrier: one lane signals")
            a(f"""s_cmp_eq_u32 s{sW}, 0
            s_cselect_b32 s{sA}, s{sC}, 0
            s_cmp_ge_u32 s{sA}, {first_pub(opts)}
            s_cbranch_scc0 L_signalled
            s_and_b32 s{sA}, s{sC}, 14
            s_lshl_b32 s{sA}, 1, s{sA}
            v_mov_b32 v{t1}, s{sA}
            v_mov_b32 v{t0}, 0
            s_lshl_b32 s{sA}, s{sH}, 4
            s_mov_b64 exec, 1
            buffer_atomic_add v{t1}, v{t0}, s[{sG}:{sG+3}], s{sA} offen sc1
            s_mov_b64 exec, -1""")
            a.label("L_signalled")

    for j in range(8):
        step(a, j, sl[j], sync if j == 6 else None)
        stamp_it(a, opts, f"e{j}", kind)
        if kind == "first":
            if j == lump0_at:
                a("s_waitcnt vmcnt(4)")
                lump(a, publish=True)
                if opts.get("pp0", 1) >= 5:
                    a("s_setprio 1")
        if kind == "hook":
            if j == 0:
                a.note("after a missed hand-off wave 0 re-reads the arrival word at the memory side")
                a(f"""s_cmp_eq_u32 s{sW}, 0
                s_cselect_b32 s{sA}, s{sI}, 0
                s_cmp_ge_u32 s{sA}, 2
                s_cbranch_scc1 L_repoll""")
                a.label("L_repolled")
            if j == kdma_at:
                a.note("next chunk: from d_ws if both of its publishers have arrived")
                a(f"""v_mov_b32 v{t0}, {FLAG}
                ds_read_b32 v{t0}, v{t0}
                s_xor_b32 m0, s{sM0K}, s{sPAR}
                s_lshr_b32 s{sB}, s{sKOFF}, 14
                s_add_u32 s{sB}, s{sB}, 1
                s_waitcnt lgkmcnt(0)
                v_readfirstlane_b32 s{sA}, v{t0}
                s_cmp_eq_u32 s{sA}, {hex(0x7fffffff if opts.get("x_self") else all_ready(opts))}
                s_cselect_b32 s{sMODE}, 1, 0
                s_bitcmp1_b32 s{sA}, {0 if opts.get("x_self") else "s%d" % sB}
                s_cbranch_scc0 L_raw""")
                for p in range(4):
                    a(dma1(p, vKS, sX, sKOFF, " sc1"))
                a.label("L_kdone")
            if j == lump_at:
                a(f"s_cmp_eq_u32 s{sRAW}, 1")
                a("s_cbranch_scc1 L_lump")
                a.label("L_lumped")
        if j == 6 and kind != "first":
            a(f"s_cmp_eq_u32 s{sI}, 7")
            a("s_cbranch_scc1 L_last")
        stamp_it(a, opts, f"h{j}", kind)
    if opts.get("clk"):
        clock_sample(a, f"s{sI}")


def clock_sample(a, slot):
    a(f"""s_memtime s[60:61]
    s_memrealtime s[62:63]
    s_lshl_b32 s64, s2, 3
    s_add_u32 s64, s64, s{sW}
    s_lshl_b32 s64, s64, 7
    s_lshl_b32 s65, {slot}, 3
    s_add_u32 s64, s64, s65
    s_add_u32 s64, s64, 0x1000000
    s_mov_b32 s68, s{sWS}
    s_mov_b32 s69, s{sWS+1}
    s_mov_b32 s70, 0x2000000
    s_mov_b32 s71, 0x20000
    s_waitcnt lgkmcnt(0)
    v_mov_b32 v246, s60
    v_mov_b32 v247, s62
    v_mov_b32 v245, 0
    buffer_store_dwordx2 v[246:247], v245, s[68:71], s64 offen""")


def main_loop(a, opts):
    if opts.get("clk"):
        clock_sample(a, "8")
        a("""s_getreg_b32 s60, hwreg(HW_REG_XCC_ID)
        s_add_u32 s64, s64, 8
        v_mov_b32 v246, s60
        buffer_store_dwordx2 v[246:247], v245, s[68:71], s64 offen""")
    a("s_setprio 3")
    iteration(a, opts, "first")
    a(f"s_mov_b32 s{sI}, 1")
    a.label("L_hook")
    iteration(a, opts, "hook")
    a(f"""s_add_u32 s{sI}, s{sI}, 1
    s_cmp_eq_u32 s{sMODE}, 0
    s_cbranch_scc1 L_hook""")
    a.raw(".p2align 6")
    a.label("L_lean")
    iteration(a, opts, "lean")
    a(f"s_add_u32 s{sI}, s{sI}, 1")
    a("s_branch L_lean")
    a.label("L_last")
    t0 = vT[0]
    e = [f"v_exp_f32 v{SS[1][x] + 8 * h + i}, v{SS[1][x] + 8 * h + i}" for h in range(2) for x in range(2) for i in range(8)]
    w = [send(t, p) for t in range(2) for p in range(4)]
    if opts.get("skipown", 0):
        a(f"s_lshr_b32 s{sD}, s{sW}, 1")
        for n in range(8):
            w[n] = (f"s_cmp_eq_u32 s{sD}, {n >> 2}\n" if n % 4 == 0 else "") + f"s_cbranch_scc1 L_kept{n}\n{w[n]}\n@L_kept{n}"
    a(f"s_lshl_b32 s{sB}, s{sW}, 14")
    a(f"v_lshl_add_u32 v{t0}, v{vL}, 4, s{sB}")
    seq = ([pv(0, 0, 1)] + e[0:4] + [pv(0, 1, 1)] + e[4:12] + [w[0]] + e[12:15] + [w[1]] + e[15:18] + [pv(1, 0, 0), w[2]]
           + e[18:22] + [pv(1, 1, 0), w[3]] + e[22:24] + [w[4]] + e[24:26] + [pv(1, 0, 1), w[5]] + e[26:29] + [w[6]]
           + e[29:32] + [w[7], "s_nop 0", pv(1, 1, 1)])
    for ins in seq:
        a(ins)


def send(t, p):
    return f"ds_write_b128 v{vT[0]}, {vr(O[t] + 4 * p, 4)} offset:{4096 * t + 1024 * p}"


def lump(a, publish):
    t0, t1 = vT[2], vT[0]
    a(f"s_add_u32 s{sA}, s{sM0K}, s{sPAR}")
    a(f"v_mad_u32_u24 v{t0}, v{vL}, 56, s{sA}")
    a(f"v_add_u32 v{t1}, s{sPAR}, v{vKW}")
    read_rows(a, R, t0)
    a("s_waitcnt lgkmcnt(0)")
    normalise(a, R, K_PADS, t1)
    if publish:
        a(f"s_cmp_eq_u32 s{sPUB}, 1")
        a("s_cbranch_scc0 L_published")
        for p in range(4):
            a(f"buffer_store_dwordx4 {vr(R + 4 * p, 4)}, v{vKW}, s[{sX}:{sX+3}], s{sKOFF} offen offset:{piece_off(p)} sc1")
        a.label("L_published")


def side_blocks(a, opts):
    a.label("L_raw")
    a(f"s_mov_b32 s{sRAW}, 1")
    for p in range(4):
        a(dma1(p, vVG, sK, sVOFF))
    a("s_branch L_kdone")
    a.label("L_lump")
    a(f"s_mov_b32 s{sRAW}, 0")
    a("s_waitcnt vmcnt(0)")
    lump(a, publish=False)
    a("s_branch L_lumped")
    t0 = vT[2]
    a.label("L_repoll")
    a(f"""s_lshl_b32 s{sA}, s{sH}, 4
    v_mov_b32 v{t0}, 0
    v_mov_b32 v{vPOLL}, 0
    s_mov_b64 exec, 1
    buffer_atomic_add v{vPOLL}, v{t0}, s[{sG}:{sG+3}], s{sA} offen sc0 sc1
    s_mov_b64 exec, -1
    s_branch L_repolled""")
    a.label("L_relay")
    a(f"""v_mov_b32 v{t0}, {FLAG}
    s_waitcnt vmcnt(0)
    s_mov_b64 exec, 1
    ds_write_b32 v{t0}, v{vPOLL}
    s_mov_b64 exec, -1
    s_branch L_polled""")


def epilogue(a, opts):
    a.label("L_epi")
    stamp(a, opts, "done")
    t0, t1, t2 = vT[0:3]
    l0, l1 = vT[4], vT[3]
    own, tot = D[0], SS[0][0]
    part = [SS[0][0], SS[0][1], SS[1][0]]
    src = [vT[5], vT[6], t1]
    a(f"""s_lshr_b32 s{sD}, s{sW}, 1
    s_lshl_b32 s{sA}, s{sD}, 12
    s_add_u32 s{sB}, s{sB}, s{sA}
    v_and_b32 v{t2}, 31, v0
    v_mul_u32_u24 v{t2}, 56, v{t2}
    v_bfe_u32 v{l1}, v0, 5, 1
    v_lshl_add_u32 v{t2}, v{l1}, 3, v{t2}
    v_add_u32 v{t2}, s{sB}, v{t2}
    v_lshl_add_u32 v{vAK}, v{vL}, 4, s{sB}
    v_xor_b32 v{src[0]}, 0x8000, v{vAK}
    v_xor_b32 v{src[1]}, 0x10000, v{vAK}
    v_xor_b32 v{src[2]}, 0x18000, v{vAK}
    s_and_b32 s{sA}, s{sW}, 1
    s_lshl_b32 s{sA}, s{sA}, 2
    s_add_u32 s{sA}, s{sA}, s{sD}
    s_mul_i32 s{sA}, s{sA}, {32 * 56}
    s_cmp_eq_u32 s{sD}, 1
    s_cbranch_scc1 L_send1
    s_cmp_eq_u32 s{sD}, 2
    s_cbranch_scc1 L_send2
    s_cmp_eq_u32 s{sD}, 3
    s_cbranch_scc1 L_send3""")
    for k in range(4):
        if k:
            a.label(f"L_send{k}")
        ws = [send(t, p) for t in (2, 3) if t != k for p in range(4)]
        for n in range(8):
            if n < len(ws):
                a(ws[n])
            a(f"v_mov_b64 {vr(own + 2 * n, 2)}, {vr(O[k] + 2 * n, 2)}")
        if k < 3:
            a("s_branch L_sent")
    a.label("L_sent")
    a("s_waitcnt lgkmcnt(0)")
    stamp(a, opts, "sent")
    a("s_barrier")
    order = (3, 0, 1, 2)
    for p in order:
        for k in range(3):
            a(f"ds_read_b128 {vr(part[k] + 4 * p, 4)}, v{src[k]} offset:{1024 * p}")
    extra = {0: [f"v_mov_b32 v{l0}, v{tot + 12}", f"v_mov_b32 v{l1}, v{tot + 12}"], 1: [f"v_permlane32_swap_b32 v{l0}, v{l1}"],
             2: [f"v_rcp_f32 v{l1}, v{l1}"], 3: []}
    for n, p in enumerate(order):
        a(f"s_waitcnt lgkmcnt({11 - 3 * n})")
        for i in (0, 2):
            a(f"v_pk_add_f32 {vr(tot + 4 * p + i, 2)}, {vr(part[0] + 4 * p + i, 2)}, {vr(own + 4 * p + i, 2)}")
        a(f"s_waitcnt lgkmcnt({9 - 3 * n})")
        for i in (0, 2):
            a(f"v_pk_add_f32 {vr(part[1] + 4 * p + i, 2)}, {vr(part[1] + 4 * p + i, 2)}, {vr(part[2] + 4 * p + i, 2)}")
        for i in (0, 2):
            a(f"v_pk_add_f32 {vr(tot + 4 * p + i, 2)}, {vr(tot + 4 * p + i, 2)}, {vr(part[1] + 4 * p + i, 2)}")
        for ins in extra[n]:
            a(ins)
    for g in range(4):
        for i in (0, 2):
            a(f"v_pk_mul_f32 {vr(D[1] + 4 * g + i, 2)}, {vr(tot + 4 * g + i, 2)}, {vr(l1, 2)} op_sel_hi:[1,0]")
        if g:
            a(f"ds_write_b64 v{t2}, {vr(R + 2 * g - 2, 2)} offset:{16 * g - 16}")
        for i in (0, 1):
            a(f"v_cvt_pk_bf16_f32 v{R + 2 * g + i}, v{D[1] + 4 * g + 2 * i}, v{D[1] + 4 * g + 2 * i + 1}")
    a(f"""s_mov_b32 exec_hi, 0
    ds_write_b64 v{t2}, {vr(R + 6, 2)} offset:48
    s_mov_b32 exec_hi, -1
    v_lshlrev_b32 v{t1}, 4, v{vL}
    ds_read_b128 {vr(KF, 4)}, v{vAK}
    ds_read_b128 {vr(KF + 4, 4)}, v{vAK} offset:1024
    s_waitcnt lgkmcnt(1)
    buffer_store_dwordx4 {vr(KF, 4)}, v{t1}, s[{sO}:{sO+3}], s{sA} offen
    s_mov_b32 exec_hi, 0xffff
    s_waitcnt lgkmcnt(0)
    buffer_store_dwordx4 {vr(KF + 4, 4)}, v{t1}, s[{sO}:{sO+3}], s{sA} offen offset:1024
    s_mov_b32 exec_hi, -1""")
    for i in range(16):
        a(f"v_max_f32 v{tot + i}, abs(v{tot + i}), abs(v{own + i})")
    a(f"v_min3_f32 v{l0}, v{tot}, v{tot + 1}, v{tot + 2}")
    for i in range(3, 13, 2):
        a(f"v_min3_f32 v{l0}, v{l0}, v{tot + i}, v{tot + i + 1}")
    a("s_mov_b32 exec_hi, 0")
    a(f"v_min3_f32 v{l0}, v{l0}, v{tot + 13}, v{tot + 14}")
    a(f"v_min_f32 v{l0}, v{tot + 15}, v{l0}")
    a(f"""s_mov_b32 exec_hi, -1
    v_cmp_gt_f32 vcc, {hex(O_MIN)}, v{l0}
    v_mov_b32 v{t0}, {FLAG + 4}
    v_mov_b32 v{t1}, 1
    s_cbranch_vccz L_final
    ds_write_b32 v{t0}, v{t1}
    s_waitcnt lgkmcnt(0)""")
    a.label("L_final")
    a(f"""s_barrier
    ds_read_b32 v{t0}, v{t0}
    s_waitcnt lgkmcnt(0)
    v_readfirstlane_b32 s{sA}, v{t0}
    s_cmp_gt_u32 s{sA}, s{sSLOW}
    s_cbranch_scc1 L_redo""")
    if opts.get("stamps"):
        a("s_mov_b64 exec, -1")
        stamp(a, opts, "stored")
        a("s_waitcnt vmcnt(0)")
        stamp(a, opts, "end")
        dbg = opts["stamps"] == 2
        a(f"""s_memrealtime s[76:77]
        s_load_dwordx2 s[4:5], s[0:1], {40 if dbg else 48}
        s_waitcnt lgkmcnt(0)
        s_mov_b32 s6, {64 if dbg else 0x2000000}
        s_mov_b32 s7, 0x20000
        s_lshl_b32 s8, s2, 3
        s_add_u32 s8, s8, s{sW}""")
        if dbg:
            a("""s_cmp_eq_u32 s8, 2047
            s_cselect_b32 s9, 1, 2
            s_cmp_eq_u32 s8, 0
            s_cselect_b32 s8, 0, s9""")
        a("s_lshl_b32 s8, s8, 5")
        if not dbg:
            a("s_add_u32 s8, s8, 0x1000000")
        a("""v_mov_b32 v0, 0
        v_mov_b32 v1, s74
        buffer_store_dword v1, v0, s[4:7], s8 offen""")
        for n in range(1, 7):
            if opts["slots"][n] == "mode":
                a(f"s_mov_b32 s9, s{sP}")
            else:
                a(f"s_sub_u32 s9, s{sTS + 2 * n}, s{sTS}")
            a("v_mov_b32 v1, s9")
            a(f"buffer_store_dword v1, v0, s[4:7], s8 offen offset:{4 * n}")
        a("s_sub_u32 s9, s76, s74")
        a("v_mov_b32 v1, s9")
        a("buffer_store_dword v1, v0, s[4:7], s8 offen offset:28")
    if opts.get("hold"):
        if opts.get("holdraw"):
            a(f"""s_mul_i32 s8, s{sP}, 400
            s_add_u32 s74, s74, s8""")
        if opts.get("span"):
            a("""s_waitcnt lgkmcnt(0)
            s_sub_u32 s8, s60, s62
            s_lshl_b32 s8, s8, 2
            s_add_u32 s74, s74, s8""")
        if opts.get("holdk"):
            a(f"""s_waitcnt lgkmcnt(0)
            s_sub_u32 s8, s60, s74
            s_lshl_b32 s8, s8, {0 if opts["holdk"] == 2 else 2}
            s_add_u32 s74, s74, s8""")
        a.label("L_hold")
        a(f"""s_sleep 4
        s_memrealtime s[76:77]
        s_waitcnt lgkmcnt(0)
        s_sub_u32 s9, s76, s74
        s_cmp_lt_i32 s9, {opts["hold"]}
        s_cbranch_scc1 L_hold""")
    a.label("L_end")
    a("s_endpgm")


def slow_path(a):
    x0 = vT[2]
    a.label("L_redo")
    a(f"""s_mov_b32 s{sFORCE}, 1
    s_waitcnt vmcnt(0)
    s_barrier
    s_branch L_start""")
    a.label("L_slow")
    for t in range(4):
        a(f"v_mov_b32 v{MXS[t]}, 0xff800000")
    a(f"s_mov_b32 s{sP}, 0")
    a.label("L_slow_pass")
    a(f"s_mov_b32 s{sVOFF}, 0")
    a.label("L_slow_chunk")
    a("s_waitcnt vmcnt(0) lgkmcnt(0)")
    a("s_barrier")
    dma4(a, sM0K, vVG, sK, f"s{sVOFF}")
    dma4(a, sM0V, vVG, sV, f"s{sVOFF}")
    a(f"v_mad_u32_u24 v{x0}, v{vL}, 56, s{sM0K}")
    a("s_waitcnt vmcnt(0)")
    read_rows(a, R, x0)
    a("s_waitcnt lgkmcnt(0)")
    normalise(a, R, K_PADS, vKW)
    a("s_waitcnt lgkmcnt(0)")
    a("s_barrier")
    for j in range(4):
        a(rdK(0, j)); a(rdK(1, j))
        for which in range(2):
            for part in range(2):
                a(rdV(which, part, j))
        a("s_waitcnt lgkmcnt(0)")
        a(f"s_call_b64 s[{sLINK}:{sLINK+1}], L_slow_tile")
    a(f"""s_add_u32 s{sVOFF}, s{sVOFF}, {CHB}
    s_cmp_lt_u32 s{sVOFF}, {HEADB}
    s_cbranch_scc1 L_slow_chunk
    s_cmp_eq_u32 s{sP}, 1
    s_cbranch_scc1 L_slow_done""")
    for t in range(4):
        a(f"""v_mov_b32 v{x0}, v{MXS[t]}
        s_nop 1
        v_permlane32_swap_b32 v{x0}, v{MXS[t]}
        s_nop 1
        v_max_f32 v{MXS[t]}, v{x0}, v{MXS[t]}""")
    for t in range(4):
        a(f"v_mov_b32 v{D[0] + t}, v{MXS[t]}")
    a(f"""s_barrier
    v_lshlrev_b32 v{x0}, 4, v0
    ds_write_b128 v{x0}, {vr(D[0], 4)}
    s_waitcnt lgkmcnt(0)
    s_barrier""")
    for k in range(1, 4):
        a(f"v_xor_b32 v{x0 + 1}, {2048 * k}, v{x0}")
        a(f"ds_read_b128 {vr(D[0], 4)}, v{x0 + 1}")
        a("s_waitcnt lgkmcnt(0)")
        for t in range(4):
            a(f"v_max_f32 v{MXS[t]}, v{MXS[t]}, v{D[0] + t}")
    a(f"s_mov_b32 s{sP}, 1")
    a("s_branch L_slow_pass")
    a.label("L_slow_done")
    a("s_barrier")
    a(f"s_lshl_b32 s{sB}, s{sW}, 14")
    a(f"v_lshl_add_u32 v{vT[0]}, v{vL}, 4, s{sB}")
    a("s_nop 11")
    for t in range(2):
        for p in range(4):
            a(send(t, p))
    a("s_branch L_epi")
    a.label("L_slow_tile")
    tiles = [(p, x) for p in range(2) for x in range(2)]
    for p, x in tiles:
        a(qk(p, x, 0)); a(qk(p, x, 1))
    a("s_nop 15")
    for p, x in tiles:
        for i in range(16):
            a(f"v_mul_f32 v{SS[p][x] + i}, s{sT}, v{SS[p][x] + i}")
    a(f"s_cmp_eq_u32 s{sP}, 1")
    a("s_cbranch_scc1 L_slow_exp")
    for p, x in tiles:
        for i in range(0, 16, 2):
            a(f"v_max3_f32 v{MXS[2 * p + x]}, v{MXS[2 * p + x]}, v{SS[p][x] + i}, v{SS[p][x] + i + 1}")
    a(f"s_setpc_b64 s[{sLINK}:{sLINK+1}]")
    a.label("L_slow_exp")
    for p, x in tiles:
        for i in range(16):
            v = SS[p][x] + i
            a(f"v_sub_f32 v{v}, v{v}, v{MXS[2 * p + x]}")
            a(f"v_mul_f32 v{v}, {hex(LOG2E)}, v{v}")
            a(f"v_exp_f32 v{v}, v{v}")
    a("s_nop 1")
    for p, x in tiles:
        a(pv(p, x, 0)); a(pv(p, x, 1))
    a(f"s_setpc_b64 s[{sLINK}:{sLINK+1}]")


SLOTS = {0: ["start", "setup", "prebar", "loop", "mode", "done", "end"],
         1: ["start", "karg", "issued", "setup", "kdata", "prebar", "end"],
         2: ["start", "loop", "done", "sent", "stored", "mode", "end"],
         3: ["start", "kdata", "mid", "qdata", "lump2", "prebar", "end"],
         4: ["start", "loop", "e1", "h1", "e3", "h3", "end"],
         5: ["start", "e4", "h4", "e5", "h5", "e6", "end"],
         6: ["start", "e0", "e2", "e4", "e5", "e6", "e7"],
         7: ["start", "loop", "e0", "h0", "e4", "h4", "e6"],
         8: ["start", "e5", "e6", "h6", "e7", "done", "end"],
         9: ["start", "e1", "h1", "e2", "h2", "e3", "h3"],
         10: ["start", "qdata", "n0", "n1", "n2", "n3", "n4"],
         11: ["start", "n3", "n4", "n5", "prebar", "loop", "end"]}


def build(opts):
    opts["slots"] = SLOTS[opts.get("pro", 0)]
    a = Asm()
    name = "standalone__qk_norm__prompt_kernel"
    a.raw(HEADER + DOC + f"; @launch grid=(256,1,1) block=(512,1,1) lds={LDS_BYTES}")
    a.raw('.amdgcn_target "amdgcn-amd-amdhsa--gfx950"\n.text')
    if opts.get("align", 0):
        a.raw(".p2align 12\n.fill 832, 4, 0xbf800000")
    a.raw(f".globl {name}\n.p2align 8\n.type {name},@function\n{name}:")
    prologue(a, opts)
    main_loop(a, opts)
    epilogue(a, opts)
    side_blocks(a, opts)
    slow_path(a)
    txt = a.text()
    if opts.get("stamps") or opts.get("holdraw"):
        txt = txt.replace(f"    s_mov_b32 s{sMODE}, 0\n", f"    s_mov_b32 s{sMODE}, 0\n    s_mov_b32 s{sP}, 0\n")
        txt = txt.replace(f"    s_mov_b32 s{sRAW}, 1\n", f"    s_mov_b32 s{sRAW}, 1\n    s_add_u32 s{sP}, s{sP}, 1\n")
    txt += f""".section .rodata,"a"
.p2align 6
.amdhsa_kernel {name}
  .amdhsa_next_free_vgpr {NVGPR}
  .amdhsa_next_free_sgpr {NSGPR}
  .amdhsa_accum_offset {NVGPR}
  .amdhsa_group_segment_fixed_size 0
  .amdhsa_kernarg_size 56
  .amdhsa_user_sgpr_count 2
  .amdhsa_user_sgpr_kernarg_segment_ptr 1
  .amdhsa_system_sgpr_workgroup_id_x 1
  .amdhsa_float_denorm_mode_32 3
.end_amdhsa_kernel
"""
    return txt


if __name__ == "__main__":
    opts = {}
    out = "standalone__qk_norm__prompt.s"
    for arg in sys.argv[1:]:
        k, _, v = arg.partition("=")
        if k == "out":
            out = v
        else:
            opts[k] = int(v)
    open(out, "w").write(build(opts))
```

```python
import sys

HEADER = """; Kernarg layout for this problem (56 bytes, ptrs only, base s[0:1]):
;   offset   0: d_in[0] q  shape=(1, 16, 4096, 28) dtype=bfloat16 strides=(3670016, 229376, 56, 2) contiguous=True
;   offset   8: d_in[1] k  shape=(1, 16, 4096, 28) dtype=bfloat16 strides=(3670016, 229376, 56, 2) contiguous=True
;   offset  16: d_in[2] v  shape=(1, 16, 4096, 28) dtype=bfloat16 strides=(3670016, 229376, 56, 2) contiguous=True
;   offset  32: d_out     shape=(1, 16, 4096, 28) dtype=bfloat16 (2 bytes/elem)
"""

DOC = """;
; Softmax shift: |logit * log2 e| < 23.2 when |t| <= 16, so the four spare k-slots subtract the constant 49.5
;   (products -1536, -1585.5, +1536, +1536).  Larger or non-finite t, or unnormalised outputs near the
; Normalised K: workgroup c normalises chunk 0 and chunk max(c / 2, 1) itself, stores its 256-key half of the
; LDS: K fragments / raw V, two buffer pairs (0, 0x10000); constant spots; query fragments; two flag words.
"""

HEADB = 229376
CHB = 28672
WSH = 262144
PAR = 0x10000
KB = [0, PAR]
VB = [32768, PAR + 32768]
ONES = 2 * PAR
QB = ONES + 14336
FLAG = QB + 16384
LDS_BYTES = FLAG + 256
T_LIMIT = 0x41800000
K_PAD2 = {3072: 0x3f9e0000, 1536: 0x3fa80000, 768: 0x3fb80000, 384: 0x3fa00000}
Q_PAD = {1536: (0xc4c00000, 0xc4970000, 0x44c00000),
         768: (0xc4400000, 0xc40e0000, 0x44400000),
         384: (0xc3c00000, 0xc3ad0000, 0x43c00000),
         3072: (0xc5400000, 0xc51e0000, 0x45400000)}
O_MIN = 0x0c800000
LOG2E = 0x3fb8aa3b
EPS = 0x358637bd

sK, sV, sO, sX, sG = 16, 20, 24, 28, 32
sH, sC, sW, sT, sI, sVOFF, sM0V, sKS = 36, 37, 38, 39, 40, 41, 42, 43
sA, sB, sD = 44, 45, 46
sPAR, sM0K, sKOFF, sRAW, sMODE, sPUB, sSLOW = 47, 48, 49, 50, 51, 52, 53
sWS = 54
sP = 56
sFORCE = 57
sKP, sQP = 3, 78
sLINK = 58
sTS = 60
NSGPR = 80
vL, vKS, vVG, vKW, vAK, vAV, vDV, vIDX = 1, 2, 3, 4, 5, 6, 7, 8
vT = [9, 10, 11, 12, 13, 14, 15]
RQ = 16
QF = [[16 + 8 * t, 20 + 8 * t] for t in range(4)]
O = [48, 64, 80, 96]
SS = [[112, 128], [144, 160]]
KF, V1, V2 = 176, 184, 188
R = 192
D = [208, 224]
A1, A2 = 240, 244
MX = [12, 13]
vPOLL = 15
vJUNK = SS[0][0]
MXS = [2, 7, 14, 15]
NVGPR = 248


def first_pub(opts):
    return 2


def all_ready(opts):
    return sum(2 << (2 * n) for n in range(first_pub(opts) // 2, 8))


class Asm:
    def __init__(self):
        self.l = []
    def __call__(self, s):
        for x in s.split("\n"):
            x = x.strip()
            self.l.append(x[1:] + ":" if x.startswith("@") else "    " + x)
    def label(self, n):
        self.l.append(n + ":")
    def note(self, s):
        for x in s.strip().split("\n"):
            self.l.append("    ; " + x.strip())
    def raw(self, s):
        self.l.append(s)
    def text(self):
        return "\n".join(self.l) + "\n"


def vr(a, n):
    return f"v[{a}:{a + n - 1}]"


def dma4(a, m0, vaddr, srd, soff, flags="", exact=False):
    a(f"s_mov_b32 m0, s{m0}")
    a("s_nop 0")
    for p in range(4):
        if exact and p == 3:
            a("s_mov_b32 exec_hi, 0")
        a(f"buffer_load_dwordx4 v{vaddr}, s[{srd}:{srd+3}], {soff} offen offset:{1024 * p}{flags} lds")
    if exact:
        a("s_mov_b32 exec_hi, -1")


def read_rows(a, r, vaddr):
    for i in range(3):
        a(f"ds_read2_b64 {vr(r + 4 * i, 4)}, v{vaddr} offset0:{2 * i} offset1:{2 * i + 1}")
    a(f"ds_read_b64 {vr(r + 12, 2)}, v{vaddr} offset:48")


def normalise(a, r, pads, dst, scale=None, mid=None, mid2=None, st=lambda n: None):
    nrm = vT[1]
    acc = MX[0]
    a(f"v_mfma_f32_32x32x16_bf16 {vr(D[0], 16)}, {vr(A1, 4)}, {vr(r, 4)}, 0")
    a(f"v_mfma_f32_32x32x16_bf16 {vr(D[0], 16)}, {vr(A2, 4)}, {vr(r + 4, 4)}, {vr(D[0], 16)}")
    a(f"v_mfma_f32_32x32x16_bf16 {vr(D[1], 16)}, {vr(A1, 4)}, {vr(r + 8, 4)}, 0")
    a(f"v_mfma_f32_32x32x16_bf16 {vr(D[1], 16)}, {vr(A2, 4)}, {vr(r + 12, 4)}, {vr(D[1], 16)}")
    if mid:
        mid(a)
    a("s_nop 3" if mid else "s_nop 9")
    st("n1")
    for i in range(14):
        d = vr(D[0] + 2 * i, 2)
        if i == 0:
            a(f"v_pk_mul_f32 {vr(acc, 2)}, {d}, {d}")
        else:
            a(f"v_pk_fma_f32 {vr(acc, 2)}, {d}, {d}, {vr(acc, 2)}")
    a(f"v_add_f32 v{nrm}, v{acc}, v{acc + 1}")
    st("n2")
    a(f"v_sqrt_f32 v{nrm}, v{nrm}")
    a("s_nop 0")
    a(f"v_add_f32 v{nrm}, {hex(EPS)}, v{nrm}")
    a(f"v_rcp_f32 v{nrm}, v{nrm}")
    a("s_nop 0")
    if scale is not None:
        a(f"v_mul_f32 v{nrm}, v{scale}, v{nrm}")
    st("n3")
    if mid2:
        mid2(a)
    muls = [f"v_pk_mul_f32 {vr(D[0] + 2 * i, 2)}, {vr(D[0] + 2 * i, 2)}, {vr(nrm, 2)} op_sel_hi:[1,0]" for i in range(14)]
    done = 0
    for n in range(16):
        p, k = n >> 2, n & 3
        lo = 7 * p + 2 * k
        hi = lo + 1 if k < 3 else lo
        while done < 14 and 2 * done <= hi + 2:
            a(muls[done])
            done += 1
        if n in (5, 9, 13):
            write_frag(a, r, dst, p - 1)
        a(f"v_cvt_pk_bf16_f32 v{r + n}, v{D[0] + lo}, {f'v{D[0] + hi}' if k < 3 else pads[p]}")
    write_frag(a, r, dst, 3)


K_PADS = ["1.0", f"s{sKP}", "1.0", "1.0"]


def piece_off(p):
    return (p >> 1) * 1024 + (p & 1) * 512


def write_frag(a, r, vaddr, p):
    a(f"ds_write_b128 v{vaddr}, {vr(r + 4 * p, 4)} offset:{piece_off(p)}")


def rdK(f, tile):
    return f"ds_read_b128 {vr(KF + 4 * f, 4)}, v{vAK} offset:{(tile % 4) * 2048 + 1024 * f}"


def rdV(which, part, tile):
    base = (V1, V2)[which] + 2 * part
    return f"ds_read_b64_tr_b16 {vr(base, 2)}, v{vAV} offset:{(tile % 4) * 1792 + 896 * which + 224 * part}"


def qk(p, x, f):
    s = SS[p][x]
    c = "0" if f == 0 else vr(s, 16)
    return f"v_mfma_f32_32x32x16_bf16 {vr(s, 16)}, {vr(KF + 4 * f, 4)}, {vr(QF[2 * p + x][f], 4)}, {c}"


def pv(p, x, which):
    return f"v_smfmac_f32_32x32x32_bf16 {vr(O[2 * p + x], 16)}, {vr((V1, V2)[which], 4)}, {vr(SS[p][x] + 8 * which, 8)}, v{vIDX}"


def step(a, n, slots, sync=None, sync_g=3):
    j, p = n >> 1, n & 1
    e = [f"v_exp_f32 v{SS[p][x] + 8 * h + i}, v{SS[p][x] + 8 * h + i}" for h in range(2) for x in range(2) for i in range(8)]
    m = [pv(1 - p, 0, 1), pv(1 - p, 1, 1), qk(1 - p, 0, 0), qk(1 - p, 1, 0), qk(1 - p, 0, 1), qk(1 - p, 1, 1),
         pv(p, 0, 0), pv(p, 1, 0)]
    if p == 0:
        r = {0: [rdV(0, 1, j)], 1: [rdV(1, 0, j)], 2: [rdV(1, 1, j)], 3: [rdK(0, j + 1)],
             5: [rdK(1, j + 1), "s_waitcnt lgkmcnt(2)"]}
        if sync and sync_g != 3:
            r[1] += r.pop(2)
            r[sync_g] = r.pop(3) + r.get(sync_g, [])
    else:
        r = {1: ["s_waitcnt lgkmcnt(0)"], 7: [rdV(0, 0, j + 1)]}
    pos = 0
    for g in range(8):
        for i in range(pos, 2 + 4 * g):
            a(e[i])
        pos = 2 + 4 * g
        a(m[g])
        if g == sync_g and sync:
            sync(a)
        for ins in r.get(g, []) + slots.get(g, []):
            a(ins)
    for i in range(pos, 32):
        a(e[i])


HOLD_POINTS = [None, "loop", "done", "karg", "issued", "kdata", "lump2", "prebar", "setup", "qdata"]


def stamp(a, opts, name):
    if opts.get("holdk") and HOLD_POINTS[opts["holdk"]] == name:
        a("s_memrealtime s[60:61]")
    if opts.get("stamps") and name in opts["slots"]:
        n = opts["slots"].index(name)
        a(f"s_memtime s[{sTS + 2 * n}:{sTS + 2 * n + 1}]")


def stamp_it(a, opts, name, kind):
    if opts.get("span") and name in (f"e{opts['span']}", f"h{opts['span']}") and kind == "hook":
        a(f"s_cmp_eq_u32 s{sI}, 1")
        a(f"s_cbranch_scc0 L_sp_{name}")
        a("s_memrealtime s[62:63]" if name[0] == "e" else "s_memrealtime s[60:61]")
        a.label(f"L_sp_{name}")
    if opts.get("stamps") and name in opts["slots"]:
        a(f"s_cmp_eq_u32 s{sI}, {opts.get('it', 0)}")
        a(f"s_cbranch_scc0 L_st_{name}_{kind}")
        stamp(a, opts, name)
        a.label(f"L_st_{name}_{kind}")


def prologue(a, opts):
    t0, t1, t2, t3, t4 = vT[2], vT[3], vT[0], vT[5], vT[6]
    z = V2
    m4 = opts.get("m4", 0)
    touch = opts.get("touch", 1)
    a("s_cmp_ge_u32 s2, 256")
    a("s_cbranch_scc1 L_end")
    a(f"s_mov_b32 s{sFORCE}, 0")
    a.label("L_start")
    stamp(a, opts, "start")
    if opts.get("stamps") or opts.get("hold"):
        a("s_memrealtime s[74:75]")
    if opts.get("hold"):
        a("s_memrealtime s[60:61]")
    a("s_load_dwordx8 s[4:11], s[0:1], 0")
    a("s_load_dwordx4 s[12:15], s[0:1], 32")
    a(f"s_load_dwordx2 s[{sWS}:{sWS+1}], s[0:1], 48")
    a(f"""v_lshrrev_b32 v{t0}, 6, v0
    v_and_b32 v{vL}, 63, v0
    s_and_b32 s{sA}, s2, 7
    v_readfirstlane_b32 s{sW}, v{t0}
    s_lshl_b32 s{sA}, s{sA}, 1
    s_bfe_u32 s{sB}, s2, 0x10003
    s_add_u32 s{sH}, s{sA}, s{sB}
    s_lshr_b32 s{sC}, s2, 4""")
    if opts.get("x_perm") == 1:
        a(f"s_lshr_b32 s{sH}, s2, 4")
        a(f"s_and_b32 s{sC}, s2, 15")
    if opts.get("x_perm") == 2:
        a(f"""s_lshr_b32 s{sA}, s2, 4
        s_add_u32 s{sH}, s{sH}, s{sA}
        s_add_u32 s{sH}, s{sH}, s{sA}
        s_and_b32 s{sH}, s{sH}, 15""")
    if opts.get("pf", 1):
        a.note("""pull the kernel's code into L2 while the first loads are pending""")
        c0, c1 = D[0], D[0] + 2
        if opts.get("pfn", 64) < 256:
            a(f"s_cmp_ge_u32 s2, {opts.get('pfn', 64)}")
            a("s_cbranch_scc1 L_nopf")
        a(f"""s_cmp_eq_u32 s{sW}, 7
        s_cbranch_scc0 L_nopf
        s_getpc_b64 s[{sG}:{sG+1}]""")
        a.label("L_pc")
        a(f"""v_lshlrev_b32 v{t0}, 7, v{vL}
        v_mov_b32 v{c0 + 1}, s{sG+1}
        v_add_co_u32 v{c0}, vcc, s{sG}, v{t0}
        v_add_u32 v{t0}, 0x2000, v{t0}
        v_min_u32 v{t0}, L_raw-L_pc, v{t0}
        v_addc_co_u32 v{c0 + 1}, vcc, 0, v{c0 + 1}, vcc
        v_mov_b32 v{c1 + 1}, s{sG+1}
        v_add_co_u32 v{c1}, vcc, s{sG}, v{t0}
        global_load_dword v{vJUNK}, {vr(c0, 2)}, off
        s_nop 0
        v_addc_co_u32 v{c1 + 1}, vcc, 0, v{c1 + 1}, vcc
        global_load_dword v{vJUNK}, {vr(c1, 2)}, off""")
        a.label("L_nopf")
    a(f"""s_mul_i32 s{sA}, s{sH}, {HEADB}
    s_mul_i32 s{sD}, s{sC}, 14336
    s_add_u32 s{sB}, s{sD}, s{sA}
    s_lshr_b32 s{sKS}, s{sW}, 2
    s_mul_i32 s{sM0V}, s{sW}, 3584
    v_lshlrev_b32 v{vAK}, 4, v{vL}
    v_add_u32 v{vVG}, s{sM0V}, v{vAK}
    s_add_u32 s{sM0V}, s{sM0V}, {VB[0]}
    s_lshl_b32 s{sM0K}, s{sW}, 12
    s_mov_b32 s{sK+2}, {HEADB}
    s_mov_b32 s{sK+3}, 0x20000
    s_mov_b32 s{sX+2}, 14336
    s_mov_b32 s{sX+3}, 0x20000
    s_add_u32 s{sMODE}, s{sM0K}, {QB}
    s_lshr_b32 s{sD}, s{sH}, 1
    s_lshl_b32 s{sD}, s{sD}, 2""")

    def setup_a(a):
        a.note("""selection matrices of the bf16 -> fp32 unpacking MFMAs; row and fragment addresses""")
        a(f"""v_mov_b32 v{R+15}, 0x3f80
        s_mov_b32 s{sKP}, {hex(K_PAD2[opts.get("M", 1536)])}
        s_mov_b32 vcc_lo, 0xaaaaaaaa
        s_mov_b32 vcc_hi, 0xaaaaaaaa
        v_cndmask_b32 v{t1}, v{R+15}, 1.0, vcc""")
        for p in range(8):
            lo = 3 << (8 * (p >> 1) + 2 * (p & 1))
            a(f"s_mov_b32 vcc_lo, {hex(lo)}")
            a(f"s_mov_b32 vcc_hi, {hex(lo << 4)}")
            a(f"v_cndmask_b32 v{A1 + p}, 0, v{t1}, vcc")
        a(f"""v_mov_b32 v{R+14}, 0
        v_lshrrev_b32 v{t0}, 5, v0
        v_mul_u32_u24 v{t0}, 1536, v{t0}
        v_lshl_add_u32 v{vKW}, v0, 4, v{t0}""")

    if opts.get("prek", 1) == 1:
        setup_a(a)
    a("s_waitcnt lgkmcnt(0)")
    stamp(a, opts, "karg")
    a(f"""s_add_u32 s{sK}, s6, s{sA}
    s_addc_u32 s{sK+1}, s7, 0""")
    dma4(a, sM0K, vVG, sK, 0, exact=m4)
    if opts.get("prek", 1) == 2:
        setup_a(a)
    a(f"""s_cmp_eq_u32 s{sKS}, 0
    s_cbranch_scc0 L_noq
    s_add_u32 s{sX}, s4, s{sB}
    s_addc_u32 s{sX+1}, s5, 0""")
    dma4(a, sMODE, vVG, sX, 0, exact=m4)
    a.label("L_noq")
    a(f"""s_add_u32 s{sV}, s8, s{sA}
    s_addc_u32 s{sV+1}, s9, 0
    s_mov_b32 s{sV+2}, {HEADB}
    s_mov_b32 s{sV+3}, 0x20000""")
    if touch:
        a.note("""each of the head's 16 workgroups pulls a different 1/16 of the first V chunk into L2""")
        a(f"""s_cmp_eq_u32 s{sW}, 4
        s_cbranch_scc0 L_notouch
        s_mul_i32 s{sP}, s{sC}, 1792
        v_lshlrev_b32 v{t0}, 7, v{vL}
        s_mov_b64 exec, 0x3fff
        buffer_load_dword v{vJUNK}, v{t0}, s[{sV}:{sV+3}], s{sP} offen
        s_mov_b64 exec, -1""")
        a.label("L_notouch")
    a(f"s_load_dword s{sT}, s[10:11], s{sD}")
    stamp(a, opts, "issued")
    if not opts.get("prek", 1):
        setup_a(a)
    a(f"""s_add_u32 s{sO}, s12, s{sB}
    s_addc_u32 s{sO+1}, s13, 0
    s_mov_b32 s{sO+2}, 14336
    s_mov_b32 s{sO+3}, 0x20000
    s_mov_b32 s{sG}, s14
    s_mov_b32 s{sG+1}, s15
    s_mov_b32 s{sG+2}, 256
    s_mov_b32 s{sG+3}, 0x20000
    s_mul_i32 s{sA}, s{sH}, {WSH}
    s_add_u32 s{sX}, s{sWS}, s{sA}
    s_addc_u32 s{sX+1}, s{sWS+1}, 0
    s_mov_b32 s{sX+2}, {WSH}
    v_mov_b64 {vr(z, 2)}, 0
    v_mov_b64 {vr(z + 2, 2)}, 0
    s_and_b32 s{sPUB}, s{sC}, 1
    s_cmp_eq_u32 s{sPUB}, s{sKS}
    s_cselect_b32 s{sPUB}, 1, 0
    s_cmp_ge_u32 s{sC}, {first_pub(opts)}
    s_cselect_b32 s{sPUB}, s{sPUB}, 0
    v_mfma_f32_32x32x16_bf16 {vr(O[0], 16)}, {vr(z, 4)}, {vr(z, 4)}, 0
    s_lshr_b32 s{sKOFF}, s{sC}, 1
    s_max_u32 s{sKOFF}, s{sKOFF}, 1
    s_mul_i32 s{sVOFF}, s{sKOFF}, {CHB}
    s_lshl_b32 s{sKOFF}, s{sKOFF}, 15
    s_lshr_b32 s{sB}, s{sW}, 1
    s_lshl_b32 s{sA}, s{sB}, 13
    v_add_u32 v{vAK}, s{sA}, v{vAK}
    v_mfma_f32_32x32x16_bf16 {vr(O[2], 16)}, {vr(z, 4)}, {vr(z, 4)}, 0
    s_mul_i32 s{sA}, s{sB}, {4 * 1792}
    s_add_u32 s{sA}, s{sA}, {VB[0]}
    v_and_b32 v{t0}, 15, v0
    v_bfe_u32 v{t1}, v0, 2, 2
    v_mad_u32_u24 v{t0}, v{t1}, 3, v{t0}
    v_lshrrev_b32 v{t1}, 4, v{vL}
    v_lshl_add_u32 v{t0}, v{t1}, 2, v{t0}
    v_lshrrev_b32 v{t1}, 5, v{vL}
    v_mad_u32_u24 v{t0}, v{t1}, 48, v{t0}
    v_mfma_f32_32x32x16_bf16 {vr(O[1], 16)}, {vr(z, 4)}, {vr(z, 4)}, 0
    v_lshl_add_u32 v{vAV}, v{t0}, 3, s{sA}
    v_mov_b32 v{vDV}, {PAR}
    v_lshlrev_b32 v{t1}, 6, v{t1}
    v_sub_u32 v{t1}, {ONES + 224}, v{t1}
    s_mov_b32 vcc_lo, 0x88880000
    s_mov_b32 vcc_hi, 0x88880000
    v_cndmask_b32 v{vAV}, v{vAV}, v{t1}, vcc
    v_cndmask_b32 v{vDV}, v{vDV}, v{R+14}, vcc
    v_mfma_f32_32x32x16_bf16 {vr(O[3], 16)}, {vr(z, 4)}, {vr(z, 4)}, 0
    v_mov_b32 v{vIDX}, 0xdddddddd
    v_mfma_f32_32x32x16_bf16 {vr(SS[1][0], 16)}, {vr(z, 4)}, {vr(z, 4)}, 0
    v_mfma_f32_32x32x16_bf16 {vr(SS[1][1], 16)}, {vr(z, 4)}, {vr(z, 4)}, 0
    s_cmp_eq_u32 s{sKS}, 0
    s_cbranch_scc1 L_two""")

    def temperature(a):
        a(f"""s_bitcmp1_b32 s{sH}, 0
        s_cselect_b32 s{sA}, 0, 16
        s_lshl_b32 s{sT}, s{sT}, s{sA}
        s_and_b32 s{sT}, s{sT}, 0xffff0000
        s_and_b32 s{sA}, s{sT}, 0x7fffffff
        s_cmp_gt_u32 s{sA}, {hex(T_LIMIT)}
        s_cselect_b32 s{sSLOW}, 1, s{sFORCE}""")

    a(f"""v_subrev_u32 v{t2}, 14336, v{vVG}
    s_sub_u32 s{sMODE}, s{sM0V}, 14336
    s_cmp_eq_u32 s{sW}, 6
    s_cbranch_scc0 L_noones
    v_lshrrev_b32 v{t0}, 3, v{vL}
    v_mul_u32_u24 v{t0}, 1792, v{t0}
    v_bfe_u32 v{t1}, v0, 2, 1
    v_mul_u32_u24 v{t1}, 896, v{t1}
    v_add_u32 v{t0}, v{t0}, v{t1}
    v_bfe_u32 v{t1}, v0, 1, 1
    v_mul_u32_u24 v{t1}, 224, v{t1}
    v_add_u32 v{t0}, v{t0}, v{t1}
    v_and_b32 v{t1}, 1, v0
    v_lshl_add_u32 v{t0}, v{t1}, 6, v{t0}
    v_add_u32 v{t0}, {ONES + 160}, v{t0}
    v_mov_b32 v{t1}, {FLAG}
    v_mov_b32 v{D[0]}, 0x3f80
    v_mov_b32 v{D[0] + 1}, 0
    ds_write_b64 v{t0}, {vr(D[0], 2)}
    ds_write_b64 v{t1}, {vr(z, 2)}""")
    a.label("L_noones")
    a(f"v_mad_u32_u24 v{t0}, v{vL}, 56, s{sM0K}")
    stamp(a, opts, "setup")
    vearly = opts.get("vearly", 0)
    if vearly:
        dma4(a, sMODE, t2, sV, 0, exact=m4)
    if vearly == 2:
        dma4(a, sM0V, vVG, sV, 0, exact=m4)
    if touch:
        a(f"""s_waitcnt vmcnt({4 * vearly + 1})
        s_cmp_eq_u32 s{sW}, 4
        s_cbranch_scc1 L_kready""")
    a(f"s_waitcnt vmcnt({4 * vearly})")
    a.label("L_kready")
    stamp(a, opts, "kdata")
    read_rows(a, R, t0)

    def load_v(a):
        if not vearly:
            dma4(a, sMODE, t2, sV, 0, exact=m4)
        if vearly < 2:
            dma4(a, sM0V, vVG, sV, 0, exact=m4)
    vpos = opts.get("vpos", 0)
    if vpos == 0:
        load_v(a)
    a("s_waitcnt lgkmcnt(0)")
    temperature(a)
    normalise(a, R, K_PADS, vKW, mid=load_v if vpos == 1 and vearly < 2 else None)
    if not opts.get("bar2", 0):
        a("s_waitcnt vmcnt(0)")
    a("s_branch L_join")
    a.label("L_two")
    a(f"""v_mov_b64 {vr(RQ + 14, 2)}, 0
    v_mad_u32_u24 v{t0}, v{vL}, 56, s{sM0K}
    v_add_u32 v{t2}, {QB}, v{t0}
    v_add_u32 v{t3}, {QB}, v{vKW}""")
    stamp(a, opts, "setup")
    a("s_waitcnt vmcnt(4)")
    stamp(a, opts, "kdata")
    read_rows(a, R, t0)
    a("s_waitcnt lgkmcnt(0)")

    def scale_setup(a):
        temperature(a)
        qa, qb, qc = Q_PAD[opts.get("M", 1536)]
        a(f"""s_cmp_eq_u32 s{sSLOW}, 1
        s_cselect_b32 s{sD}, 0, {hex(qa)}
        s_cselect_b32 s{sQP}, 0, {hex(qb)}
        s_cselect_b32 s{sQP + 1}, 0, {hex(qc)}
        s_cselect_b64 vcc, -1, 0
        v_mov_b32 v{t4}, {hex(LOG2E)}
        v_mul_f32 v{t4}, s{sT}, v{t4}
        v_cndmask_b32 v{t4}, v{t4}, 1.0, vcc""")

    def second_rows(a):
        stamp(a, opts, "mid")
        a("s_waitcnt vmcnt(0)")
        stamp(a, opts, "qdata")
        read_rows(a, RQ, t2)
    if opts.get("qlate", 1):
        normalise(a, R, K_PADS, vKW, mid=scale_setup)
        second_rows(a)
        a("s_waitcnt lgkmcnt(0)")
    else:
        normalise(a, R, K_PADS, vKW, mid=scale_setup, mid2=second_rows)
        a("s_waitcnt lgkmcnt(4)")
    stamp(a, opts, "n0")
    normalise(a, RQ, [f"s{sD}", f"s{sQP}", f"s{sQP + 1}", f"s{sQP + 1}"], t3, scale=t4, st=lambda n: stamp(a, opts, n))
    stamp(a, opts, "n5")
    a.label("L_join")
    stamp(a, opts, "lump2")
    a(f"s_mov_b32 s{sPAR}, {PAR}")
    a(f"""v_lshl_add_u32 v{vKS}, v{vL}, 4, s{sM0K}
    s_and_b32 s{sA}, s{sW}, 1
    s_lshl_b32 s{sA}, s{sA}, 13
    s_add_u32 s{sA}, s{sA}, {QB}
    v_lshl_add_u32 v{t0}, v{vL}, 4, s{sA}
    s_mov_b32 s{sMODE}, 0
    s_mov_b32 s{sRAW}, 0
    s_mov_b32 s{sI}, 0
    s_waitcnt lgkmcnt(0)""")
    stamp(a, opts, "prebar")
    a("s_barrier")

    def rdQ(t, f):
        a(f"ds_read_b128 {vr(QF[t][f], 4)}, v{t0} offset:{2048 * t + 1024 * f}")
    a(rdK(0, 0)); rdQ(0, 0); a(rdK(1, 0)); rdQ(0, 1); rdQ(1, 0); rdQ(1, 1)
    rdQ(2, 0); rdQ(3, 0); rdQ(2, 1); rdQ(3, 1)
    a(f"s_cmp_eq_u32 s{sSLOW}, 1")
    a("s_cbranch_scc1 L_slow")
    a(rdV(0, 0, 0))
    a("s_waitcnt lgkmcnt(9)")
    a(qk(0, 0, 0))
    a("s_waitcnt lgkmcnt(7)")
    a(qk(0, 0, 1))
    a("s_waitcnt lgkmcnt(5)")
    a(qk(0, 1, 0))
    a(qk(0, 1, 1))
    a("s_nop 7")
    stamp(a, opts, "loop")


PRIO_POINTS = [[(4, 4), (5, 4), (6, 0)], [(4, 0), (5, 0), (5, 7)], [(3, 7), (5, 0), (6, 0)], [(5, 0), (5, 6), (6, 0)],
               [(1, 7), (3, 7), (5, 7)], [(1, 7), (3, 0), (4, 0)], [(2, 0), (3, 4), (4, 4)], [(0, 7), (2, 7), (4, 4)],
               [(1, 7), (4, 7), (5, 7)], [(1, 7), (5, 0), (6, 0)], [(2, 7), (3, 7), (4, 7)], [(2, 7), (4, 7), (5, 7)]]


def dma1(p, vaddr, srd, soff, flags=""):
    return f"buffer_load_dwordx4 v{vaddr}, s[{srd}:{srd+3}], s{soff} offen offset:{1024 * p}{flags} lds"


def iteration(a, opts, kind):
    poll_at = opts.get("poll", 3)
    kdma_at = opts.get("kdma", 4)
    lump0_at = opts.get("lump0", 4)
    lump_at = opts.get("lump", 5)
    t0, t1 = vT[2], vT[3]
    sl = {j: {} for j in range(8)}

    def put(j, g, ins):
        sl[j].setdefault(g, []).append(ins)

    groups = {"first": [("K", 0), ("V", 2)], "hook": [("V", 0)], "lean": [("V", 0), ("G", 2)]}[kind]
    early = opts.get("early", 0) and kind == "lean"
    for what, j0 in groups:
        if early:
            spots = [(0, 0), (0, 4), (0, 6), (0, 6), (0, 7)] if what == "V" else [(1, 0), (1, 2), (1, 3), (1, 4), (1, 5)]
        else:
            spots = [(j0, 0), (j0, 4), (j0, 6), (j0 + 1, 4), (j0 + 1, 6)]
        put(*spots[0], f"s_xor_b32 m0, s{sM0V if what == 'V' else sM0K}, s{sPAR}")
        for p in range(4):
            ins = {"K": dma1(p, vVG, sK, sVOFF), "V": dma1(p, vVG, sV, sVOFF), "G": dma1(p, vKS, sX, sKOFF, " sc1")}[what]
            put(*spots[p + 1], ins)
    if kind == "first":
        put(0, 1, "s_waitcnt lgkmcnt(3)")
    for lvl, (j, g) in zip((2, 1, 0), PRIO_POINTS[opts.get("pp", 2) if kind == "lean" else opts.get({"first": "pp0", "hook": "pph"}[kind], 10 if kind == "hook" else 1)]):
        put(j, g, f"s_setprio {lvl}")
    if kind == "first" and opts.get("pp0", 1) >= 5:
        put(5, 7, "s_setprio 0")
    if kind == "hook":
        load = "s_nop 0" if opts.get("x_miss") else f"buffer_load_dword v{t0}, s[{sG}:{sG+3}], s{sA} offen sc1 lds"
        put(poll_at, opts.get("pollg", 4), f"""; wave 0 copies the head's arrival word into LDS
            s_cmp_eq_u32 s{sW}, 0
            s_cbranch_scc0 L_polled
            s_cmp_eq_u32 s{sI}, 1
            s_cbranch_scc0 L_relay
            s_mov_b32 m0, {FLAG}
            s_lshl_b32 s{sA}, s{sH}, 4
            v_mov_b32 v{t0}, 0
            s_mov_b64 exec, 1
            {load}
            s_mov_b64 exec, -1
            @L_polled""")
    put(6, 4, f"s_add_u32 s{sKOFF}, s{sKOFF}, 32768")
    put(6, 6, f"s_add_u32 s{sVOFF}, s{sVOFF}, {CHB}")
    put(6, 6, f"s_xor_b32 s{sPAR}, s{sPAR}, {PAR}")
    put(7, 0, f"s_cmp_eq_u32 s{sKOFF}, {8 * 32768}")
    put(7, 4, f"s_cselect_b32 s{sKOFF}, 32768, s{sKOFF}")
    put(7, 6, f"s_cselect_b32 s{sVOFF}, {CHB}, s{sVOFF}")
    if kind == "lean" and opts.get("nojunk", 1):
        put(5, 4, f"s_cmp_eq_u32 s{sI}, 6")
        put(5, 6, f"s_cselect_b32 s{sA}, 0x40000000, 0")
        put(7, 6, f"s_or_b32 s{sKOFF}, s{sKOFF}, s{sA}")
        put(7, 7, f"s_or_b32 s{sVOFF}, s{sVOFF}, s{sA}")

    def sync(a):
        a("s_waitcnt vmcnt(0) lgkmcnt(0)")
        a("s_barrier")
        a("s_setprio 3")
        a(f"v_xor_b32 v{vAK}, {PAR}, v{vAK}")
        a(f"v_xor_b32 v{vAV}, v{vDV}, v{vAV}")
        if kind == "first":
            a.note("every publishing wave's stores completed before the barrier: one lane signals")
            a(f"""s_cmp_eq_u32 s{sW}, 0
            s_cselect_b32 s{sA}, s{sC}, 0
            s_cmp_ge_u32 s{sA}, {first_pub(opts)}
            s_cbranch_scc0 L_signalled
            s_and_b32 s{sA}, s{sC}, 14
            s_lshl_b32 s{sA}, 1, s{sA}
            v_mov_b32 v{t1}, s{sA}
            v_mov_b32 v{t0}, 0
            s_lshl_b32 s{sA}, s{sH}, 4
            s_mov_b64 exec, 1
            buffer_atomic_add v{t1}, v{t0}, s[{sG}:{sG+3}], s{sA} offen sc1
            s_mov_b64 exec, -1""")
            a.label("L_signalled")

    for j in range(8):
        step(a, j, sl[j], sync if j == 6 else None, opts.get("syncg", 3))
        stamp_it(a, opts, f"e{j}", kind)
        if kind == "first":
            if j == lump0_at:
                a("s_waitcnt vmcnt(4)")
                lump(a, publish=True)
                if opts.get("pp0", 1) >= 5:
                    a("s_setprio 1")
        if kind == "hook":
            if j == 0:
                a.note("after a missed hand-off wave 0 re-reads the arrival word at the memory side")
                a(f"""s_cmp_eq_u32 s{sW}, 0
                s_cselect_b32 s{sA}, s{sI}, 0
                s_cmp_ge_u32 s{sA}, 2
                s_cbranch_scc1 L_repoll""")
                a.label("L_repolled")
            if j == kdma_at:
                a.note("next chunk: from d_ws if both of its publishers have arrived")
                a(f"""v_mov_b32 v{t0}, {FLAG}
                ds_read_b32 v{t0}, v{t0}
                s_xor_b32 m0, s{sM0K}, s{sPAR}
                s_lshr_b32 s{sB}, s{sKOFF}, 14
                s_add_u32 s{sB}, s{sB}, 1
                s_waitcnt lgkmcnt(0)
                v_readfirstlane_b32 s{sA}, v{t0}
                s_cmp_eq_u32 s{sA}, {hex(0x7fffffff if opts.get("x_self") else all_ready(opts))}
                s_cselect_b32 s{sMODE}, 1, 0
                s_bitcmp1_b32 s{sA}, {0 if opts.get("x_self") else "s%d" % sB}
                s_cbranch_scc0 L_raw""")
                for p in range(4):
                    a(dma1(p, vKS, sX, sKOFF, " sc1"))
                a.label("L_kdone")
            if j == lump_at:
                a(f"s_cmp_eq_u32 s{sRAW}, 1")
                a("s_cbranch_scc1 L_lump")
                a.label("L_lumped")
        if j == 6 and kind != "first":
            a(f"s_cmp_eq_u32 s{sI}, 7")
            a("s_cbranch_scc1 L_last")
        stamp_it(a, opts, f"h{j}", kind)
    if opts.get("clk"):
        clock_sample(a, f"s{sI}")


def clock_sample(a, slot):
    a(f"""s_memtime s[60:61]
    s_memrealtime s[62:63]
    s_lshl_b32 s64, s2, 3
    s_add_u32 s64, s64, s{sW}
    s_lshl_b32 s64, s64, 7
    s_lshl_b32 s65, {slot}, 3
    s_add_u32 s64, s64, s65
    s_add_u32 s64, s64, 0x1000000
    s_mov_b32 s68, s{sWS}
    s_mov_b32 s69, s{sWS+1}
    s_mov_b32 s70, 0x2000000
    s_mov_b32 s71, 0x20000
    s_waitcnt lgkmcnt(0)
    v_mov_b32 v246, s60
    v_mov_b32 v247, s62
    v_mov_b32 v245, 0
    buffer_store_dwordx2 v[246:247], v245, s[68:71], s64 offen""")


def main_loop(a, opts):
    if opts.get("clk"):
        clock_sample(a, "8")
        a("""s_getreg_b32 s60, hwreg(HW_REG_XCC_ID)
        s_add_u32 s64, s64, 8
        v_mov_b32 v246, s60
        buffer_store_dwordx2 v[246:247], v245, s[68:71], s64 offen""")
    a("s_setprio 3")
    iteration(a, opts, "first")
    a(f"s_mov_b32 s{sI}, 1")
    a.label("L_hook")
    iteration(a, opts, "hook")
    a(f"""s_add_u32 s{sI}, s{sI}, 1
    s_cmp_eq_u32 s{sMODE}, 0
    s_cbranch_scc1 L_hook""")
    a.raw(".p2align 6")
    a.label("L_lean")
    iteration(a, opts, "lean")
    a(f"s_add_u32 s{sI}, s{sI}, 1")
    a("s_branch L_lean")
    a.label("L_last")
    t0 = vT[0]
    e = [f"v_exp_f32 v{SS[1][x] + 8 * h + i}, v{SS[1][x] + 8 * h + i}" for h in range(2) for x in range(2) for i in range(8)]
    w = [send(t, p) for t in range(2) for p in range(4)]
    if opts.get("skipown", 0):
        a(f"s_lshr_b32 s{sD}, s{sW}, 1")
        for n in range(8):
            w[n] = (f"s_cmp_eq_u32 s{sD}, {n >> 2}\n" if n % 4 == 0 else "") + f"s_cbranch_scc1 L_kept{n}\n{w[n]}\n@L_kept{n}"
    a(f"s_lshl_b32 s{sB}, s{sW}, 14")
    a(f"v_lshl_add_u32 v{t0}, v{vL}, 4, s{sB}")
    seq = ([pv(0, 0, 1)] + e[0:4] + [pv(0, 1, 1)] + e[4:12] + [w[0]] + e[12:15] + [w[1]] + e[15:18] + [pv(1, 0, 0), w[2]]
           + e[18:22] + [pv(1, 1, 0), w[3]] + e[22:24] + [w[4]] + e[24:26] + [pv(1, 0, 1), w[5]] + e[26:29] + [w[6]]
           + e[29:32] + [w[7], "s_nop 0", pv(1, 1, 1)])
    for ins in seq:
        a(ins)


def send(t, p):
    return f"ds_write_b128 v{vT[0]}, {vr(O[t] + 4 * p, 4)} offset:{4096 * t + 1024 * p}"


def lump(a, publish):
    t0, t1 = vT[2], vT[0]
    a(f"s_add_u32 s{sA}, s{sM0K}, s{sPAR}")
    a(f"v_mad_u32_u24 v{t0}, v{vL}, 56, s{sA}")
    a(f"v_add_u32 v{t1}, s{sPAR}, v{vKW}")
    read_rows(a, R, t0)
    a("s_waitcnt lgkmcnt(0)")
    normalise(a, R, K_PADS, t1)
    if publish:
        a(f"s_cmp_eq_u32 s{sPUB}, 1")
        a("s_cbranch_scc0 L_published")
        for p in range(4):
            a(f"buffer_store_dwordx4 {vr(R + 4 * p, 4)}, v{vKW}, s[{sX}:{sX+3}], s{sKOFF} offen offset:{piece_off(p)} sc1")
        a.label("L_published")


def side_blocks(a, opts):
    a.label("L_raw")
    a(f"s_mov_b32 s{sRAW}, 1")
    for p in range(4):
        a(dma1(p, vVG, sK, sVOFF))
    a("s_branch L_kdone")
    a.label("L_lump")
    a(f"s_mov_b32 s{sRAW}, 0")
    a("s_waitcnt vmcnt(0)")
    lump(a, publish=False)
    a("s_branch L_lumped")
    t0 = vT[2]
    a.label("L_repoll")
    a(f"""s_lshl_b32 s{sA}, s{sH}, 4
    v_mov_b32 v{t0}, 0
    v_mov_b32 v{vPOLL}, 0
    s_mov_b64 exec, 1
    buffer_atomic_add v{vPOLL}, v{t0}, s[{sG}:{sG+3}], s{sA} offen sc0 sc1
    s_mov_b64 exec, -1
    s_branch L_repolled""")
    a.label("L_relay")
    a(f"""v_mov_b32 v{t0}, {FLAG}
    s_waitcnt vmcnt(0)
    s_mov_b64 exec, 1
    ds_write_b32 v{t0}, v{vPOLL}
    s_mov_b64 exec, -1
    s_branch L_polled""")


def epilogue(a, opts):
    a.label("L_epi")
    stamp(a, opts, "done")
    t0, t1, t2 = vT[0:3]
    l0, l1 = vT[4], vT[3]
    own, tot = D[0], SS[0][0]
    part = [SS[0][0], SS[0][1], SS[1][0]]
    src = [vT[5], vT[6], t1]
    a(f"""s_lshr_b32 s{sD}, s{sW}, 1
    s_lshl_b32 s{sA}, s{sD}, 12
    s_add_u32 s{sB}, s{sB}, s{sA}
    v_and_b32 v{t2}, 31, v0
    v_mul_u32_u24 v{t2}, 56, v{t2}
    v_bfe_u32 v{l1}, v0, 5, 1
    v_lshl_add_u32 v{t2}, v{l1}, 3, v{t2}
    v_add_u32 v{t2}, s{sB}, v{t2}
    v_lshl_add_u32 v{vAK}, v{vL}, 4, s{sB}
    v_xor_b32 v{src[0]}, 0x8000, v{vAK}
    v_xor_b32 v{src[1]}, 0x10000, v{vAK}
    v_xor_b32 v{src[2]}, 0x18000, v{vAK}
    s_and_b32 s{sA}, s{sW}, 1
    s_lshl_b32 s{sA}, s{sA}, 2
    s_add_u32 s{sA}, s{sA}, s{sD}
    s_mul_i32 s{sA}, s{sA}, {32 * 56}
    s_cmp_eq_u32 s{sD}, 1
    s_cbranch_scc1 L_send1
    s_cmp_eq_u32 s{sD}, 2
    s_cbranch_scc1 L_send2
    s_cmp_eq_u32 s{sD}, 3
    s_cbranch_scc1 L_send3""")
    for k in range(4):
        if k:
            a.label(f"L_send{k}")
        ws = [send(t, p) for t in (2, 3) if t != k for p in range(4)]
        for n in range(8):
            if n < len(ws):
                a(ws[n])
            a(f"v_mov_b64 {vr(own + 2 * n, 2)}, {vr(O[k] + 2 * n, 2)}")
        if k < 3:
            a("s_branch L_sent")
    a.label("L_sent")
    a("s_waitcnt lgkmcnt(0)")
    stamp(a, opts, "sent")
    a("s_barrier")
    order = (3, 0, 1, 2)
    for p in order:
        for k in range(3):
            a(f"ds_read_b128 {vr(part[k] + 4 * p, 4)}, v{src[k]} offset:{1024 * p}")
    extra = {0: [f"v_mov_b32 v{l0}, v{tot + 12}", f"v_mov_b32 v{l1}, v{tot + 12}"], 1: [f"v_permlane32_swap_b32 v{l0}, v{l1}"],
             2: [f"v_rcp_f32 v{l1}, v{l1}"], 3: []}
    for n, p in enumerate(order):
        a(f"s_waitcnt lgkmcnt({11 - 3 * n})")
        for i in (0, 2):
            a(f"v_pk_add_f32 {vr(tot + 4 * p + i, 2)}, {vr(part[0] + 4 * p + i, 2)}, {vr(own + 4 * p + i, 2)}")
        a(f"s_waitcnt lgkmcnt({9 - 3 * n})")
        for i in (0, 2):
            a(f"v_pk_add_f32 {vr(part[1] + 4 * p + i, 2)}, {vr(part[1] + 4 * p + i, 2)}, {vr(part[2] + 4 * p + i, 2)}")
        for i in (0, 2):
            a(f"v_pk_add_f32 {vr(tot + 4 * p + i, 2)}, {vr(tot + 4 * p + i, 2)}, {vr(part[1] + 4 * p + i, 2)}")
        for ins in extra[n]:
            a(ins)
    for g in range(4):
        for i in (0, 2):
            a(f"v_pk_mul_f32 {vr(D[1] + 4 * g + i, 2)}, {vr(tot + 4 * g + i, 2)}, {vr(l1, 2)} op_sel_hi:[1,0]")
        if g:
            a(f"ds_write_b64 v{t2}, {vr(R + 2 * g - 2, 2)} offset:{16 * g - 16}")
        for i in (0, 1):
            a(f"v_cvt_pk_bf16_f32 v{R + 2 * g + i}, v{D[1] + 4 * g + 2 * i}, v{D[1] + 4 * g + 2 * i + 1}")
    a(f"""s_mov_b32 exec_hi, 0
    ds_write_b64 v{t2}, {vr(R + 6, 2)} offset:48
    s_mov_b32 exec_hi, -1
    v_lshlrev_b32 v{t1}, 4, v{vL}
    ds_read_b128 {vr(KF, 4)}, v{vAK}
    ds_read_b128 {vr(KF + 4, 4)}, v{vAK} offset:1024
    s_waitcnt lgkmcnt(1)
    buffer_store_dwordx4 {vr(KF, 4)}, v{t1}, s[{sO}:{sO+3}], s{sA} offen
    s_mov_b32 exec_hi, 0xffff
    s_waitcnt lgkmcnt(0)
    buffer_store_dwordx4 {vr(KF + 4, 4)}, v{t1}, s[{sO}:{sO+3}], s{sA} offen offset:1024
    s_mov_b32 exec_hi, -1""")
    for i in range(16):
        a(f"v_max_f32 v{tot + i}, abs(v{tot + i}), abs(v{own + i})")
    a(f"v_min3_f32 v{l0}, v{tot}, v{tot + 1}, v{tot + 2}")
    for i in range(3, 13, 2):
        a(f"v_min3_f32 v{l0}, v{l0}, v{tot + i}, v{tot + i + 1}")
    a("s_mov_b32 exec_hi, 0")
    a(f"v_min3_f32 v{l0}, v{l0}, v{tot + 13}, v{tot + 14}")
    a(f"v_min_f32 v{l0}, v{tot + 15}, v{l0}")
    a(f"""s_mov_b32 exec_hi, -1
    v_cmp_gt_f32 vcc, {hex(O_MIN)}, v{l0}
    v_mov_b32 v{t0}, {FLAG + 4}
    v_mov_b32 v{t1}, 1
    s_cbranch_vccz L_final
    ds_write_b32 v{t0}, v{t1}
    s_waitcnt lgkmcnt(0)""")
    a.label("L_final")
    a(f"""s_barrier
    ds_read_b32 v{t0}, v{t0}
    s_waitcnt lgkmcnt(0)
    v_readfirstlane_b32 s{sA}, v{t0}
    s_cmp_gt_u32 s{sA}, s{sSLOW}
    s_cbranch_scc1 L_redo""")
    if opts.get("stamps"):
        a("s_mov_b64 exec, -1")
        stamp(a, opts, "stored")
        a("s_waitcnt vmcnt(0)")
        stamp(a, opts, "end")
        dbg = opts["stamps"] == 2
        a(f"""s_memrealtime s[76:77]
        s_load_dwordx2 s[4:5], s[0:1], {40 if dbg else 48}
        s_waitcnt lgkmcnt(0)
        s_mov_b32 s6, {64 if dbg else 0x2000000}
        s_mov_b32 s7, 0x20000
        s_lshl_b32 s8, s2, 3
        s_add_u32 s8, s8, s{sW}""")
        if dbg:
            a("""s_cmp_eq_u32 s8, 2047
            s_cselect_b32 s9, 1, 2
            s_cmp_eq_u32 s8, 0
            s_cselect_b32 s8, 0, s9""")
        a("s_lshl_b32 s8, s8, 5")
        if not dbg:
            a("s_add_u32 s8, s8, 0x1000000")
        a("""v_mov_b32 v0, 0
        v_mov_b32 v1, s74
        buffer_store_dword v1, v0, s[4:7], s8 offen""")
        for n in range(1, 7):
            if opts["slots"][n] == "mode":
                a(f"s_mov_b32 s9, s{sP}")
            else:
                a(f"s_sub_u32 s9, s{sTS + 2 * n}, s{sTS}")
            a("v_mov_b32 v1, s9")
            a(f"buffer_store_dword v1, v0, s[4:7], s8 offen offset:{4 * n}")
        a("s_sub_u32 s9, s76, s74")
        a("v_mov_b32 v1, s9")
        a("buffer_store_dword v1, v0, s[4:7], s8 offen offset:28")
    if opts.get("hold"):
        if opts.get("holdraw"):
            a(f"""s_mul_i32 s8, s{sP}, 400
            s_add_u32 s74, s74, s8""")
        if opts.get("span"):
            a("""s_waitcnt lgkmcnt(0)
            s_sub_u32 s8, s60, s62
            s_lshl_b32 s8, s8, 2
            s_add_u32 s74, s74, s8""")
        if opts.get("holdk"):
            a(f"""s_waitcnt lgkmcnt(0)
            s_sub_u32 s8, s60, s74
            s_lshl_b32 s8, s8, {0 if opts["holdk"] == 2 else 2}
            s_add_u32 s74, s74, s8""")
        a.label("L_hold")
        a(f"""s_sleep 4
        s_memrealtime s[76:77]
        s_waitcnt lgkmcnt(0)
        s_sub_u32 s9, s76, s74
        s_cmp_lt_i32 s9, {opts["hold"]}
        s_cbranch_scc1 L_hold""")
    a.label("L_end")
    a("s_endpgm")


def slow_path(a):
    x0 = vT[2]
    a.label("L_redo")
    a(f"""s_mov_b32 s{sFORCE}, 1
    s_waitcnt vmcnt(0)
    s_barrier
    s_branch L_start""")
    a.label("L_slow")
    for t in range(4):
        a(f"v_mov_b32 v{MXS[t]}, 0xff800000")
    a(f"s_mov_b32 s{sP}, 0")
    a.label("L_slow_pass")
    a(f"s_mov_b32 s{sVOFF}, 0")
    a.label("L_slow_chunk")
    a("s_waitcnt vmcnt(0) lgkmcnt(0)")
    a("s_barrier")
    dma4(a, sM0K, vVG, sK, f"s{sVOFF}")
    dma4(a, sM0V, vVG, sV, f"s{sVOFF}")
    a(f"v_mad_u32_u24 v{x0}, v{vL}, 56, s{sM0K}")
    a("s_waitcnt vmcnt(0)")
    read_rows(a, R, x0)
    a("s_waitcnt lgkmcnt(0)")
    normalise(a, R, K_PADS, vKW)
    a("s_waitcnt lgkmcnt(0)")
    a("s_barrier")
    for j in range(4):
        a(rdK(0, j)); a(rdK(1, j))
        for which in range(2):
            for part in range(2):
                a(rdV(which, part, j))
        a("s_waitcnt lgkmcnt(0)")
        a(f"s_call_b64 s[{sLINK}:{sLINK+1}], L_slow_tile")
    a(f"""s_add_u32 s{sVOFF}, s{sVOFF}, {CHB}
    s_cmp_lt_u32 s{sVOFF}, {HEADB}
    s_cbranch_scc1 L_slow_chunk
    s_cmp_eq_u32 s{sP}, 1
    s_cbranch_scc1 L_slow_done""")
    for t in range(4):
        a(f"""v_mov_b32 v{x0}, v{MXS[t]}
        s_nop 1
        v_permlane32_swap_b32 v{x0}, v{MXS[t]}
        s_nop 1
        v_max_f32 v{MXS[t]}, v{x0}, v{MXS[t]}""")
    for t in range(4):
        a(f"v_mov_b32 v{D[0] + t}, v{MXS[t]}")
    a(f"""s_barrier
    v_lshlrev_b32 v{x0}, 4, v0
    ds_write_b128 v{x0}, {vr(D[0], 4)}
    s_waitcnt lgkmcnt(0)
    s_barrier""")
    for k in range(1, 4):
        a(f"v_xor_b32 v{x0 + 1}, {2048 * k}, v{x0}")
        a(f"ds_read_b128 {vr(D[0], 4)}, v{x0 + 1}")
        a("s_waitcnt lgkmcnt(0)")
        for t in range(4):
            a(f"v_max_f32 v{MXS[t]}, v{MXS[t]}, v{D[0] + t}")
    a(f"s_mov_b32 s{sP}, 1")
    a("s_branch L_slow_pass")
    a.label("L_slow_done")
    a("s_barrier")
    a(f"s_lshl_b32 s{sB}, s{sW}, 14")
    a(f"v_lshl_add_u32 v{vT[0]}, v{vL}, 4, s{sB}")
    a("s_nop 11")
    for t in range(2):
        for p in range(4):
            a(send(t, p))
    a("s_branch L_epi")
    a.label("L_slow_tile")
    tiles = [(p, x) for p in range(2) for x in range(2)]
    for p, x in tiles:
        a(qk(p, x, 0)); a(qk(p, x, 1))
    a("s_nop 15")
    for p, x in tiles:
        for i in range(16):
            a(f"v_mul_f32 v{SS[p][x] + i}, s{sT}, v{SS[p][x] + i}")
    a(f"s_cmp_eq_u32 s{sP}, 1")
    a("s_cbranch_scc1 L_slow_exp")
    for p, x in tiles:
        for i in range(0, 16, 2):
            a(f"v_max3_f32 v{MXS[2 * p + x]}, v{MXS[2 * p + x]}, v{SS[p][x] + i}, v{SS[p][x] + i + 1}")
    a(f"s_setpc_b64 s[{sLINK}:{sLINK+1}]")
    a.label("L_slow_exp")
    for p, x in tiles:
        for i in range(16):
            v = SS[p][x] + i
            a(f"v_sub_f32 v{v}, v{v}, v{MXS[2 * p + x]}")
            a(f"v_mul_f32 v{v}, {hex(LOG2E)}, v{v}")
            a(f"v_exp_f32 v{v}, v{v}")
    a("s_nop 1")
    for p, x in tiles:
        a(pv(p, x, 0)); a(pv(p, x, 1))
    a(f"s_setpc_b64 s[{sLINK}:{sLINK+1}]")


SLOTS = {0: ["start", "setup", "prebar", "loop", "mode", "done", "end"],
         1: ["start", "karg", "issued", "setup", "kdata", "prebar", "end"],
         2: ["start", "loop", "done", "sent", "stored", "mode", "end"],
         3: ["start", "kdata", "mid", "qdata", "lump2", "prebar", "end"],
         4: ["start", "loop", "e1", "h1", "e3", "h3", "end"],
         5: ["start", "e4", "h4", "e5", "h5", "e6", "end"],
         6: ["start", "e0", "e2", "e4", "e5", "e6", "e7"],
         7: ["start", "loop", "e0", "h0", "e4", "h4", "e6"],
         8: ["start", "e5", "e6", "h6", "e7", "done", "end"],
         9: ["start", "e1", "h1", "e2", "h2", "e3", "h3"],
         10: ["start", "qdata", "n0", "n1", "n2", "n3", "n4"],
         11: ["start", "n3", "n4", "n5", "prebar", "loop", "end"]}


def build(opts):
    opts["slots"] = SLOTS[opts.get("pro", 0)]
    a = Asm()
    name = "standalone__qk_norm__prompt_kernel"
    a.raw(HEADER + DOC + f"; @launch grid=(256,1,1) block=(512,1,1) lds={LDS_BYTES}")
    a.raw('.amdgcn_target "amdgcn-amd-amdhsa--gfx950"\n.text')
    if opts.get("align", 0):
        a.raw(".p2align 12\n.fill 832, 4, 0xbf800000")
    a.raw(f".globl {name}\n.p2align 8\n.type {name},@function\n{name}:")
    prologue(a, opts)
    main_loop(a, opts)
    epilogue(a, opts)
    side_blocks(a, opts)
    slow_path(a)
    txt = a.text()
    if opts.get("stamps") or opts.get("holdraw"):
        txt = txt.replace(f"    s_mov_b32 s{sMODE}, 0\n", f"    s_mov_b32 s{sMODE}, 0\n    s_mov_b32 s{sP}, 0\n")
        txt = txt.replace(f"    s_mov_b32 s{sRAW}, 1\n", f"    s_mov_b32 s{sRAW}, 1\n    s_add_u32 s{sP}, s{sP}, 1\n")
    txt += f""".section .rodata,"a"
.p2align 6
.amdhsa_kernel {name}
  .amdhsa_next_free_vgpr {NVGPR}
  .amdhsa_next_free_sgpr {NSGPR}
  .amdhsa_accum_offset {NVGPR}
  .amdhsa_group_segment_fixed_size 0
  .amdhsa_kernarg_size 56
  .amdhsa_user_sgpr_count 2
  .amdhsa_user_sgpr_kernarg_segment_ptr 1
  .amdhsa_system_sgpr_workgroup_id_x 1
  .amdhsa_float_denorm_mode_32 3
.end_amdhsa_kernel
"""
    return txt


if __name__ == "__main__":
    opts = {}
    out = "standalone__qk_norm__prompt.s"
    for arg in sys.argv[1:]:
        k, _, v = arg.partition("=")
        if k == "out":
            out = v
        else:
            opts[k] = int(v)
    open(out, "w").write(build(opts))
```
